```python
import torch

def _softmax(x, axis=-1):
    return torch.softmax(x, dim=axis)
def _gelu(x):
    return torch.nn.functional.gelu(x, approximate="tanh")
def _silu(x):
    return torch.nn.functional.silu(x)
def _sigmoid(x):
    return torch.sigmoid(x)
def _layernorm(x, axis=-1, eps=1e-5):
    m = x.mean(dim=axis, keepdim=True)
    v = x.var(dim=axis, keepdim=True, unbiased=False)
    return (x - m) / torch.sqrt(v + eps)
def _scatter_add(tgt, idx, src, axis=0):
    return tgt.clone().index_add_(axis, idx, src)
def _segment_sum(src, seg, n):
    out = torch.zeros((n,) + src.shape[1:], dtype=src.dtype)
    return out.index_add_(0, seg, src)
def _pad(x, pw):
    flat = tuple(v for pair in reversed(pw) for v in pair)
    return torch.nn.functional.pad(x, flat)

kernel_name = 'parallel_sum__sliding_block__moe_arch_mod__prompt'

def setup_inputs():

    _w = (lambda a: (lambda t: t.to(torch.bfloat16) if t.is_floating_point() else t)(torch.as_tensor(a)))
    def _A_setup():
        B, S, D = 1, 2048, 640
        return {
            "x": _w((lambda *s: torch.randn(*s, dtype=torch.bfloat16) * 0.05)(B, S, D)),
            "wqkv": _w((lambda *s: torch.randn(*s, dtype=torch.bfloat16) * 0.05)(D, 3 * D)),
            "wo": _w((lambda *s: torch.randn(*s, dtype=torch.bfloat16) * 0.05)(D, D)),
        }
    _A_in = _A_setup()

    def _B_setup():
        B, S, D, F, C = 1, 2048, 640, 1536, 2
        return {
            "x": _w((lambda *s: torch.randn(*s, dtype=torch.bfloat16) * 0.05)(B, S, D)),
            "w_r": _w((lambda *s: torch.randn(*s, dtype=torch.bfloat16) * 0.05)(D)),
            "w_gate": _w((lambda *s: torch.randn(*s, dtype=torch.bfloat16) * 0.05)(D, F)),
            "w_up": _w((lambda *s: torch.randn(*s, dtype=torch.bfloat16) * 0.05)(D, F)),
            "w_down": _w((lambda *s: torch.randn(*s, dtype=torch.bfloat16) * 0.05)(F, D)),
        }
    _B_in = _B_setup()

    return {
        "A_x": _A_in["x"],
        "A_wqkv": _A_in["wqkv"],
        "A_wo": _A_in["wo"],
        "B_x": _B_in["x"],
        "B_w_r": _B_in["w_r"],
        "B_w_gate": _B_in["w_gate"],
        "B_w_up": _B_in["w_up"],
        "B_w_down": _B_in["w_down"],
    }

def reference(A_x, A_wqkv, A_wo, B_x, B_w_r, B_w_gate, B_w_up, B_w_down):
    def _A_ref(x, wqkv, wo):
        B, S, D = x.shape
        H = 32; Dh = D // H; W = 256
        qkv = (lambda x, *d: x.permute(*d))((x @ wqkv).reshape(B, S, 3, H, Dh), 2, 0, 3, 1, 4)
        q, k, v = qkv[0], qkv[1], qkv[2]
        scores = torch.einsum("bhqd,bhkd->bhqk", q, k) * (Dh ** -0.5)
        idx = torch.arange(S)
        mask = (idx[:, None] - idx[None, :] >= 0) & (idx[:, None] - idx[None, :] < W)
        scores = torch.where(mask[None, None], scores, -1e9)
        p = _softmax(scores, axis=-1)
        o = torch.einsum("bhqk,bhkd->bhqd", p, v)
        return (lambda x, *d: x.permute(*d))(o, 0, 2, 1, 3).reshape(B, S, D) @ wo

    def _B_ref(x, w_r, w_gate, w_up, w_down):
        B, S, D = x.shape
        C = 2
        r = x @ w_r
        idx = torch.argsort(-r, axis=-1)[:, :C]
        idx_e = (lambda x, n, axis: torch.repeat_interleave(x, n, dim=axis))(idx.reshape(B, C, 1), D, axis=2)
        x_sel = (lambda x, i, axis: torch.take_along_dim(x, i, dim=axis))(x, idx_e, axis=1)
        g = _silu(x_sel @ w_gate)
        u = x_sel @ w_up
        y = (g * u) @ w_down
        r_sel = _sigmoid((lambda x, i, axis: torch.take_along_dim(x, i, dim=axis))(r, idx, axis=1))
        y = y * r_sel.reshape(B, C, 1)
        b_off = (torch.arange(B) * S).reshape(B, 1)
        flat_idx = (idx + b_off).reshape(B * C)
        zero = (x * 0.0).reshape(B * S, D)
        upd = _scatter_add(zero, flat_idx, y.reshape(B * C, D), axis=0)
        return x + upd.reshape(B, S, D)

    x = A_x
    xn = _layernorm(x, axis=-1)
    return x + _A_ref(xn, A_wqkv, A_wo) + _B_ref(xn, B_w_r, B_w_gate, B_w_up, B_w_down)
```

```python
import re

TRANS = ("v_exp_f32", "v_log_f32", "v_rcp_f32", "v_rsq_f32", "v_sqrt_f32", "v_sin_f32", "v_cos_f32", "v_rcp_iflag_f32")
REG_RE = re.compile(r"^(-|\|)?(abs\(|neg\()?([vsa])(\d+|\[(\d+):(\d+)\])\)?\|?$")

def regs_of(tok):
    tok = tok.strip()
    t = tok.lstrip("-").strip("|")
    if t.startswith("abs(") or t.startswith("neg("): t = t[4:-1]
    if t == "vcc": return [("s", 106), ("s", 107)]
    if t == "vcc_lo": return [("s", 106)]
    if t == "vcc_hi": return [("s", 107)]
    if t == "exec": return [("s", 126), ("s", 127)]
    if t == "exec_lo": return [("s", 126)]
    if t == "exec_hi": return [("s", 127)]
    if t == "m0": return [("s", 124)]
    m = re.match(r"^([vsa])(\d+)$", t)
    if m: return [(m.group(1), int(m.group(2)))]
    m = re.match(r"^([vsa])\[(\d+):(\d+)\]$", t)
    if m: return [(m.group(1), i) for i in range(int(m.group(2)), int(m.group(3)) + 1)]
    return []

class Ins:
    __slots__ = ("text", "mn", "ops", "cls", "dst", "src", "passes", "srcc", "is_dpp", "is_lds_dma", "wide_store")
    def __init__(self, text):
        self.text = text
        body = text.split(";")[0].strip()
        parts = body.split(None, 1)
        self.mn = parts[0]
        rest = parts[1] if len(parts) > 1 else ""
        ops = []; cur = ""; depth = 0
        for ch in rest:
            if ch in "[(": depth += 1
            if ch in "])": depth -= 1
            if ch == "," and depth == 0: ops.append(cur.strip()); cur = ""
            else: cur += ch
        if cur.strip(): ops.append(cur.strip())
        mods = ""
        if ops:
            sp = ops[-1].split(None, 1)
            if len(sp) > 1:
                ops[-1] = sp[0]; mods = sp[1]
        self.ops = ops
        mn = self.mn
        self.dst = []; self.src = []; self.passes = 0; self.srcc = []
        self.is_dpp = ("_dpp" in mn) or ("row_" in mods) or ("quad_perm" in mods) or ("row_" in rest) or ("quad_perm" in rest)
        self.is_lds_dma = False; self.wide_store = False
        R = [regs_of(o) for o in ops]
        if mn.startswith("v_mfma"):
            self.cls = "MFMA"
            self.passes = 8 if "32x32" in mn else 4
            self.dst = R[0]; self.src = R[1] + R[2] + R[3]; self.srcc = R[3]
        elif mn.startswith("v_"):
            self.cls = "TRANS" if mn.replace("_e32", "").replace("_e64", "") in TRANS else "VALU"
            base = mn
            if base.startswith("v_cmpx"):
                self.dst = R[0] + [("s", 126), ("s", 127)]; self.src = sum(R[1:], [])
            elif base.startswith("v_cmp"):
                self.dst = R[0]; self.src = sum(R[1:], [])
            elif base.startswith("v_permlane") and "swap" in base:
                self.dst = R[0] + R[1]; self.src = R[0] + R[1]
            elif base.startswith(("v_add_co", "v_sub_co", "v_subrev_co")):
                self.dst = R[0] + R[1]; self.src = sum(R[2:], [])
            elif base.startswith(("v_addc_co", "v_subb_co")):
                self.dst = R[0] + R[1]; self.src = sum(R[2:], [])
            elif base.startswith(("v_fmac", "v_dot2c", "v_mac")):
                self.dst = R[0]; self.src = sum(R, [])
            elif base.startswith("v_cndmask") and len(ops) == 3:
                self.dst = R[0]; self.src = R[1] + R[2] + [("s", 106), ("s", 107)]
            elif base.startswith("v_writelane"):
                self.dst = R[0]; self.src = sum(R, [])
            else:
                self.dst = R[0]; self.src = sum(R[1:], [])
            if self.is_dpp and not base.startswith("v_mov"):
                pass
        elif mn.startswith("ds_"):
            self.cls = "DS"
            if mn.startswith(("ds_read", "ds_bpermute", "ds_permute", "ds_swizzle")) or "_rtn" in mn:
                self.dst = R[0]; self.src = sum(R[1:], [])
            else:
                self.src = sum(R, [])
        elif mn.startswith(("buffer_", "global_", "flat_")):
            self.cls = "VMEM"
            islds = bool(re.search(r"\blds\b", rest)) or "load_lds" in mn
            self.is_lds_dma = islds
            if "load" in mn and not islds:
                self.dst = R[0]; self.src = sum(R[1:], [])
            elif "atomic" in mn and re.search(r"\bsc0\b", rest):
                self.dst = R[0]; self.src = sum(R, [])
            else:
                self.src = sum(R, [])
            if islds: self.src += [("s", 124)]
            if "store" in mn and ("x4" in mn or "x3" in mn): self.wide_store = True
        elif mn.startswith("s_"):
            self.cls = "SALU"
            if mn.startswith(("s_cmp", "s_cbranch", "s_branch", "s_waitcnt", "s_barrier", "s_nop", "s_endpgm", "s_sleep", "s_setprio", "s_bitcmp")):
                self.src = sum(R, [])
            else:
                self.dst = R[0] if R else []; self.src = sum(R[1:], [])
                if "saveexec" in mn: self.dst = self.dst + [("s", 126), ("s", 127)]
        else:
            self.cls = "OTHER"
    def states(self):
        if self.mn == "s_nop": return int(self.ops[0], 0) + 1
        return 1

class Asm:
    def __init__(self):
        self.items = []
        self.uid = 0
    def __call__(self, text):
        for line in text.strip("\n").split("\n"):
            s = line.strip()
            if not s: continue
            if s.startswith(";") or s.startswith(".") or s.endswith(":"):
                self.items.append(s)
            else:
                self.items.append(Ins(s))
    def label(self, base):
        self.uid += 1
        return f"L_{base}_{self.uid}"
    def raw(self, s): self.items.append(s)

    def need(self, prev, cur):
        n = 0
        pd = set(prev.dst); cs = set(cur.src); cd = set(cur.dst)
        pv = {r for r in pd if r[0] in "va"}; ps = {r for r in pd if r[0] == "s"}
        isvalu = lambda x: x.cls in ("VALU", "TRANS")
        if isvalu(prev):
            if cur.cls == "MFMA" and (pv & cs): n = max(n, 2)
            if cur.cls == "MFMA" and (("s", 126) in ps): n = max(n, 4)
            if isvalu(cur):
                if cur.is_dpp and (pv & cs): n = max(n, 2)
                if cur.is_dpp and (("s", 126) in ps): n = max(n, 5)
                if cur.mn.startswith("v_permlane") and (pv & cs): n = max(n, 2)
                if cur.mn.startswith(("v_readlane", "v_readfirstlane")) and (pv & cs): n = max(n, 1)
                if ps & cs:
                    n = max(n, 4 if cur.mn.startswith(("v_readlane", "v_writelane")) else 2)
                if (("s", 126) in ps) and cur.mn.startswith(("v_readlane", "v_readfirstlane", "v_writelane", "v_permlane")): n = max(n, 4)
                if prev.cls == "TRANS" and cur.cls != "TRANS" and (pv & (cs | cd)): n = max(n, 1)
                if prev.cls == "TRANS" and cur.cls == "TRANS" and (pv & cs): n = max(n, 1)
            if cur.cls == "VMEM" and (ps & cs): n = max(n, 5)
            if cur.cls == "SALU" and (ps & cs): n = max(n, 1)
            if cur.mn in ("s_cbranch_vccz", "s_cbranch_vccnz") and (("s", 106) in ps): n = max(n, 1)
            if cur.cls in ("DS", "VMEM") and prev.cls == "TRANS" and (pv & cs): n = max(n, 1)
        if prev.cls == "MFMA":
            P = prev.passes
            w = {4: 8, 8: 12}[P]
            if cur.cls == "MFMA":
                if pv & set(cur.srcc):
                    same = (cur.srcc == prev.dst) and cur.passes == P
                    if not same: n = max(n, {4: 6, 8: 10}[P])
                ab = cs - set(cur.srcc) if cur.srcc else cs
                abregs = set(regs_of(cur.ops[1]) + regs_of(cur.ops[2]))
                if pv & abregs: n = max(n, w)
                if (pv & cd) and not (pv & set(cur.srcc)):
                    n = max(n, {4: 6, 8: 10}[P])
            elif isvalu(cur):
                if pv & (cs | cd): n = max(n, w)
                if set(prev.srcc) & cd: n = max(n, {4: 3, 8: 7}[P])
            elif cur.cls in ("DS", "VMEM"):
                if pv & (cs | cd): n = max(n, w)
        if prev.cls == "SALU":
            if ("s", 124) in ps and (cur.is_lds_dma): n = max(n, 1)
        if prev.wide_store and isvalu(cur):
            data = set(regs_of(prev.ops[0]))
            if data & cd: n = max(n, 2)
        return n

    def finalize(self):
        out = []
        hist = []
        for it in self.items:
            if isinstance(it, str):
                out.append(it)
                continue
            dist = 0; pad = 0
            for p in reversed(hist):
                need = self.need(p, it)
                if need > dist: pad = max(pad, need - dist)
                dist += p.states()
                if dist >= 20: break
            while pad > 0:
                k = min(pad, 16)
                nop = Ins(f"s_nop {k-1}")
                out.append(nop); hist.append(nop); pad -= k
            out.append(it); hist.append(it)
            if len(hist) > 40: hist = hist[-40:]
        lines = []
        for it in out:
            if isinstance(it, str):
                lines.append(it if (it.endswith(":") or it.startswith(".") or it.startswith(";")) else "  " + it)
            else:
                lines.append("  " + it.text)
        return "\n".join(lines) + "\n"
```

```python
import sys, struct
from asmlib import Asm

KNAME = "parallel_sum__sliding_block__moe_arch_mod__prompt_kernel"

WS_ST = 0
WS_CSP = 0x8000
WS_F1 = 0x48000
WS_F2 = 0x4C000
WS_FR = 0x50000
WS_XF = 0x50400
WS_XH = 0x52000
WS_UPD = 0x55000
WS_QKV = 0x100000
WS_O = 0x900000
WS_DBG = 0xC00000
WS_SIZE = 0xD00000
L_MISC = 131072
L_STAT = L_MISC
L_CS = L_MISC + 1024
L_CSW = L_MISC + 2176
L_OWN = L_MISC + 2048
L_FLG = L_MISC + 6400
L_AUX = 138240
LB_K = 0
LB_V = 24768
PLS = 8256
LA1 = 49664
LBB = 107008
LA2 = 0
L_EX = 24832
NEGF = "0xf149f2ca"
LDS_BYTES = 163840
QSCALE = 0.22360679774997896 * 1.4426950408889634

def f32hex(x):
    return "0x%08x" % struct.unpack("<I", struct.pack("<f", x))[0]

class Gen:
    def __init__(self, stop_after=None, stamps=False, opts=()):
        self.a = Asm()
        self.opts = set(opts)
        self.stop_after = stop_after
        self.stamps = stamps
        self.swave = 0; self.quota = 24; self.TG = 5; self.PRE = 3
        for o in self.opts:
            if o.startswith("swave="): self.swave = int(o[6:])
            if o.startswith("quota="): self.quota = int(o[6:])
            if o.startswith("pre="): self.PRE = int(o[4:])
            if o.startswith("tg="): self.TG = int(o[3:])
            if o.startswith("stop="): self.stop_after = o[5:]

    def srd(self, base, kofs, size):
        self.a(f"s_load_dwordx2 s[{base}:{base+1}], s[0:1], {kofs}")
        self.post_srd.append((base, size))
    def srd_fin(self):
        for base, size in self.post_srd:
            self.a(f"s_mov_b32 s{base+2}, {size}\ns_mov_b32 s{base+3}, 0x20000")
        self.post_srd = []
    def stamp(self, idx):
        if self.stamps:
            self.a(f"s_memrealtime s[{72+2*idx}:{73+2*idx}]")
            if idx == 0: self.a("s_memtime s[96:97]")
    def fin_stamps(self, n, wave=0, slot=0):
        if not self.stamps: return
        a = self.a
        L = a.label("nostamp")
        a("s_memtime s[98:99]")
        a("s_waitcnt lgkmcnt(0)")
        a(f"s_cmp_lg_u32 s16, {wave}\ns_cbranch_scc1 {L}")
        a(f"s_lshl_b32 s29, s2, 8\ns_add_u32 s29, s29, {WS_DBG + 128*slot}\nv_mov_b32 v4, s29\ns_mov_b64 exec, 1")
        for i in range(n):
            a(f"v_mov_b32 v6, s{72+2*i}\nv_mov_b32 v7, s{73+2*i}\nbuffer_store_dwordx2 v[6:7], v4, s[12:15], 0 offen offset:{8*i}")
        a("s_sub_u32 s98, s98, s96\nv_mov_b32 v6, s98\nv_mov_b32 v7, 0\nbuffer_store_dwordx2 v[6:7], v4, s[12:15], 0 offen offset:120")
        a(f"s_mov_b64 exec, -1\n{L}:")

    def top2_merge(self, a1, a2, b1, b2, mn):
        a = self.a
        a(f"v_min_u32 {mn}, {a1}, {b1}")
        a(f"v_max_u32 {a1}, {a1}, {b1}")
        a(f"v_max3_u32 {a2}, {a2}, {b2}, {mn}")
    def top2_wave(self, a1, a2, b1, b2, mn):
        a = self.a
        for ctrl in ("quad_perm:[1,0,3,2]", "quad_perm:[2,3,0,1]", "row_half_mirror", "row_mirror"):
            a(f"v_mov_b32_dpp {b1}, {a1} {ctrl} row_mask:0xf bank_mask:0xf")
            a(f"v_mov_b32_dpp {b2}, {a2} {ctrl} row_mask:0xf bank_mask:0xf")
            self.top2_merge(a1, a2, b1, b2, mn)
        for sw in ("v_permlane16_swap_b32", "v_permlane32_swap_b32"):
            a(f"v_mov_b32 {b1}, {a1}\nv_mov_b32 {b2}, {a2}")
            a(f"{sw} {a1}, {b1}\n{sw} {a2}, {b2}")
            self.top2_merge(a1, a2, b1, b2, mn)
    def sum_wave_lines(self, regs, tmps):
        out = []
        for ctrl in ("quad_perm:[1,0,3,2]", "quad_perm:[2,3,0,1]", "row_half_mirror", "row_mirror"):
            for r in regs: out.append(f"v_add_f32_dpp {r}, {r}, {r} {ctrl} row_mask:0xf bank_mask:0xf")
        for sw in ("v_permlane16_swap_b32", "v_permlane32_swap_b32"):
            for r, t in zip(regs, tmps): out.append(f"v_mov_b32 {t}, {r}")
            for r, t in zip(regs, tmps): out.append(f"{sw} {r}, {t}")
            for r, t in zip(regs, tmps): out.append(f"v_add_f32 {r}, {r}, {t}")
        return out
    @staticmethod
    def bf16r(dst, src):
        return [f"v_cvt_pk_bf16_f32 {dst}, {src}, {src}", f"v_lshlrev_b32 {dst}, 16, {dst}"]
    @staticmethod
    def key_lines(rf, row, dst, t1, t2):
        return [f"v_cvt_pk_bf16_f32 {dst}, {rf}, {rf}", f"v_and_b32 {dst}, 0xffff, {dst}",
                f"v_or_b32 {t1}, 0x8000, {dst}", f"v_xor_b32 {t2}, 0xffff, {dst}",
                f"v_cmp_lt_u32 vcc, 0x7fff, {dst}\nv_cndmask_b32 {dst}, {t1}, {t2}, vcc",
                f"v_mov_b32 {t1}, 0",
                f"v_cmp_u_f32 vcc, {rf}, {rf}\nv_cndmask_b32 {dst}, {dst}, {t1}, vcc",
                f"v_sub_u32 {t1}, 0xfff, {row}", f"v_lshl_or_b32 {dst}, {dst}, 16, {t1}"]
    def lds_spin(self, vaddr, vtmp, stmp, cmp_, val, off=0):
        a = self.a
        L = a.label("spin")
        a(f"{L}:\nds_read_b32 {vtmp}, {vaddr} offset:{off}\ns_waitcnt lgkmcnt(0)")
        a(f"v_readfirstlane_b32 {stmp}, {vtmp}\ns_cmp_{cmp_}_u32 {stmp}, {val}\ns_cbranch_scc0 {L}")

    def build(self):
        a = self.a
        a.raw(f"; @launch grid=(256,1,1) block=(576,1,1) lds={LDS_BYTES}")
        a.raw('.amdgcn_target "amdgcn-amd-amdhsa--gfx950"')
        a.raw(".text")
        a.raw(f".globl {KNAME}")
        a.raw(".p2align 8")
        a.raw(f".type {KNAME},@function")
        a.raw(f"{KNAME}:")
        self.post_srd = []
        a("s_cmp_ge_u32 s2, 256\ns_cbranch_scc1 L_end")
        self.srd(4, 0, 2621440)
        self.srd(8, 8, 2457600)
        self.srd(12, 80, WS_SIZE)
        self.srd(36, 32, 1280)
        a("v_and_b32 v1, 63, v0\nv_lshrrev_b32 v2, 6, v0")
        a("s_and_b32 s17, s2, 7\ns_lshr_b32 s18, s2, 3")
        a("v_readfirstlane_b32 s16, v2")
        a("s_and_b32 s46, s17, 3\ns_lshr_b32 s47, s17, 2\ns_lshr_b32 s48, s18, 2\ns_and_b32 s20, s18, 3")
        a("s_lshl_b32 s19, s47, 3\ns_add_u32 s19, s19, s48")
        self.srd_fin()
        a("s_cmp_eq_u32 s16, 8\ns_cbranch_scc1 L_aux")
        self.phase_a()
        a("L_end:\ns_endpgm")
        self.aux()
        a.raw(".section .rodata,\"a\"\n.p2align 6")
        a.raw(f".amdhsa_kernel {KNAME}")
        a.raw("  .amdhsa_next_free_vgpr 168\n  .amdhsa_next_free_sgpr 100\n  .amdhsa_accum_offset 168")
        a.raw("  .amdhsa_group_segment_fixed_size 0\n  .amdhsa_kernarg_size 88\n  .amdhsa_user_sgpr_count 2")
        a.raw("  .amdhsa_user_sgpr_kernarg_segment_ptr 1\n  .amdhsa_system_sgpr_workgroup_id_x 1")
        a.raw("  .amdhsa_float_denorm_mode_32 3\n  .amdhsa_float_denorm_mode_16_64 3")
        a.raw(".end_amdhsa_kernel")
        return a.finalize()

    NST = 20
    def dma_x(self, m, half):
        self.a(f"s_add_u32 m0, s26, {(m & 3) * 16384 + 1024 * half}\ns_movk_i32 s30, {m*128}")
        self.a(f"buffer_load_dwordx4 v{10 if half == 0 else 9}, s[4:7], s30 offen lds")
        self.vm_seq.append(("X", m))
    def dma_w(self, t):
        self.a(f"s_add_u32 m0, s27, {(t & 7) * 8192}\ns_mov_b32 s30, {t*122880}\ns_mov_b64 exec, s[24:25]")
        self.a("buffer_load_dwordx4 v11, s[8:11], s30 offen lds\ns_mov_b64 exec, -1")
        self.vm_seq.append(("W", t))
    def vm_need(self, needs):
        if not any(op in needs for op in self.vm_seq): return 0
        last = max(i for i, op in enumerate(self.vm_seq) if op in needs)
        return len(self.vm_seq) - 1 - last
    def a_reads(self, n):
        if "noreads" in self.opts: return
        a = self.a
        t, s = n >> 1, n & 1
        m, s4 = n >> 2, n & 3
        xo = (m & 3) * 16384
        wo = (t & 7) * 8192 + 4096 * s
        fs = 32 + 12 * (n % 3)
        a(f"ds_read_b128 v[{fs}:{fs+3}], v{12+s4} offset:{xo}")
        a(f"ds_read_b128 v[{fs+4}:{fs+7}], v{12+s4} offset:{xo+4096}")
        a(f"ds_read_b64_tr_b16 v[{fs+8}:{fs+9}], v16 offset:{wo}")
        a(f"ds_read_b64_tr_b16 v[{fs+10}:{fs+11}], v16 offset:{wo+1024}")
    def col_oct(self, gam, dst, t):
        a = self.a
        a(f"s_mul_i32 {t}, {gam}, 13\ns_lshr_b32 {t}, {t}, 6\ns_mul_i32 {t}, {t}, 60")
        a(f"s_lshl_b32 {dst}, {gam}, 2\ns_add_u32 {dst}, {dst}, {t}\ns_mul_i32 {t}, s46, 20\ns_add_u32 {dst}, {dst}, {t}")

    def side_tasks(self):
        g = []
        xs = [104, 105, 106, 107, 108]; ws_ = [110, 111, 112, 113, 114]
        g.append("v_lshlrev_b32 v124, 16, v104\nv_readfirstlane_b32 s51, v124")
        g.append("v_mov_b32 v138, s51\nv_mov_b32 v139, s51")
        for i in range(5):
            g += [f"v_lshlrev_b32 v132, 16, v{xs[i]}", f"v_and_b32 v133, s28, v{xs[i]}",
                  f"v_lshlrev_b32 v134, 16, v{ws_[i]}", f"v_and_b32 v135, s28, v{ws_[i]}",
                  "v_pk_add_f32 v[136:137], v[132:133], v[138:139] neg_lo:[0,1] neg_hi:[0,1]"]
            if i == 0:
                g += ["v_pk_mul_f32 v[128:129], v[132:133], v[134:135]", "v_mov_b32 v124, v136\nv_mov_b32 v125, v137",
                      "v_pk_mul_f32 v[126:127], v[136:137], v[136:137]", "v_mov_b32 v130, v134\nv_mov_b32 v131, v135"]
            else:
                g += ["v_pk_fma_f32 v[128:129], v[132:133], v[134:135], v[128:129]", "v_pk_add_f32 v[124:125], v[124:125], v[136:137]",
                      "v_pk_fma_f32 v[126:127], v[136:137], v[136:137], v[126:127]", "v_pk_add_f32 v[130:131], v[130:131], v[134:135]"]
        g += ["v_add_f32 v124, v124, v125", "v_add_f32 v126, v126, v127", "v_add_f32 v128, v128, v129", "v_add_f32 v130, v130, v131"]
        g += self.sum_wave_lines(["v124", "v126", "v128", "v130"], ["v125", "v127", "v129", "v131"])
        g += ["v_mul_f32 v124, s44, v124", "v_mul_f32 v132, v124, v124", "v_fma_f32 v126, v126, s44, -v132", "v_max_f32 v126, 0, v126",
              "v_add_f32 v124, s51, v124"]
        g += self.bf16r("v124", "v124") + self.bf16r("v126", "v126") + ["v_add_f32 v126, s45, v126"] + self.bf16r("v126", "v126")
        g += ["v_sqrt_f32 v126, v126"] + self.bf16r("v126", "v126") + ["v_rcp_f32 v132, v126"]
        g += ["v_fma_f32 v128, -v124, v130, v128", "v_mul_f32 v128, v128, v132", "v_mov_b32 v133, s49"]
        g += self.key_lines("v128", "v133", "v142", "v134", "v135")
        g += ["v_lshrrev_b32 v140, 16, v124", "v_or_b32 v140, v140, v126"]
        g.append("v_mov_b32 v141, v142")
        g.append(f"s_lshl_b32 s29, s16, 3\ns_add_u32 s29, s29, {L_OWN}\nv_mov_b32 v132, s29\ns_mov_b64 exec, 1\nds_write_b64 v132, v[140:141]\ns_mov_b64 exec, -1")
        g.append(("mark", "stats"))
        for d in range(4):
            g += [f"v_lshlrev_b32 v{124+2*d}, 16, v{116+d}", f"v_and_b32 v{125+2*d}, s28, v{116+d}"]
            for src in (120, 144):
                g += [f"v_lshlrev_b32 v132, 16, v{src+d}", f"v_and_b32 v133, s28, v{src+d}",
                      f"v_pk_add_f32 v[{124+2*d}:{125+2*d}], v[{124+2*d}:{125+2*d}], v[132:133]"]
        for p in range(4): g.append(f"v_permlane32_swap_b32 v{124+2*p}, v{125+2*p}")
        for p in range(4): g.append(f"v_add_f32 v{124+2*p}, v{124+2*p}, v{125+2*p}")
        g += ["v_permlane16_swap_b32 v124, v126", "v_permlane16_swap_b32 v128, v130", "v_add_f32 v124, v124, v126", "v_add_f32 v128, v128, v130"]
        g += ["v_and_b32 v132, 15, v1", "v_lshlrev_b32 v132, 3, v132", "v_bfe_u32 v133, v1, 4, 1", "v_lshl_add_u32 v132, v133, 1, v132",
              "v_lshrrev_b32 v133, 5, v1", "v_add_u32 v132, v132, v133",
              f"s_lshl_b32 s29, s16, 9\ns_add_u32 s29, s29, {L_CSW}\nv_lshl_add_u32 v132, v132, 2, s29",
              "ds_write_b32 v132, v124\nds_write_b32 v132, v128 offset:16"]
        return g

    def phase_a(self):
        a = self.a
        a("s_and_b32 s21, s16, 3\ns_lshr_b32 s22, s16, 2")
        a("s_lshl_b32 s23, s46, 2\ns_add_u32 s23, s23, s20\ns_lshl_b32 s23, s23, 3\ns_add_u32 s23, s23, s16")
        a("s_lshl_b32 s29, s19, 7\ns_add_u32 s49, s23, s29")
        a("s_mul_i32 s50, s49, 1280")
        a("v_lshlrev_b32 v4, 4, v1\nv_lshlrev_b32 v5, 2, v1")
        a("v_lshrrev_b32 v2, 3, v1\nv_lshrrev_b32 v3, 4, v1\nv_and_b32 v8, 7, v1\nv_xor_b32 v8, v8, v3")
        a("s_lshl_b32 s23, s19, 7\ns_lshl_b32 s29, s16, 4\ns_add_u32 s23, s23, s29")
        a("v_add_u32 v19, s23, v2\nv_mul_u32_u24 v19, 1280, v19\nv_lshl_add_u32 v10, v8, 4, v19")
        a("v_xor_b32 v8, 4, v8\nv_lshl_add_u32 v9, v8, 4, v19\nv_add_u32 v9, 10240, v9")
        a("v_and_b32 v8, 15, v1\nv_lshlrev_b32 v17, 2, v3\nv_xor_b32 v17, v8, v17")
        a("s_lshl_b32 s29, s20, 2\ns_mul_i32 s31, s46, 20")
        for (u, dst) in (("v17", "v18"), ("v8", "v20")):
            a(f"v_lshrrev_b32 v19, 2, {u}\nv_add_u32 v19, s29, v19")
            if dst == "v18": a("v_cmp_ne_u32 s[24:25], 15, v19")
            else: a("v_cmp_eq_u32 vcc, 15, v19")
            a(f"v_mul_u32_u24 {dst}, 13, v19\nv_lshrrev_b32 {dst}, 6, {dst}\nv_mul_u32_u24 {dst}, 60, {dst}")
            a(f"v_lshl_add_u32 {dst}, v19, 2, {dst}\nv_and_b32 v19, 3, {u}\nv_add3_u32 {dst}, {dst}, v19, s31\nv_lshlrev_b32 {dst}, 4, {dst}")
        a("v_mov_b32 v8, 0x7f000000\nv_cndmask_b32 v20, v20, v8, vcc")
        a("s_lshl_b32 s29, s16, 2\nv_add_u32 v19, s29, v3\nv_mul_u32_u24 v19, 3840, v19\nv_add_u32 v11, v18, v19")
        a("s_mul_i32 s29, s48, 80\ns_mul_i32 s31, s16, 10\ns_add_u32 s29, s29, s31")
        a("v_add_u32 v6, s29, v3\nv_mul_u32_u24 v6, 3840, v6\nv_add_u32 v6, v6, v20")
        a("v_cmp_gt_u32 vcc, 2, v3\nv_add_u32 v7, 30720, v6\nv_cndmask_b32 v7, v8, v7, vcc")
        a("s_lshl_b32 s26, s16, 11\ns_lshl_b32 s27, s16, 10\ns_add_u32 s27, s27, 65536")
        a("s_waitcnt lgkmcnt(0)")
        self.stamp(0)
        self.vm_seq = []
        self.dma_x(0, 0); self.dma_x(0, 1); self.dma_w(0); self.dma_w(1)
        a("buffer_load_dwordx4 v[104:107], v4, s[4:7], s50 offen")
        a("buffer_load_dword v108, v5, s[4:7], s50 offen offset:1024")
        a("buffer_load_dwordx4 v[110:113], v4, s[36:39], 0 offen")
        a("buffer_load_dword v114, v5, s[36:39], 0 offen offset:1024")
        a("buffer_load_dwordx4 v[116:119], v6, s[8:11], 0 offen")
        a("s_movk_i32 s30, 15360\nbuffer_load_dwordx4 v[120:123], v6, s[8:11], s30 offen")
        a("buffer_load_dwordx4 v[144:147], v7, s[8:11], 0 offen")
        self.vm_seq += [("S", 0)] * 7
        a("s_barrier")
        for m in range(1, self.PRE):
            self.dma_x(m, 0); self.dma_x(m, 1); self.dma_w(2 * m); self.dma_w(2 * m + 1)
        self.stamp(4)
        a("v_and_b32 v2, 31, v1\nv_lshrrev_b32 v3, 5, v1")
        a("s_lshl_b32 s29, s22, 6\nv_add_u32 v4, s29, v2\nv_lshlrev_b32 v4, 7, v4")
        a("v_bfe_u32 v5, v1, 1, 3\nv_xor_b32 v8, v3, v5")
        for s4 in range(4):
            a(f"v_xor_b32 v7, {2*s4}, v8\nv_lshl_add_u32 v{12+s4}, v7, 4, v4")
        a("v_bfe_u32 v5, v1, 2, 2")
        a("v_xor_b32 v7, s21, v5\nv_lshlrev_b32 v7, 6, v7")
        a("v_lshl_add_u32 v8, v3, 3, v5\nv_lshlrev_b32 v8, 8, v8\nv_add_u32 v7, v7, v8")
        a("v_bfe_u32 v8, v1, 4, 1\nv_lshlrev_b32 v8, 5, v8\nv_and_b32 v5, 3, v1\nv_lshlrev_b32 v5, 3, v5")
        a("v_add3_u32 v7, v7, v8, v5\nv_add_u32 v16, 0x10000, v7")
        a(f"s_mov_b32 s28, 0xffff0000\ns_mov_b32 s44, {f32hex(1.0/640.0)}\ns_mov_b32 s45, {f32hex(1e-5)}")
        a(f"s_waitcnt vmcnt({self.vm_need([('X',0),('W',0)])})\ns_barrier")
        self.stamp(1)
        self.a_reads(0); self.a_reads(1)
        side = self.side_tasks()
        if "noside" in self.opts: side = [("mark", 0), "s_nop 0"]
        if "nodsadd" in self.opts: side = [x for x in side if not (isinstance(x, str) and x.startswith("ds_add"))]
        if "nodpp" in self.opts: side = [x for x in side if not (isinstance(x, str) and ("dpp" in x or "permlane" in x))]
        first_side = True
        N = 2 * self.NST
        P = self.PRE
        for n in range(N):
            m, i4 = n >> 2, n & 3
            fs = 32 + 12 * (n % 3)
            if i4 == 2 and m + 1 < 10:
                vm = self.vm_need([("W", 2 * m + 3), ("X", m + 1)])
                a(f"s_waitcnt vmcnt({vm})\ns_barrier")
            def dma_block(which, mm):
                if mm >= 10 or "nodma" in self.opts: return
                L = a.label("dma")
                a(f"s_cmp_lg_u32 s22, {which}\ns_cbranch_scc1 {L}")
                save = list(self.vm_seq)
                self.dma_x(mm, 0); self.dma_x(mm, 1); self.dma_w(2 * mm); self.dma_w(2 * mm + 1)
                if which == 0: self.vm_seq = save
                a(f"{L}:")
            if n + 2 < N:
                self.a_reads(n + 2)
            if i4 == 2: dma_block(0, m + P)
            if n + 2 < N:
                a("s_waitcnt lgkmcnt(8)")
            elif n + 1 < N:
                a("s_waitcnt lgkmcnt(4)")
            else:
                a("s_waitcnt lgkmcnt(0)")
            c0 = "0" if n == 0 else "v[72:87]"
            c1 = "0" if n == 0 else "v[88:103]"
            nomf = "nomfma" in self.opts and n > 0
            if not nomf: a(f"v_mfma_f32_32x32x16_bf16 v[72:87], v[{fs+8}:{fs+11}], v[{fs}:{fs+3}], {c0}")
            if not nomf: a(f"v_mfma_f32_32x32x16_bf16 v[88:103], v[{fs+8}:{fs+11}], v[{fs+4}:{fs+7}], {c1}")
            if i4 == 0 and m >= 1: dma_block(1, m - 1 + P)
            if side and n >= 1:
                if first_side:
                    a(f"s_waitcnt vmcnt({self.vm_need([('S',0)])})"); first_side = False
                q = self.quota
                while side and q > 0:
                    it = side.pop(0)
                    if isinstance(it, tuple): self.stats_done_n = n
                    else: a(it); q -= it.count("\n") + 1
                if not side: self.side_done_n = n
        assert not side
        self.stamp(2)
        a("s_barrier")
        a(f"s_lshl_b32 s29, s22, 9\ns_add_u32 s29, s29, {L_STAT}")
        a("v_lshl_add_u32 v4, v2, 3, s29")
        a("ds_read_b64 v[44:45], v4\nds_read_b64 v[48:49], v4 offset:256")
        a(f"s_lshl_b32 s29, s21, 7\ns_add_u32 s29, s29, {L_CS}")
        a("v_lshl_add_u32 v4, v3, 4, s29")
        for k in range(4): a(f"ds_read_b128 v[{108+4*k}:{111+4*k}], v4 offset:{32*k}")
        a(f"v_mov_b32 v5, {L_FLG}\nds_read_b32 v6, v5")
        a("s_lshl_b32 s29, s20, 2\ns_add_u32 s29, s29, s21")
        self.col_oct("s29", "s31", "s32")
        a(f"s_lshl_b32 s31, s31, 15\ns_add_u32 s31, s31, {WS_QKV}")
        a(f"s_cmp_lt_u32 s29, 5\ns_cselect_b32 s40, {f32hex(QSCALE)}, 1.0")
        a("s_lshl_b32 s33, s19, 7\ns_lshl_b32 s34, s22, 6\ns_add_u32 s33, s33, s34")
        a("v_add_u32 v4, s33, v2\nv_lshlrev_b32 v4, 4, v4\nv_lshl_add_u32 v4, v3, 3, v4")
        a("s_waitcnt lgkmcnt(0)")
        a("v_readfirstlane_b32 s41, v6")
        a("v_mul_f32 v45, s40, v45\nv_mul_f32 v49, s40, v49")
        a("s_cmp_eq_u32 s29, 15\ns_cbranch_scc1 L_a_e2")
        for k in range(4):
            for st in range(2):
                acc = 72 + 16 * st + 4 * k; o = 44 + 4 * st
                for b in range(4):
                    a(f"v_fma_f32 v{acc+b}, -v{o}, v{108+4*k+b}, v{acc+b}")
                for b in range(4):
                    a(f"v_mul_f32 v{acc+b}, v{acc+b}, v{o+1}")
                d = 124 + 4 * k + 2 * st
                a(f"v_cvt_pk_bf16_f32 v{d}, v{acc}, v{acc+1}\nv_cvt_pk_bf16_f32 v{d+1}, v{acc+2}, v{acc+3}")
        a("s_cmp_eq_u32 s41, 1\ns_cbranch_scc1 L_a_fast")
        for fast in (0, 1):
            if fast: a("L_a_fast:")
            for k in range(4):
                a(f"s_add_u32 s32, s31, {k*32768}")
                for st in range(2):
                    d = 124 + 4 * k + 2 * st
                    a(f"buffer_store_dwordx2 v[{d}:{d+1}], v4, s[12:15], s32 offen offset:{512*st}" + ("" if fast else " sc1"))
            if not fast: a("s_branch L_a_e2")
        a("L_a_e2:")
        a("s_waitcnt vmcnt(0)\ns_barrier")
        self.stamp(3)
        if self.stop_after == "a":
            a("s_barrier")
            self.fin_stamps(5, wave=self.swave)
            return
        self.phase_b()
        if self.stop_after == "b":
            self.fin_stamps(8, wave=self.swave)
            return
        self.phase_c()
        self.fin_stamps(10, wave=self.swave)

    def lg_reset(self): self.lg_seq = []
    def lg_issue(self, tag, n): self.lg_seq += [tag] * n
    def lg_wait(self, tag):
        last = max(i for i, t in enumerate(self.lg_seq) if t == tag)
        self.a(f"s_waitcnt lgkmcnt({min(15, len(self.lg_seq) - 1 - last)})")

    def wo_setup(self):
        a = self.a
        a("s_and_b32 s67, s18, 7\ns_lshr_b32 s68, s18, 3\ns_mul_i32 s69, s67, 160")
        a("v_bfe_u32 v19, v1, 4, 1\ns_and_b32 s29, s16, 1\ns_lshl_b32 s29, s29, 1\nv_or_b32 v19, s29, v19\nv_lshlrev_b32 v19, 1, v19")
        a("v_and_b32 v152, 7, v1\nv_xor_b32 v152, v152, v19\nv_lshlrev_b32 v152, 4, v152")
        a("v_lshrrev_b32 v19, 3, v1\nv_mul_u32_u24 v19, 1280, v19\nv_add3_u32 v152, v152, v19, s69")
        a("v_lshrrev_b32 v19, 1, v1\nv_bfe_u32 v153, v19, 3, 1\nv_lshlrev_b32 v153, 2, v153\nv_xor_b32 v19, v19, v153\nv_mul_u32_u24 v19, 1280, v19")
        a("v_and_b32 v153, 1, v1\nv_lshlrev_b32 v153, 4, v153\nv_add3_u32 v153, v153, v19, s69\nv_add_u32 v153, 128, v153")
    def wo_dma_a(self, q):
        a = self.a
        dst = (LA1 + q * 8192) if q < 7 else (LA2 + (q - 7) * 8192)
        a(f"s_lshl_b32 s29, s16, 10\ns_add_u32 m0, s29, {dst}\ns_mul_i32 s30, s16, 10240\ns_add_u32 s30, s30, {q*81920}")
        a("buffer_load_dwordx4 v152, s[52:55], s30 offen lds")
    def wo_prefetch_list(self):
        a = self.a
        out = []
        for q in range(7): out.append(lambda q=q: self.wo_dma_a(q))
        def b(q):
            L = a.label("wb")
            if q == 2: a(f"s_cmp_ge_u32 s16, 4\ns_cbranch_scc1 {L}")
            a(f"s_lshl_b32 s29, s16, 10\ns_add_u32 m0, s29, {LBB + q*8192}\ns_mul_i32 s30, s16, 40960\ns_add_u32 s30, s30, {q*327680}")
            a("buffer_load_dwordx4 v153, s[52:55], s30 offen lds")
            if q == 2: a(f"{L}:")
        for q in range(3): out.append(lambda q=q: b(q))
        return out

    def phase_b(self):
        a = self.a
        a("; ---- phase B ----")
        a("s_and_b32 s62, s18, 7\ns_lshl_b32 s29, s46, 3\ns_add_u32 s62, s62, s29")
        a("s_lshr_b32 s63, s18, 3\ns_lshl_b32 s29, s47, 2\ns_add_u32 s63, s63, s29")
        a("s_and_b32 s64, s62, 1\ns_mul_i32 s65, s62, 5\ns_lshr_b32 s65, s65, 1")
        self.post_srd = []
        self.srd(52, 16, 819200)
        a("v_and_b32 v2, 31, v1\nv_lshrrev_b32 v3, 5, v1\nv_lshlrev_b32 v4, 4, v1")
        a(f"v_lshlrev_b32 v5, 2, v3\nv_sub_u32 v5, v2, v5\nv_mov_b32 v6, {NEGF}\nv_mov_b32 v7, 0")
        for r in range(16):
            cr = 8 * (r >> 2) + (r & 3)
            a(f"v_cmp_le_i32 vcc, {cr}, v5")
            a(f"v_cndmask_b32 v{108+r}, v6, v7, vcc\nv_cndmask_b32 v{124+r}, v7, v6, vcc")
        a("s_lshl_b32 s29, s16, 9")
        a(f"v_add_u32 v5, s64, v3\nv_mul_u32_u24 v5, {PLS}, v5\nv_lshl_add_u32 v16, v2, 4, v5\nv_add_u32 v16, s29, v16")
        a(f"s_sub_u32 s30, 1, s64\ns_mul_i32 s30, s30, {2*PLS}\ns_add_u32 s30, s30, s29\nv_lshl_add_u32 v17, v2, 4, s30")
        a("v_bfe_u32 v5, v1, 4, 1\nv_and_b32 v6, 3, v1\nv_lshl_add_u32 v5, v5, 2, v6")
        a("v_add_u32 v6, s64, v5")
        a("s_mul_i32 s30, s64, 6\nv_subrev_u32 v7, s30, v6\nv_cmp_eq_u32 vcc, 5, v5\nv_cndmask_b32 v6, v6, v7, vcc")
        a(f"v_lshrrev_b32 v7, 1, v6\nv_mul_u32_u24 v7, {PLS}, v7\nv_and_b32 v6, 1, v6\nv_lshl_add_u32 v7, v6, 3, v7")
        a("v_and_b32 v6, 1, v5\nv_lshlrev_b32 v6, 3, v6\nv_add_u32 v6, 192, v6")
        a("v_cmp_lt_u32 vcc, 5, v5\nv_cndmask_b32 v7, v7, v6, vcc")
        a("v_bfe_u32 v6, v1, 2, 2\nv_lshl_add_u32 v6, v3, 2, v6\nv_lshl_add_u32 v7, v6, 4, v7")
        a(f"s_add_u32 s30, s29, {LB_V}\nv_add_u32 v18, s30, v7")
        self.wo_setup()
        a("s_lshl_b32 s30, s63, 8\ns_lshl_b32 s31, s16, 6\ns_add_u32 s31, s31, s30\ns_sub_u32 s31, s31, 256\ns_lshl_b32 s31, s31, 4")
        a(f"s_lshl_b32 s32, s65, 15\ns_add_u32 s32, s32, {WS_QKV}")
        a("s_lshl_b32 s33, s16, 10")
        a("s_lshl_b32 s34, s63, 8\ns_lshl_b32 s35, s16, 5\ns_add_u32 s34, s34, s35")
        a("v_add_u32 v5, s34, v2\nv_lshlrev_b32 v5, 4, v5\nv_lshl_add_u32 v6, v3, 15, v5")
        a("s_waitcnt lgkmcnt(0)")
        self.srd_fin()
        a("s_barrier")
        self.stamp(5)
        a("s_lshl_b32 s35, s64, 15\ns_add_u32 s35, s35, s32")
        a("buffer_load_dwordx4 v[8:11], v6, s[12:15], s35 offen sc1")
        a("s_sub_u32 s35, 1, s64\ns_lshl_b32 s35, s35, 16\ns_add_u32 s35, s35, s32")
        a("buffer_load_dwordx4 v[12:15], v5, s[12:15], s35 offen sc1")
        a("s_cmp_lg_u32 s63, 0\ns_cselect_b32 s66, 1, 0\ns_cmp_ge_u32 s16, 4\ns_cselect_b32 s66, 1, s66")
        a("s_cmp_eq_u32 s66, 0\ns_cbranch_scc1 L_b_zero")
        for T, lb in ((80, LB_K), (160, LB_V)):
            for p in range(3):
                a(f"s_add_u32 s35, s32, {(T+p)*32768}\ns_add_u32 s35, s35, s31\ns_add_u32 m0, s33, {lb + p*PLS}\ns_nop 0")
                a("buffer_load_dwordx4 v4, s[12:15], s35 offen sc1 lds")
        a("s_branch L_b_st")
        a("L_b_zero:")
        a("v_mov_b32 v20, 0\nv_mov_b32 v21, 0\nv_mov_b32 v22, 0\nv_mov_b32 v23, 0\nv_add_u32 v7, s33, v4")
        for lb in (LB_K, LB_V):
            for p in range(3): a(f"ds_write_b128 v7, v[20:23] offset:{lb + p*PLS}")
        a("L_b_st:")
        nlater = 0
        wol = self.wo_prefetch_list()
        a(f"s_sub_u32 s35, 1, s64\ns_mul_i32 s35, s35, {2*PLS+8}\ns_add_u32 s35, s35, s33\nv_add_u32 v7, s35, v4")
        a(f"s_cmp_eq_u32 s66, 0\ns_cselect_b32 s35, 0xf149, 0")
        a(f"s_waitcnt vmcnt({nlater}) lgkmcnt(0)")
        a("v_mov_b32 v20, 0x3f803f80\nv_mov_b32 v21, s35\nv_mov_b32 v22, 0x3f803f80\nv_mov_b32 v23, 0x3f803f80")
        a(f"ds_write_b64 v7, v[20:21] offset:{LB_K}\nds_write_b64 v7, v[22:23] offset:{LB_V}")
        a("v_cmp_gt_u32 vcc, 32, v1\nv_mov_b32 v5, 0\nv_mov_b32 v6, 0x3f80")
        a("s_cmp_eq_u32 s64, 1\ns_cbranch_scc1 L_b_qodd")
        a("v_cndmask_b32 v12, v5, v12, vcc\nv_cndmask_b32 v13, v5, v13, vcc\nv_mov_b32 v14, 0\nv_cndmask_b32 v15, v5, v6, vcc")
        a("s_branch L_b_qd")
        a("L_b_qodd:")
        a("v_mov_b32 v12, 0\nv_cndmask_b32 v13, v5, v6, vcc\nv_cndmask_b32 v14, v5, v14, vcc\nv_cndmask_b32 v15, v5, v15, vcc")
        a("L_b_qd:")
        a(f"v_mov_b32 v5, {L_FLG}\nv_mov_b32 v6, 1\ns_waitcnt lgkmcnt(0)\ns_mov_b64 exec, 1\nds_add_u32 v5, v6 offset:8\ns_mov_b64 exec, -1")
        self.lds_spin("v5", "v6", "s35", "ge", 8, off=8)
        self.stamp(6)
        KS = lambda kt: 20 + 8 * (kt & 1)
        VS = lambda kt: 36 + 8 * (kt & 1)
        SB = lambda kt: 52 + 16 * (kt & 1)
        def rdK(ps, kt):
            a(f"ds_read_b128 v[{KS(kt)}:{KS(kt)+3}], v16 offset:{512*kt}\nds_read_b128 v[{KS(kt)+4}:{KS(kt)+7}], v17 offset:{512*kt}")
            self.lg_issue(("K", ps, kt), 2)
        def rdV(kt):
            b = VS(kt)
            for j2 in range(2):
                for jj in range(2):
                    a(f"ds_read_b64_tr_b16 v[{b+4*j2+2*jj}:{b+4*j2+2*jj+1}], v18 offset:{512*kt+256*j2+128*jj}")
            self.lg_issue(("V", kt), 4)
        def cop(kt): return "v[124:139]" if kt == 0 else ("v[108:123]" if kt == 8 else "0")
        def qk1(kt): a(f"v_mfma_f32_32x32x16_bf16 v[{SB(kt)}:{SB(kt)+15}], v[{KS(kt)}:{KS(kt)+3}], v[8:11], {cop(kt)}")
        def qk2(kt): a(f"v_mfma_f32_32x32x16_bf16 v[{SB(kt)}:{SB(kt)+15}], v[{KS(kt)+4}:{KS(kt)+7}], v[12:15], v[{SB(kt)}:{SB(kt)+15}]")
        def maxes(kt):
            b = SB(kt)
            for i in range(8):
                acc = 140 + (i & 1)
                if kt == 0 and i < 2: a(f"v_max_f32 v{acc}, v{b+2*i}, v{b+2*i+1}")
                else: a(f"v_max3_f32 v{acc}, v{b+2*i}, v{b+2*i+1}, v{acc}")
        def ex(kt, r0, r1):
            for r in range(r0, r1): a(f"v_exp_f32 v{SB(kt)+r}, v{SB(kt)+r}")
        def cv(kt, i0, i1):
            for i in range(i0, i1): a(f"v_cvt_pk_bf16_f32 v{84+i}, v{SB(kt)+2*i}, v{SB(kt)+2*i+1}")
        self.lg_reset()
        rdK(1, 0); rdK(1, 1)
        for kt in range(9):
            self.lg_wait(("K", 1, kt))
            qk1(kt); qk2(kt)
            if kt + 2 <= 8: rdK(1, kt + 2)
            if kt == 7: rdK(2, 1)
            if kt == 8: rdK(2, 0); rdV(0); rdV(1)
            if kt >= 1: maxes(kt - 1)
            wol.pop(0)()
        maxes(8)
        wol.pop(0)()
        a("v_max_f32 v140, v140, v141\nv_mov_b32 v141, v140\nv_permlane32_swap_b32 v140, v141\nv_max_f32 v140, v140, v141")
        a("v_sub_f32 v140, 0, v140")
        a("v_cvt_pk_bf16_f32 v141, v140, v140\nv_lshlrev_b32 v141, 16, v141\nv_sub_f32 v141, v140, v141")
        a("v_cvt_pk_bf16_f32 v141, v140, v141")
        a("v_cmp_gt_u32 vcc, 32, v1\nv_mov_b32 v142, 0\nv_cndmask_b32 v141, v142, v141, vcc")
        a("s_cmp_eq_u32 s64, 1\ns_cbranch_scc1 L_b_mo\nv_mov_b32 v14, v141\ns_branch L_b_md\nL_b_mo:\nv_mov_b32 v12, v141\nL_b_md:")
        a("s_nop 1")
        self.lg_wait(("K", 2, 0))
        qk1(0); qk2(0)
        rdK(2, 2)
        for kt in range(9):
            if kt < 8:
                self.lg_wait(("K", 2, kt + 1)); qk1(kt + 1)
            ex(kt, 0, 4)
            if kt < 8:
                qk2(kt + 1)
                if kt + 3 <= 8: rdK(2, kt + 3)
            ex(kt, 4, 8); cv(kt, 0, 4); ex(kt, 8, 10)
            self.lg_wait(("V", kt))
            a(f"v_mfma_f32_32x32x16_bf16 v[92:107], v[{VS(kt)}:{VS(kt)+3}], v[84:87], {'0' if kt == 0 else 'v[92:107]'}")
            ex(kt, 10, 16); cv(kt, 4, 8)
            a(f"v_mfma_f32_32x32x16_bf16 v[92:107], v[{VS(kt)+4}:{VS(kt)+7}], v[88:91], v[92:107]")
            if kt + 2 <= 8: rdV(kt + 2)
        self.stamp(7)
        a("v_mov_b32 v140, v100\nv_mov_b32 v141, v100\nv_permlane32_swap_b32 v140, v141")
        a("v_rcp_f32 v141, v141")
        for r in range(12): a(f"v_mul_f32 v{92+r}, v{92+r}, v141")
        for i in range(6): a(f"v_cvt_pk_bf16_f32 v{84+i}, v{92+2*i}, v{92+2*i+1}")
        a("v_add_u32 v5, s34, v2\nv_mul_u32_u24 v5, 1280, v5\nv_lshl_add_u32 v5, v3, 3, v5")
        a(f"s_mul_i32 s35, s62, 40\ns_add_u32 s35, s35, {WS_O}")
        a("buffer_store_dwordx2 v[84:85], v5, s[12:15], s35 offen sc1")
        a("buffer_store_dwordx2 v[86:87], v5, s[12:15], s35 offen offset:16 sc1")
        a("s_mov_b64 exec, 0xffffffff\nbuffer_store_dwordx2 v[88:89], v5, s[12:15], s35 offen offset:32 sc1\ns_mov_b64 exec, -1")
        a("s_waitcnt vmcnt(0)")
        a(f"v_mov_b32 v5, {L_FLG}\nv_mov_b32 v6, 1\ns_mov_b64 exec, 1\nds_add_rtn_u32 v7, v5, v6 offset:12\ns_mov_b64 exec, -1\ns_waitcnt lgkmcnt(0)")
        a("v_readfirstlane_b32 s35, v7\ns_cmp_lg_u32 s35, 7\ns_cbranch_scc1 L_b_nf")
        a("ds_read_b32 v7, v5 offset:4\ns_waitcnt lgkmcnt(0)")
        a(f"s_lshl_b32 s35, s63, 5\ns_add_u32 s35, s35, s62\ns_lshl_b32 s35, s35, 6\ns_add_u32 s35, s35, {WS_F2}\nv_mov_b32 v6, s35")
        a("s_mov_b64 exec, 1\nbuffer_store_dword v7, v6, s[12:15], 0 offen sc1\ns_mov_b64 exec, -1")
        a("L_b_nf:")
        self.stamp(8)

    def phase_c(self):
        a = self.a
        a("; ---- phase C ----")
        self.post_srd = []
        self.srd(56, 64, 2621440)
        a("s_and_b32 s21, s16, 3\ns_lshr_b32 s22, s16, 2")
        a("s_lshl_b32 s29, s17, 8\ns_lshl_b32 s30, s68, 6\ns_add_u32 s29, s29, s30\ns_lshl_b32 s30, s21, 4\ns_add_u32 s29, s29, s30")
        a("v_and_b32 v2, 15, v1\nv_lshrrev_b32 v3, 4, v1\nv_add_u32 v8, s29, v2")
        a("v_mul_u32_u24 v9, 1280, v8")
        a("s_mul_i32 s30, s22, 96\ns_add_u32 s30, s30, s69\nv_lshl_add_u32 v10, v3, 3, v9\nv_add_u32 v10, s30, v10")
        a(f"v_mov_b32 v5, {L_FLG}")
        self.lds_spin("v5", "v6", "s35", "ge", 8, off=12)
        for q in range(7, 10): self.wo_dma_a(q)
        for i in range(3):
            a(f"buffer_load_dwordx2 v[{12+2*i}:{13+2*i}], v10, s[4:7], 0 offen offset:{32*i}")
        a("v_lshlrev_b32 v11, 4, v8")
        a("L_c_st:")
        a(f"buffer_load_dwordx2 v[18:19], v11, s[12:15], 0 offen sc1")
        a("ds_read_b32 v6, v5 offset:4")
        a(f"s_mul_i32 s30, s22, 640\ns_add_u32 s30, s30, {WS_O}\nv_lshl_add_u32 v20, v3, 4, v9")
        a("v_bfe_u32 v21, v1, 2, 2")
        a("v_lshrrev_b32 v22, 1, v21\nv_and_b32 v23, 1, v3\nv_lshl_or_b32 v22, v23, 1, v22")
        a("v_lshl_add_u32 v23, v3, 3, v21")
        a("v_and_b32 v24, 3, v1\nv_lshlrev_b32 v24, 3, v24")
        a("v_lshlrev_b32 v25, 7, v23\nv_lshl_add_u32 v25, v22, 5, v25\nv_add_u32 v25, v25, v24")
        a(f"s_mul_i32 s31, s22, {320*128}\ns_add_u32 s31, s31, {LA1}")
        a(f"s_cmp_eq_u32 s22, 0\ns_cselect_b32 s32, {LA1 + 128*128}, {LA2}")
        for nt in range(4):
            a(f"v_xor_b32 v26, {nt << 5}, v25\nv_add_u32 v{28+nt}, s31, v26\nv_add_u32 v{32+nt}, s32, v26")
        a("v_and_b32 v26, 1, v3\nv_lshlrev_b32 v26, 2, v26")
        a(f"s_mul_i32 s31, s22, {320*32}\ns_add_u32 s31, s31, {LBB}")
        for jj in range(2):
            a(f"v_xor_b32 v27, {4*jj}, v26\nv_add_u32 v27, v27, v23\nv_lshl_add_u32 v27, v27, 5, v24\nv_add_u32 v{36+jj}, s31, v27")
        a("s_waitcnt vmcnt(0) lgkmcnt(0)")
        a("v_cmp_ne_u32 vcc, v6, v19\ns_cbranch_vccnz L_c_st")
        self.srd_fin()
        a("v_lshlrev_b32 v22, 16, v18\nv_and_b32 v23, 0xffff0000, v18\nv_rcp_f32 v23, v23")
        for i in range(3):
            for d in range(2):
                a(f"v_lshlrev_b32 v{40+4*i+2*d}, 16, v{12+2*i+d}\nv_and_b32 v{41+4*i+2*d}, 0xffff0000, v{12+2*i+d}")
            for d in range(2):
                e = 40 + 4 * i + 2 * d; o = 52 + 4 * i + 2 * d
                a(f"v_sub_f32 v{o}, v{e}, v22\nv_sub_f32 v{o+1}, v{e+1}, v22")
                a(f"v_cvt_pk_bf16_f32 v26, v{o}, v{o+1}\nv_lshlrev_b32 v{o}, 16, v26\nv_and_b32 v{o+1}, 0xffff0000, v26")
                a(f"v_mul_f32 v{o}, v{o}, v23\nv_mul_f32 v{o+1}, v{o+1}, v23")
                a(f"v_cvt_pk_bf16_f32 v26, v{o}, v{o+1}\nv_lshlrev_b32 v{o}, 16, v26\nv_and_b32 v{o+1}, 0xffff0000, v26")
        a("v_mov_b32 v6, 1\ns_mov_b64 exec, 1\nds_add_u32 v5, v6 offset:32\ns_mov_b64 exec, -1")
        a("s_cmp_lg_u32 s16, 0\ns_cbranch_scc1 L_c_np")
        a(f"s_lshl_b32 s29, s17, 11\ns_add_u32 s29, s29, {WS_F2}\nv_and_b32 v26, 31, v1\nv_lshlrev_b32 v26, 6, v26\nds_read_b32 v6, v5 offset:4\ns_waitcnt lgkmcnt(0)")
        a("L_c_poll:\nbuffer_load_dword v27, v26, s[12:15], s29 offen sc1\ns_waitcnt vmcnt(0)")
        a("v_cmp_ne_u32 vcc, v6, v27\ns_cbranch_vccnz L_c_poll")
        a("v_mov_b32 v6, 1\ns_mov_b64 exec, 1\nds_write_b32 v5, v6 offset:16\ns_mov_b64 exec, -1")
        a("L_c_np:")
        self.lds_spin("v5", "v6", "s35", "ge", 1, off=16)
        self.stamp(9)
        for sl in range(10):
            a(f"buffer_load_dwordx4 v[{64+4*sl}:{67+4*sl}], v20, s[12:15], s30 offen offset:{64*sl} sc1")
        self.lds_spin("v5", "v6", "s35", "ge", 8, off=32)
        self.lg_reset()
        def rdW(sl):
            b = 104 + 20 * (sl & 1)
            for nt in range(4):
                ar = (28 if sl < 4 else 32) + nt
                off = (sl if sl < 4 else sl - 4) * 4096
                a(f"ds_read_b64_tr_b16 v[{b+4*nt}:{b+4*nt+1}], v{ar} offset:{off}\nds_read_b64_tr_b16 v[{b+4*nt+2}:{b+4*nt+3}], v{ar} offset:{off+512}")
            a(f"ds_read_b64_tr_b16 v[{b+16}:{b+17}], v36 offset:{1024*sl}\nds_read_b64_tr_b16 v[{b+18}:{b+19}], v37 offset:{1024*sl}")
            self.lg_issue(("W", sl), 10)
        rdW(0)
        for sl in range(10):
            if sl + 1 < 10: rdW(sl + 1)
            self.lg_wait(("W", sl))
            a(f"s_waitcnt vmcnt({9 - sl})")
            b = 104 + 20 * (sl & 1)
            for nt in range(5):
                c = "0" if sl == 0 else f"v[{144+4*nt}:{147+4*nt}]"
                a(f"v_mfma_f32_16x16x32_bf16 v[{144+4*nt}:{147+4*nt}], v[{b+4*nt}:{b+4*nt+3}], v[{64+4*sl}:{67+4*sl}], {c}")
        a(f"s_mul_i32 s29, s16, 3072\ns_add_u32 s29, s29, {L_EX}\nv_lshlrev_b32 v26, 4, v1\nv_add_u32 v26, s29, v26")
        a("s_cmp_eq_u32 s22, 0\ns_cbranch_scc0 L_c_x1")
        a("ds_write_b128 v26, v[156:159]\nds_write_b128 v26, v[160:163] offset:1024")
        a("s_branch L_c_x2")
        a("L_c_x1:")
        a("ds_write_b128 v26, v[144:147]\nds_write_b128 v26, v[148:151] offset:1024\nds_write_b128 v26, v[152:155] offset:2048")
        for k in range(8): a(f"v_mov_b32 v{144+k}, v{156+k}")
        a("L_c_x2:")
        a(f"s_lshl_b32 s29, s16, 2\ns_add_u32 s29, s29, {L_FLG+64}\nv_mov_b32 v27, s29\nv_mov_b32 v6, 1\ns_waitcnt lgkmcnt(0)")
        a("s_mov_b64 exec, 1\nds_write_b32 v27, v6\ns_mov_b64 exec, -1")
        a(f"s_xor_b32 s31, s16, 4\ns_lshl_b32 s29, s31, 2\ns_add_u32 s29, s29, {L_FLG+64}\nv_mov_b32 v27, s29")
        self.lds_spin("v27", "v6", "s35", "ge", 1)
        a(f"s_mul_i32 s29, s31, 3072\ns_add_u32 s29, s29, {L_EX}\nv_lshlrev_b32 v26, 4, v1\nv_add_u32 v26, s29, v26")
        a("ds_read_b128 v[104:107], v26\nds_read_b128 v[108:111], v26 offset:1024\nds_read_b128 v[112:115], v26 offset:2048")
        a("s_waitcnt lgkmcnt(0)")
        for k in range(12): a(f"v_add_f32 v{144+k}, v{144+k}, v{104+k}")
        self.moe_hook()
        for i in range(3):
            if i == 2: a("s_cmp_eq_u32 s22, 1\ns_cbranch_scc1 L_c_done")
            for d in range(2):
                ac = 144 + 4 * i + 2 * d; e = 40 + 4 * i + 2 * d; o = 52 + 4 * i + 2 * d
                a(f"v_cvt_pk_bf16_f32 v26, v{ac}, v{ac+1}\nv_lshlrev_b32 v{ac}, 16, v26\nv_and_b32 v{ac+1}, 0xffff0000, v26")
                a(f"v_add_f32 v{ac}, v{ac}, v{e}\nv_add_f32 v{ac+1}, v{ac+1}, v{e+1}")
                a(f"v_cvt_pk_bf16_f32 v26, v{ac}, v{ac+1}\nv_lshlrev_b32 v{ac}, 16, v26\nv_and_b32 v{ac+1}, 0xffff0000, v26")
                a(f"v_add_f32 v{ac}, v{ac}, v{o}\nv_add_f32 v{ac+1}, v{ac+1}, v{o+1}")
                a(f"v_cvt_pk_bf16_f32 v{104+2*i+d}, v{ac}, v{ac+1}")
            a(f"buffer_store_dwordx2 v[{104+2*i}:{105+2*i}], v10, s[56:59], 0 offen offset:{32*i}")
        a("L_c_done:")

    def moe_hook(self):
        a = self.a
        self.lds_spin("v5", "v6", "s35", "ge", 1, off=20)
        a("ds_read_b64 v[26:27], v5 offset:24\nds_read_b32 v6, v5 offset:4\ns_waitcnt lgkmcnt(0)")
        a("v_cmp_eq_u32 s[30:31], v26, v8\nv_cmp_eq_u32 s[32:33], v27, v8\ns_or_b64 s[34:35], s[30:31], s[32:33]")
        a("s_cmp_eq_u64 s[34:35], 0\ns_cbranch_scc1 L_c_nomoe")
        a(f"s_lshl_b32 s29, s69, 2\ns_mul_i32 s36, s22, 384\ns_add_u32 s29, s29, s36\ns_add_u32 s29, s29, {WS_UPD}\nv_lshlrev_b32 v7, 5, v3")
        a("L_c_upd:")
        for i in range(3):
            a(f"buffer_load_dwordx4 v[{104+8*i}:{107+8*i}], v7, s[12:15], s29 offen offset:{128*i} sc1")
            a(f"buffer_load_dwordx4 v[{108+8*i}:{111+8*i}], v7, s[12:15], s29 offen offset:{128*i+16} sc1")
        a("s_waitcnt vmcnt(0)")
        a("v_cmp_ne_u32 vcc, v6, v105")
        regs = [105 + 2 * k for k in range(1, 8)]
        for r in regs: a(f"v_cmp_ne_u32 s[36:37], v6, v{r}\ns_or_b64 vcc, vcc, s[36:37]")
        L = a.label("u3")
        a(f"s_cmp_eq_u32 s22, 1\ns_cbranch_scc1 {L}")
        for r in [121, 123, 125, 127]: a(f"v_cmp_ne_u32 s[36:37], v6, v{r}\ns_or_b64 vcc, vcc, s[36:37]")
        a(f"{L}:")
        a("s_and_b64 vcc, vcc, s[34:35]\ns_cbranch_vccnz L_c_upd")
        for i in range(3):
            for e in range(4):
                g = 104 + 8 * i + 2 * e; o = 52 + 4 * i + e
                a(f"v_lshlrev_b32 v26, 16, v{g}\nv_and_b32 v27, 0xffff0000, v{g}\nv_cndmask_b32 v26, v27, v26, s[30:31]")
                a(f"v_add_f32 v26, v{o}, v26\nv_cvt_pk_bf16_f32 v26, v26, v26\nv_lshlrev_b32 v26, 16, v26\nv_cndmask_b32 v{o}, v{o}, v26, s[34:35]")
        a("L_c_nomoe:")

    def moe_aux(self):
        a = self.a
        L_XS = L_MISC; L_H = L_MISC
        self.post_srd = []
        self.srd(8, 40, 1966080)
        self.srd(36, 48, 1966080)
        self.srd(52, 56, 1966080)
        a("s_waitcnt lgkmcnt(0)")
        self.srd_fin()
        def wd_dma():
            a("s_mul_i32 s29, s17, 10\ns_add_u32 s29, s29, s18\ns_sub_u32 s29, s29, 22\ns_lshl_b32 s29, s29, 4")
            a("v_mul_u32_u24 v6, 1280, v1\nv_add_u32 v6, s29, v6")
            for i in range(24):
                a(f"s_mov_b32 m0, {L_AUX + 1024*i + (64 if i >= 12 else 0)}\ns_mov_b32 s30, {i*81920}\nbuffer_load_dwordx4 v6, s[52:55], s30 offen lds")
        a("s_cmp_lt_u32 s18, 24\ns_cbranch_scc1 L_m_nowd")
        wd_dma()
        a("L_m_nowd:")
        a(f"v_and_b32 v6, 15, v1\nv_lshlrev_b32 v6, 6, v6\nv_add_u32 v6, {WS_FR}, v6")
        a("L_m_fr:\nbuffer_load_dwordx4 v[8:11], v6, s[12:15], 0 offen sc1\ns_waitcnt vmcnt(0)")
        a("v_cmp_ne_u32 vcc, s61, v9\nv_cmp_ne_u32 s[62:63], s61, v11\ns_or_b64 vcc, vcc, s[62:63]\ns_cbranch_vccnz L_m_fr")
        for ctrl in ("quad_perm:[1,0,3,2]", "quad_perm:[2,3,0,1]", "row_half_mirror", "row_mirror"):
            a(f"v_mov_b32_dpp v12, v8 {ctrl} row_mask:0xf bank_mask:0xf\nv_mov_b32_dpp v13, v10 {ctrl} row_mask:0xf bank_mask:0xf")
            self.top2_merge("v8", "v10", "v12", "v13", "v14")
        a("v_readfirstlane_b32 s64, v8\nv_readfirstlane_b32 s65, v10")
        a("s_and_b32 s66, s64, 0x7ff\ns_sub_u32 s66, 2047, s66\ns_and_b32 s67, s65, 0x7ff\ns_sub_u32 s67, 2047, s67")
        a(f"v_mov_b32 v6, {L_FLG}\nv_mov_b32 v12, s66\nv_mov_b32 v13, s67\nv_mov_b32 v14, 1\nds_write_b64 v6, v[12:13] offset:24\ns_waitcnt lgkmcnt(0)\nds_write_b32 v6, v14 offset:20")
        for k, d in (("s64", "s68"), ("s65", "s69")):
            a(f"s_lshr_b32 s29, {k}, 16\ns_and_b32 s30, s29, 0x7fff\ns_xor_b32 s31, s29, 0xffff\ns_bitcmp1_b32 s29, 15\ns_cselect_b32 {d}, s30, s31\ns_lshl_b32 {d}, {d}, 16")
        self.stamp(5)
        a("s_cmp_ge_u32 s18, 24\ns_cbranch_scc1 L_m_y")
        a("v_cmp_gt_u32 vcc, 32, v1\nv_mov_b32 v6, s67\nv_mov_b32 v7, s66\nv_cndmask_b32 v6, v6, v7, vcc")
        a("v_and_b32 v7, 31, v1\nv_mul_u32_u24 v8, 1280, v6\nv_lshl_add_u32 v8, v7, 3, v8\nv_lshlrev_b32 v9, 4, v6")
        for i in range(5): a(f"buffer_load_dwordx2 v[{16+2*i}:{17+2*i}], v8, s[4:7], 0 offen offset:{256*i}")
        a("buffer_load_dword v15, v9, s[12:15], 0 offen sc1")
        a("s_mul_i32 s29, s17, 24\ns_add_u32 s29, s29, s18\ns_mov_b32 s57, s29\ns_lshl_b32 s29, s29, 4")
        a("v_mul_u32_u24 v10, 3072, v1\nv_add_u32 v10, s29, v10")
        for i in range(10):
            a(f"s_mov_b32 m0, {L_AUX + 1024*i}\ns_mov_b32 s30, {i*196608}\nbuffer_load_dwordx4 v10, s[8:11], s30 offen lds")
        for i in range(10):
            a(f"s_mov_b32 m0, {L_AUX + 10304 + 1024*i}\ns_mov_b32 s30, {i*196608}\nbuffer_load_dwordx4 v10, s[36:39], s30 offen lds")
        a("s_waitcnt vmcnt(20)")
        a("v_lshlrev_b32 v12, 16, v15\nv_and_b32 v13, 0xffff0000, v15\nv_rcp_f32 v13, v13")
        a(f"v_lshrrev_b32 v14, 5, v1\nv_mul_u32_u24 v14, 1280, v14\nv_lshl_add_u32 v14, v7, 3, v14\nv_add_u32 v14, {L_XS}, v14")
        for i in range(5):
            for d in range(2):
                r = 16 + 2 * i + d
                a(f"v_lshlrev_b32 v30, 16, v{r}\nv_and_b32 v31, 0xffff0000, v{r}\nv_sub_f32 v30, v30, v12\nv_sub_f32 v31, v31, v12")
                a("v_cvt_pk_bf16_f32 v32, v30, v31\nv_lshlrev_b32 v30, 16, v32\nv_and_b32 v31, 0xffff0000, v32")
                a(f"v_mul_f32 v30, v30, v13\nv_mul_f32 v31, v31, v13\nv_cvt_pk_bf16_f32 v{r}, v30, v31")
            a(f"ds_write_b64 v14, v[{16+2*i}:{17+2*i}] offset:{256*i}")
        a(f"v_and_b32 v30, 1, v1\nv_mul_u32_u24 v30, 1280, v30\nv_lshrrev_b32 v31, 4, v1\nv_lshl_add_u32 v30, v31, 4, v30\nv_add_u32 v30, {L_XS}, v30")
        a("v_bfe_u32 v32, v1, 2, 2\nv_lshl_add_u32 v32, v31, 3, v32\nv_lshlrev_b32 v32, 4, v32\nv_and_b32 v33, 1, v1\nv_lshl_add_u32 v32, v33, 3, v32")
        a(f"v_bfe_u32 v33, v1, 1, 1\nv_mul_u32_u24 v33, 10304, v33\nv_add3_u32 v32, v32, v33, {L_AUX}") if False else None
        a(f"v_bfe_u32 v33, v1, 1, 1\nv_mul_u32_u24 v33, 10304, v33\nv_add_u32 v32, v32, v33\nv_add_u32 v32, {L_AUX}, v32")
        a("s_waitcnt vmcnt(0) lgkmcnt(0)")
        self.small_gemm(20, 64, 64, 512)
        for c in range(2):
            d = 40 + c
            a(f"v_cvt_pk_bf16_f32 v{d}, v{d}, v{d}\nv_lshlrev_b32 v{d}, 16, v{d}")
            a(f"v_mov_b32_dpp v{44+c}, v{d} row_ror:8 row_mask:0xf bank_mask:0xf")
            a(f"v_mul_f32 v46, {f32hex(-1.4426950408889634)}, v{d}\nv_exp_f32 v46, v46\nv_add_f32 v46, 1.0, v46\nv_rcp_f32 v46, v46\nv_mul_f32 v46, v{d}, v46")
            a(f"v_cvt_pk_bf16_f32 v46, v46, v46\nv_lshlrev_b32 v46, 16, v46\nv_mul_f32 v{d}, v46, v{44+c}")
        a("v_cvt_pk_bf16_f32 v48, v40, v41\nv_mov_b32 v49, s61")
        a(f"s_lshl_b32 s29, s57, 6\ns_add_u32 s29, s29, {WS_XH}\nv_lshlrev_b32 v6, 3, v1\ns_mov_b64 exec, 0xff")
        a("buffer_store_dwordx2 v[48:49], v6, s[12:15], s29 offen sc1\ns_mov_b64 exec, -1")
        self.stamp(6)
        a("s_cmp_lt_u32 s18, 22\ns_cbranch_scc1 L_m_end")
        wd_dma()
        a("L_m_y:")
        a(f"v_lshlrev_b32 v6, 4, v1\nv_lshlrev_b32 v7, 2, v1\nv_add_u32 v7, {L_H}, v7")
        a("L_m_xh:")
        for i in range(12):
            a(f"s_mov_b32 s30, {WS_XH + 1024*i}\nbuffer_load_dwordx4 v[{64+4*i}:{67+4*i}], v6, s[12:15], s30 offen sc1")
        a("s_waitcnt vmcnt(0)")
        a("v_cmp_ne_u32 vcc, s61, v65")
        for r in [65 + 2 * k for k in range(1, 24)]: a(f"v_cmp_ne_u32 s[62:63], s61, v{r}\ns_or_b64 vcc, vcc, s[62:63]")
        a("s_cbranch_vccz L_m_xhok\ns_sleep 4\ns_branch L_m_xh\nL_m_xhok:")
        for i in range(12):
            A, B = 64 + 4 * i, 66 + 4 * i
            a(f"v_and_b32 v12, 0xffff, v{A}\nv_lshl_or_b32 v12, v{B}, 16, v12\nv_lshrrev_b32 v13, 16, v{A}\nv_and_or_b32 v13, v{B}, s28, v13")
            a(f"ds_write_b32 v7, v12 offset:{256*i}\nds_write_b32 v7, v13 offset:{3072+256*i}")
        a(f"v_and_b32 v30, 1, v1\nv_mul_u32_u24 v30, 3072, v30\nv_bfe_u32 v33, v1, 1, 1\nv_mul_u32_u24 v33, 1536, v33\nv_lshrrev_b32 v31, 4, v1")
        a(f"v_lshl_add_u32 v30, v31, 4, v30\nv_add_u32 v30, v30, v33\nv_add_u32 v30, {L_H}, v30")
        a("v_bfe_u32 v32, v1, 2, 2\nv_lshl_add_u32 v32, v31, 3, v32\nv_lshlrev_b32 v32, 4, v32\nv_and_b32 v33, 1, v1\nv_lshl_add_u32 v32, v33, 3, v32")
        a(f"v_bfe_u32 v33, v1, 1, 1\nv_mul_u32_u24 v33, 12352, v33\nv_add_u32 v32, v32, v33\nv_add_u32 v32, {L_AUX}, v32")
        a("s_waitcnt vmcnt(0) lgkmcnt(0)")
        self.small_gemm(24, 64, 64, 512)
        for c in range(2):
            a(f"v_mov_b32_dpp v44, v{42+c} row_ror:8 row_mask:0xf bank_mask:0xf\nv_add_f32 v{40+c}, v{40+c}, v44")
            a(f"v_cvt_pk_bf16_f32 v{40+c}, v{40+c}, v{40+c}\nv_lshlrev_b32 v{40+c}, 16, v{40+c}")
            sr = "s68" if c == 0 else "s69"
            a(f"v_mov_b32 v46, {sr}\nv_mul_f32 v46, {f32hex(-1.4426950408889634)}, v46\nv_exp_f32 v46, v46\nv_add_f32 v46, 1.0, v46\nv_rcp_f32 v46, v46")
            a(f"v_cvt_pk_bf16_f32 v46, v46, v46\nv_lshlrev_b32 v46, 16, v46\nv_mul_f32 v{40+c}, v{40+c}, v46")
        a("v_cvt_pk_bf16_f32 v48, v40, v41\nv_mov_b32 v49, s61")
        a(f"s_mul_i32 s29, s17, 10\ns_add_u32 s29, s29, s18\ns_sub_u32 s29, s29, 22\ns_lshl_b32 s29, s29, 6\ns_add_u32 s29, s29, {WS_UPD}\nv_lshlrev_b32 v6, 3, v1\ns_mov_b64 exec, 0xff")
        a("buffer_store_dwordx2 v[48:49], v6, s[12:15], s29 offen sc1\ns_mov_b64 exec, -1")
        self.stamp(7)
        a("L_m_end:")

    def small_gemm(self, nk, astride, jjoff, bstride):
        a = self.a
        self.lg_reset()
        def rd(s_):
            b = 50 + 8 * (s_ % 3)
            a(f"ds_read_b128 v[{b}:{b+3}], v30 offset:{astride*s_}")
            a(f"ds_read_b64_tr_b16 v[{b+4}:{b+5}], v32 offset:{bstride*s_}\nds_read_b64_tr_b16 v[{b+6}:{b+7}], v32 offset:{bstride*s_+jjoff}")
            self.lg_issue(("G", s_), 3)
        rd(0); rd(1)
        for s_ in range(nk):
            if s_ + 2 < nk: rd(s_ + 2)
            self.lg_wait(("G", s_))
            b = 50 + 8 * (s_ % 3)
            a(f"v_mfma_f32_16x16x32_bf16 v[40:43], v[{b}:{b+3}], v[{b+4}:{b+7}], {'0' if s_ == 0 else 'v[40:43]'}")

    def aux(self):
        a = self.a
        a("L_aux:")
        self.post_srd = []
        self.srd(40, 72, 256)
        a("v_mov_b32 v2, 0")
        a(f"v_lshlrev_b32 v6, 2, v1\nv_add_u32 v6, {L_FLG}, v6\ns_mov_b64 exec, 0xffffffff\nds_write_b32 v6, v2\ns_mov_b64 exec, -1")
        a("s_lshl_b32 s29, s47, 10\ns_lshl_b32 s30, s18, 5\ns_add_u32 s29, s29, s30")
        a("v_and_b32 v7, 31, v1\nv_add_u32 v7, s29, v7\nv_mul_u32_u24 v7, 1280, v7")
        a("v_lshrrev_b32 v8, 5, v1\nv_lshl_add_u32 v7, v8, 7, v7")
        a("s_memrealtime s[54:55]")
        a("s_waitcnt lgkmcnt(0)")
        self.srd_fin()
        self.stamp(0)
        a("v_mov_b32 v9, 0")
        a("s_cmp_lg_u32 s2, 0\ns_cbranch_scc1 L_x_non")
        a("s_or_b32 s54, s54, 1\nv_mov_b32 v10, s54\ns_mov_b64 exec, 1\nbuffer_store_dword v10, v9, s[40:43], 0 offen sc1\ns_mov_b64 exec, -1")
        a("L_x_non:")
        a("buffer_load_dword v10, v9, s[40:43], 0 offen sc1")
        for i in range(5):
            a(f"buffer_load_dword v{30+i}, v7, s[4:7], 0 offen offset:{256*i}")
        a("s_getreg_b32 s52, hwreg(HW_REG_XCC_ID, 0, 4)")
        a("s_and_b32 s52, s52, 7\ns_or_b32 s52, s52, 16")
        a("s_lshl_b32 s23, s46, 2\ns_add_u32 s23, s23, s20")
        a("s_barrier")
        a("s_waitcnt vmcnt(5)")
        a("L_x_wn:\nv_cmp_ne_u32 vcc, 0, v10\ns_cbranch_vccnz L_x_gotn")
        a("buffer_load_dword v10, v9, s[40:43], 0 offen sc1\ns_waitcnt vmcnt(0)\ns_branch L_x_wn")
        a("L_x_gotn:")
        a("v_readfirstlane_b32 s61, v10")
        a(f"v_mov_b32 v6, {L_FLG}\nds_write_b32 v6, v10 offset:4")
        a(f"s_lshl_b32 s31, s17, 5\ns_add_u32 s31, s31, s18\ns_lshl_b32 s31, s31, 4\ns_add_u32 s31, s31, {WS_XF}")
        a("v_mov_b32 v14, s52\nv_mov_b32 v15, v10\ns_mov_b64 exec, 1\nbuffer_store_dwordx2 v[14:15], v9, s[12:15], s31 offen sc1\ns_mov_b64 exec, -1")
        a("s_waitcnt lgkmcnt(0)")
        self.stamp(1)
        a("s_barrier")
        def pub_st():
            a(f"v_lshlrev_b32 v12, 3, v1\nv_add_u32 v13, {L_OWN}, v12\ns_mov_b64 exec, 0xff\nds_read_b64 v[18:19], v13")
            a("s_lshl_b32 s29, s23, 3\ns_lshl_b32 s30, s19, 7\ns_add_u32 s29, s29, s30\ns_lshl_b32 s29, s29, 4")
            a("v_lshlrev_b32 v12, 4, v1\nv_mov_b32 v21, s61\nv_mov_b32 v23, s61")
            a("s_waitcnt lgkmcnt(0)\nv_mov_b32 v20, v18\nv_mov_b32 v22, v19")
            a("buffer_store_dwordx4 v[20:23], v12, s[12:15], s29 offen sc1\ns_mov_b64 exec, -1")
        def pub_cs():
            a(f"v_lshlrev_b32 v12, 3, v1\nv_add_u32 v13, {L_CSW}, v12")
            for wv in range(8): a(f"ds_read_b64 v[{40+2*wv}:{41+2*wv}], v13 offset:{512*wv}")
            a("s_waitcnt lgkmcnt(0)")
            for wv in range(1, 8): a(f"v_pk_add_f32 v[40:41], v[40:41], v[{40+2*wv}:{41+2*wv}]")
            a("v_mov_b32 v18, v40\nv_mov_b32 v19, v41")
            a(f"s_lshl_b32 s31, s17, 5\ns_add_u32 s31, s31, s18\ns_lshl_b32 s30, s31, 10\ns_add_u32 s30, s30, {WS_CSP}")
            a("v_lshlrev_b32 v12, 4, v1\nv_mov_b32 v21, s61\nv_mov_b32 v23, s61")
            a("s_waitcnt lgkmcnt(0)\nv_mov_b32 v20, v18\nv_mov_b32 v22, v19")
            a("buffer_store_dwordx4 v[20:23], v12, s[12:15], s30 offen sc1")
        def gather_issue():
            a(f"s_lshl_b32 s29, s19, 11\ns_add_u32 s29, s29, {WS_ST}\nv_lshlrev_b32 v9, 5, v1")
            a("buffer_load_dwordx4 v[40:43], v9, s[12:15], s29 offen sc1")
            a("buffer_load_dwordx4 v[44:47], v9, s[12:15], s29 offen offset:16 sc1")
            a(f"s_lshl_b32 s30, s17, 5\ns_add_u32 s30, s30, s20\ns_lshl_b32 s30, s30, 10\ns_add_u32 s30, s30, {WS_CSP}\nv_lshlrev_b32 v12, 4, v1")
            for b in range(8):
                a(f"s_add_u32 s33, s30, {4096*b}\nbuffer_load_dwordx4 v[{48+4*b}:{51+4*b}], v12, s[12:15], s33 offen sc1")
            a(f"s_lshl_b32 s31, s17, 9\ns_add_u32 s31, s31, {WS_XF}\nv_and_b32 v20, 31, v1\nv_lshlrev_b32 v20, 4, v20")
            a("buffer_load_dwordx2 v[80:81], v20, s[12:15], s31 offen sc1")
        def gather_check(Lok):
            a("s_waitcnt vmcnt(0)")
            a("v_cmp_ne_u32 vcc, s61, v41")
            for r in [43, 45, 47] + [49 + 2 * k for k in range(16)]:
                a(f"v_cmp_ne_u32 s[62:63], s61, v{r}\ns_or_b64 vcc, vcc, s[62:63]")
            if "nocheck" in self.opts: a(f"s_branch {Lok}")
            a(f"s_cbranch_vccz {Lok}")
        def gather_finish():
            a("v_lshlrev_b32 v24, 16, v40\nv_and_b32 v25, 0xffff0000, v40\nv_lshlrev_b32 v26, 16, v44\nv_and_b32 v27, 0xffff0000, v44")
            a("v_rcp_f32 v25, v25\nv_rcp_f32 v27, v27")
            a(f"v_lshlrev_b32 v28, 4, v1\nv_add_u32 v28, {L_STAT}, v28")
            a("ds_write_b128 v28, v[24:27]")
            for b in range(1, 8):
                a(f"v_add_f32 v48, v48, v{48+4*b}\nv_add_f32 v50, v50, v{50+4*b}")
            a(f"v_mov_b32 v49, v50\nv_lshlrev_b32 v28, 3, v1\nv_add_u32 v28, {L_CS}, v28")
            a("ds_write_b64 v28, v[48:49]")
            a("v_cmp_ne_u32 vcc, s52, v80\nv_cmp_ne_u32 s[62:63], s61, v81\ns_or_b64 vcc, vcc, s[62:63]")
            a("s_cmp_eq_u64 vcc, 0\ns_cselect_b32 s56, 1, 0")
            a("s_and_b32 s57, s19, 14\ns_cmp_eq_u32 s57, 6\ns_cselect_b32 s56, 0, s56")
            if "slow" in self.opts: a("s_mov_b32 s56, 0")
            a(f"v_mov_b32 v28, {L_FLG}\nv_mov_b32 v29, s56\nds_write_b32 v28, v29")
            a("s_cmp_lg_u32 s23, s19\ns_cbranch_scc1 L_x_nofr")
            a("v_max_u32 v30, v42, v46\nv_min_u32 v32, v42, v46")
            self.top2_wave("v30", "v32", "v34", "v35", "v36")
            a(f"s_lshl_b32 s29, s19, 6\ns_add_u32 s29, s29, {WS_FR}\nv_mov_b32 v28, s29\nv_mov_b32 v31, s61\nv_mov_b32 v33, s61")
            a("s_mov_b64 exec, 1\nbuffer_store_dwordx4 v[30:33], v28, s[12:15], 0 offen sc1\ns_mov_b64 exec, -1")
            a("L_x_nofr:")
            a("s_waitcnt lgkmcnt(0)")
        tcs = (self.side_done_n + 1 + 3) >> 2
        tst = (self.stats_done_n + 1 + 3) >> 2
        for t in range(9):
            a("s_barrier")
            if t == tst: pub_st()
            if t == tcs: pub_cs()
            if t == max(self.TG, tcs + 1): gather_issue()
        gather_check("L_x_gdone")
        a("L_x_gretry:")
        gather_issue()
        gather_check("L_x_gdone")
        a("s_branch L_x_gretry")
        a("L_x_gdone:")
        self.stamp(2)
        gather_finish()
        a("s_barrier")
        a("s_barrier")
        self.stamp(3)
        a(f"s_lshl_b32 s29, s46, 6\ns_lshl_b32 s30, s19, 2\ns_add_u32 s29, s29, s30\ns_add_u32 s29, s29, s20\ns_lshl_b32 s29, s29, 6\ns_add_u32 s29, s29, {WS_F1}")
        a("v_mov_b32 v6, s29\nv_mov_b32 v7, s61\ns_mov_b64 exec, 1")
        a("s_cmp_eq_u32 s56, 1\ns_cbranch_scc1 L_x_f1f")
        a("buffer_store_dword v7, v6, s[12:15], 0 offen sc1\ns_branch L_x_f1d")
        a("L_x_f1f:\nbuffer_store_dword v7, v6, s[12:15], 0 offen\nL_x_f1d:\ns_mov_b64 exec, -1")
        if self.stop_after != "a":
            a("s_lshr_b32 s63, s18, 3\ns_lshl_b32 s29, s47, 2\ns_add_u32 s63, s63, s29")
            a(f"s_lshl_b32 s29, s46, 6\ns_lshl_b32 s30, s63, 3\ns_add_u32 s29, s29, s30\ns_sub_u32 s29, s29, 8\ns_lshl_b32 s29, s29, 6\ns_add_u32 s29, s29, {WS_F1}")
            a("v_and_b32 v6, 15, v1\ns_cmp_eq_u32 s63, 0\ns_cselect_b32 s30, 8, 0\nv_max_u32 v6, s30, v6\nv_lshlrev_b32 v6, 6, v6")
            a("L_x_p1:\nbuffer_load_dword v8, v6, s[12:15], s29 offen sc1\ns_waitcnt vmcnt(0)")
            a("v_cmp_ne_u32 vcc, s61, v8\ns_cbranch_vccnz L_x_p1")
        a("s_barrier")
        self.stamp(4)
        if self.stop_after is None:
            a("s_mov_b32 s28, 0xffff0000")
            if self.stamps:
                for k in (5, 6, 7): a(f"s_mov_b64 s[{72+2*k}:{73+2*k}], 0")
            self.moe_aux()
        self.fin_stamps(8 if self.stop_after is None else 5, wave=8, slot=1)
        a("s_endpgm")

if __name__ == "__main__":
    import argparse
    ap = argparse.ArgumentParser()
    ap.add_argument("-o", default="k.s")
    ap.add_argument("--stamps", action="store_true")
    ap.add_argument("--opt", action="append", default=[])
    args = ap.parse_args()
    g = Gen(stamps=args.stamps, opts=args.opt)
    open(args.o, "w").write(g.build())
    print("wrote", args.o, "side done at n =", g.side_done_n)
```

```python
import sys, struct
from asmlib import Asm

KNAME = "parallel_sum__sliding_block__moe_arch_mod__prompt_kernel"

WS_ST = 0
WS_CSP = 0x8000
WS_F1 = 0x48000
WS_F2 = 0x4C000
WS_FR = 0x57000
WS_XF = 0x50400
WS_XH = 0x52000
WS_UPD = 0x55000
WS_QKV = 0x100000
WS_O = 0x900000
WS_DBG = 0xC00000
WS_SIZE = 0xD00000
L_MISC = 131072
L_STAT = L_MISC
L_CS = L_MISC + 1024
L_CSW = L_MISC + 2176
L_OWN = L_MISC + 2048
L_FLG = L_MISC + 6400
L_AUX = 138240
LB_K = 0
LB_V = 24768
PLS = 8256
LA1 = 49664
LBB = 107008
LA2 = 0
L_EX = 24832
NEGF = "0xf149f2ca"
LDS_BYTES = 163840
QSCALE = 0.22360679774997896 * 1.4426950408889634

def f32hex(x):
    return "0x%08x" % struct.unpack("<I", struct.pack("<f", x))[0]

class Gen:
    def __init__(self, stop_after=None, stamps=False, opts=()):
        self.a = Asm()
        self.opts = set(opts)
        self.stop_after = stop_after
        self.stamps = stamps
        self.in_main = False
        self.swave = 0; self.quota = 24; self.TG = 6; self.TP = 1; self.SIDE0 = 1; self.Q0 = 50; self.Q1 = 100; self.LM0 = 1; self.PRE = 3
        for o in self.opts:
            if o.startswith("swave="): self.swave = int(o[6:])
            if o.startswith("quota="): self.quota = int(o[6:])
            if o.startswith("pre="): self.PRE = int(o[4:])
            if o.startswith("tg="): self.TG = int(o[3:])
            if o.startswith("side0="): self.SIDE0 = int(o[6:])
            if o.startswith("tp="): self.TP = int(o[3:])
            if o.startswith("q0="): self.Q0 = int(o[3:])
            if o.startswith("q1="): self.Q1 = int(o[3:])
            if o.startswith("lm0="): self.LM0 = int(o[4:])
            if o.startswith("stop="): self.stop_after = o[5:]

    def srd(self, base, kofs, size):
        self.a(f"s_load_dwordx2 s[{base}:{base+1}], s[0:1], {kofs}")
        self.post_srd.append((base, size))
    def srd_fin(self):
        for base, size in self.post_srd:
            self.a(f"s_mov_b32 s{base+2}, {size}\ns_mov_b32 s{base+3}, 0x20000")
        self.post_srd = []
    def stamp(self, idx):
        if self.stamps and self.in_main and "bst" in self.opts and idx != 0: return
        if self.stamps:
            self.a(f"s_memrealtime s[{72+2*idx}:{73+2*idx}]")
            if idx == 0: self.a("s_memtime s[96:97]")
    def fin_stamps(self, n, wave=0, slot=0):
        if not self.stamps: return
        a = self.a
        L = a.label("nostamp")
        a("s_memtime s[98:99]")
        a("s_waitcnt lgkmcnt(0)")
        a(f"s_cmp_lg_u32 s16, {wave}\ns_cbranch_scc1 {L}")
        a(f"s_lshl_b32 s29, s2, 8\ns_add_u32 s29, s29, {WS_DBG + 128*slot}\nv_mov_b32 v4, s29\ns_mov_b64 exec, 1")
        for i in range(n):
            a(f"v_mov_b32 v6, s{72+2*i}\nv_mov_b32 v7, s{73+2*i}\nbuffer_store_dwordx2 v[6:7], v4, s[12:15], 0 offen offset:{8*i}")
        a("s_sub_u32 s98, s98, s96\nv_mov_b32 v6, s98\nv_mov_b32 v7, 0\nbuffer_store_dwordx2 v[6:7], v4, s[12:15], 0 offen offset:120")
        a(f"s_mov_b64 exec, -1\n{L}:")

    def top2_merge(self, a1, a2, b1, b2, mn):
        a = self.a
        a(f"v_min_u32 {mn}, {a1}, {b1}")
        a(f"v_max_u32 {a1}, {a1}, {b1}")
        a(f"v_max3_u32 {a2}, {a2}, {b2}, {mn}")
    def top2_wave(self, a1, a2, b1, b2, mn):
        a = self.a
        for ctrl in ("quad_perm:[1,0,3,2]", "quad_perm:[2,3,0,1]", "row_half_mirror", "row_mirror"):
            a(f"v_mov_b32_dpp {b1}, {a1} {ctrl} row_mask:0xf bank_mask:0xf")
            a(f"v_mov_b32_dpp {b2}, {a2} {ctrl} row_mask:0xf bank_mask:0xf")
            self.top2_merge(a1, a2, b1, b2, mn)
        for sw in ("v_permlane16_swap_b32", "v_permlane32_swap_b32"):
            a(f"v_mov_b32 {b1}, {a1}\nv_mov_b32 {b2}, {a2}")
            a(f"{sw} {a1}, {b1}\n{sw} {a2}, {b2}")
            self.top2_merge(a1, a2, b1, b2, mn)
    def sum_wave_lines(self, regs, tmps):
        out = []
        for ctrl in ("quad_perm:[1,0,3,2]", "quad_perm:[2,3,0,1]", "row_half_mirror", "row_mirror"):
            for r in regs: out.append(f"v_add_f32_dpp {r}, {r}, {r} {ctrl} row_mask:0xf bank_mask:0xf")
        for sw in ("v_permlane16_swap_b32", "v_permlane32_swap_b32"):
            for r, t in zip(regs, tmps): out.append(f"v_mov_b32 {t}, {r}")
            for r, t in zip(regs, tmps): out.append(f"{sw} {r}, {t}")
            for r, t in zip(regs, tmps): out.append(f"v_add_f32 {r}, {r}, {t}")
        return out
    @staticmethod
    def bf16r(dst, src):
        return [f"v_cvt_pk_bf16_f32 {dst}, {src}, {src}", f"v_lshlrev_b32 {dst}, 16, {dst}"]
    @staticmethod
    def key_lines(rf, row, dst, t1, t2):
        return [f"v_cvt_pk_bf16_f32 {dst}, {rf}, {rf}", f"v_and_b32 {dst}, 0xffff, {dst}",
                f"v_or_b32 {t1}, 0x8000, {dst}", f"v_xor_b32 {t2}, 0xffff, {dst}",
                f"v_cmp_lt_u32 vcc, 0x7fff, {dst}\nv_cndmask_b32 {dst}, {t1}, {t2}, vcc",
                f"v_mov_b32 {t1}, 0",
                f"v_cmp_u_f32 vcc, {rf}, {rf}\nv_cndmask_b32 {dst}, {dst}, {t1}, vcc",
                f"v_sub_u32 {t1}, 0xfff, {row}", f"v_lshl_or_b32 {dst}, {dst}, 16, {t1}"]
    def guard(self, L):
        self.a(f"s_add_u32 s100, s100, 1\ns_bitcmp1_b32 s100, 21\ns_cbranch_scc0 {L}")
    def lds_spin(self, vaddr, vtmp, stmp, cmp_, val, off=0):
        a = self.a
        L = a.label("spin")
        a(f"{L}:\nds_read_b32 {vtmp}, {vaddr} offset:{off}\ns_waitcnt lgkmcnt(0)")
        Lo = a.label("spino")
        a(f"v_readfirstlane_b32 {stmp}, {vtmp}\ns_cmp_{cmp_}_u32 {stmp}, {val}\ns_cbranch_scc1 {Lo}")
        self.guard(L)
        a(f"{Lo}:")

    def build(self):
        a = self.a
        a.raw(f"; @launch grid=(256,1,1) block=(704,1,1) lds={LDS_BYTES}")
        a.raw('.amdgcn_target "amdgcn-amd-amdhsa--gfx950"')
        a.raw(".text")
        a.raw(f".globl {KNAME}")
        a.raw(".p2align 8")
        a.raw(f".type {KNAME},@function")
        a.raw(f"{KNAME}:")
        self.post_srd = []
        a("s_cmp_ge_u32 s2, 256\ns_cbranch_scc1 L_end")
        self.srd(4, 0, 2621440)
        self.srd(8, 8, 2457600)
        self.srd(12, 80, WS_SIZE)
        self.srd(36, 32, 1280)
        a("v_and_b32 v1, 63, v0\nv_lshrrev_b32 v2, 6, v0\ns_mov_b32 s100, 0")
        a("s_and_b32 s17, s2, 7\ns_lshr_b32 s18, s2, 3")
        a("v_readfirstlane_b32 s16, v2")
        a("s_and_b32 s46, s17, 3\ns_lshr_b32 s47, s17, 2\ns_lshr_b32 s48, s18, 2\ns_and_b32 s20, s18, 3")
        a("s_lshl_b32 s19, s47, 3\ns_add_u32 s19, s19, s48")
        self.srd_fin()
        a("s_cmp_eq_u32 s16, 10\ns_cbranch_scc1 L_aux")
        a("s_cmp_ge_u32 s16, 8\ns_cbranch_scc1 L_loader")
        self.in_main = True
        self.phase_a()
        self.in_main = False
        a("L_end:\ns_endpgm")
        self.loader()
        self.aux()
        a.raw(".section .rodata,\"a\"\n.p2align 6")
        a.raw(f".amdhsa_kernel {KNAME}")
        a.raw("  .amdhsa_next_free_vgpr 168\n  .amdhsa_next_free_sgpr 102\n  .amdhsa_accum_offset 168")
        a.raw("  .amdhsa_group_segment_fixed_size 0\n  .amdhsa_kernarg_size 88\n  .amdhsa_user_sgpr_count 2")
        a.raw("  .amdhsa_user_sgpr_kernarg_segment_ptr 1\n  .amdhsa_system_sgpr_workgroup_id_x 1")
        a.raw("  .amdhsa_float_denorm_mode_32 3\n  .amdhsa_float_denorm_mode_16_64 3")
        a.raw(".end_amdhsa_kernel")
        return a.finalize()

    NST = 20
    def dma_x(self, m, half):
        self.a(f"s_add_u32 m0, s26, {(m & 3) * 16384 + 1024 * half}\ns_nop 0")
        self.a(f"buffer_load_dwordx4 v{10 if half == 0 else 9}, s[4:7], s58 offen lds")
        if half == 1: self.a("s_add_u32 s58, s58, 128\ns_cmp_eq_u32 s58, 1280\ns_cselect_b32 s58, 0, s58")
        self.vm_seq.append(("X", m))
    def dma_w(self, t):
        self.a(f"s_add_u32 m0, s27, {(t & 7) * 8192}\ns_mov_b64 exec, s[24:25]")
        self.a("buffer_load_dwordx4 v11, s[8:11], s59 offen lds\ns_mov_b64 exec, -1")
        self.a(f"s_add_u32 s59, s59, 122880\ns_cmp_eq_u32 s59, {20*122880}\ns_cselect_b32 s59, 0, s59")
        self.vm_seq.append(("W", t))
    def vm_need(self, needs):
        if not any(op in needs for op in self.vm_seq): return 0
        last = max(i for i, op in enumerate(self.vm_seq) if op in needs)
        return len(self.vm_seq) - 1 - last
    def a_read_list(self, n):
        if "noreads" in self.opts: return []
        t, s = n >> 1, n & 1
        m, s4 = n >> 2, n & 3
        xo = (m & 3) * 16384
        wo = (t & 7) * 8192 + 4096 * s
        fs = 24 + 16 * (n % 3)
        return [f"ds_read_b128 v[{fs}:{fs+3}], v{12+s4} offset:{xo}",
                f"ds_read_b64_tr_b16 v[{fs+8}:{fs+9}], v16 offset:{wo}",
                f"ds_read_b64_tr_b16 v[{fs+10}:{fs+11}], v16 offset:{wo+1024}",
                f"ds_read_b128 v[{fs+4}:{fs+7}], v{12+s4} offset:{xo+4096}",
                f"ds_read_b64_tr_b16 v[{fs+12}:{fs+13}], v17 offset:{wo}",
                f"ds_read_b64_tr_b16 v[{fs+14}:{fs+15}], v17 offset:{wo+1024}"]
    def a_reads(self, n):
        for l in self.a_read_list(n): self.a(l)
    def col_oct(self, gam, dst, t):
        a = self.a
        a(f"s_mul_i32 {t}, {gam}, 13\ns_lshr_b32 {t}, {t}, 6\ns_mul_i32 {t}, {t}, 60")
        a(f"s_lshl_b32 {dst}, {gam}, 2\ns_add_u32 {dst}, {dst}, {t}\ns_mul_i32 {t}, s46, 20\ns_add_u32 {dst}, {dst}, {t}")

    def ln_stats_tasks(self):
        pk = "lnpk" in self.opts
        g = []
        X, Wr = 104, 114
        g.append(("wait",))
        g.append("v_lshlrev_b32 v124, 16, v104\nv_readlane_b32 s51, v124, 0\nv_readlane_b32 s52, v124, 32")
        g.append("v_mov_b32 v138, s52\nv_mov_b32 v139, s51\nv_cmp_gt_u32 vcc, 32, v1\nv_cndmask_b32 v138, v138, v139, vcc")
        for i in range(10):
            g += [f"v_lshlrev_b32 v132, 16, v{X+i}", f"v_and_b32 v133, s28, v{X+i}",
                  f"v_lshlrev_b32 v134, 16, v{Wr+i}", f"v_and_b32 v135, s28, v{Wr+i}",
                  "v_sub_f32 v136, v132, v138", "v_sub_f32 v137, v133, v138"]
            if i == 0:
                g += ["v_mul_f32 v128, v132, v134", "v_add_f32 v124, v136, v137", "v_mul_f32 v126, v136, v136", "v_add_f32 v130, v134, v135",
                      "v_fmac_f32 v128, v133, v135", "v_fmac_f32 v126, v137, v137"]
            else:
                g += ["v_fmac_f32 v128, v132, v134", "v_add_f32 v124, v124, v136", "v_fmac_f32 v126, v136, v136", "v_add_f32 v130, v130, v134",
                      "v_fmac_f32 v128, v133, v135", "v_add_f32 v124, v124, v137", "v_fmac_f32 v126, v137, v137", "v_add_f32 v130, v130, v135"]
        regs = ["v124", "v126", "v128", "v130"]; tm = ["v125", "v127", "v129", "v131"]
        for ctrl in ("quad_perm:[1,0,3,2]", "quad_perm:[2,3,0,1]", "row_half_mirror", "row_mirror"):
            for r in regs: g.append(f"v_add_f32_dpp {r}, {r}, {r} {ctrl} row_mask:0xf bank_mask:0xf")
        for r, t in zip(regs, tm): g.append(f"v_mov_b32 {t}, {r}")
        for r, t in zip(regs, tm): g.append(f"v_permlane16_swap_b32 {r}, {t}")
        for r, t in zip(regs, tm): g.append(f"v_add_f32 {r}, {r}, {t}")
        g += ["v_mul_f32 v124, s44, v124", "v_mul_f32 v132, v124, v124", "v_fma_f32 v126, v126, s44, -v132", "v_max_f32 v126, 0, v126",
              "v_add_f32 v124, v138, v124"]
        g += self.bf16r("v124", "v124") + self.bf16r("v126", "v126") + ["v_add_f32 v126, s45, v126"] + self.bf16r("v126", "v126")
        g += ["v_sqrt_f32 v126, v126"] + self.bf16r("v126", "v126") + ["v_rcp_f32 v132, v126"]
        g += ["v_fma_f32 v128, -v124, v130, v128", "v_mul_f32 v128, v128, v132"]
        g += self.key_lines("v128", "v20", "v141", "v134", "v135")
        g += ["v_lshrrev_b32 v140, 16, v124", "v_or_b32 v140, v140, v126"]
        g.append("s_mov_b32 exec_lo, 1\ns_mov_b32 exec_hi, 1\nds_write_b64 v21, v[140:141]\ns_mov_b64 exec, -1\ns_waitcnt lgkmcnt(0)")
        g.append(("mark",))
        return g

    def ln_wave(self):
        a = self.a
        a("L_ln:")
        a("s_sub_u32 s21, s16, 4")
        a("v_and_b32 v2, 31, v1\nv_lshrrev_b32 v3, 5, v1")
        a("s_lshl_b32 s23, s46, 2\ns_add_u32 s23, s23, s20\ns_lshl_b32 s23, s23, 3\ns_lshl_b32 s29, s21, 1\ns_add_u32 s23, s23, s29")
        a("s_lshl_b32 s29, s19, 7\ns_add_u32 s23, s23, s29\nv_add_u32 v20, s23, v3")
        a("v_mul_u32_u24 v4, 1280, v20\nv_lshl_add_u32 v4, v2, 3, v4\nv_lshlrev_b32 v5, 3, v2")
        a(f"s_lshl_b32 s29, s21, 4\ns_add_u32 s29, s29, {L_OWN}\nv_lshl_add_u32 v21, v3, 3, s29")
        a("s_lshr_b32 s29, s21, 1\ns_lshl_b32 s29, s29, 13\ns_and_b32 s30, s21, 1\ns_lshl_b32 s30, s30, 12\ns_add_u32 s29, s29, s30\ns_add_u32 s29, s29, 65536")
        a("v_lshrrev_b32 v8, 4, v1\nv_lshlrev_b32 v9, 2, v8\nv_and_b32 v10, 15, v1\nv_xor_b32 v9, v9, v10\nv_lshlrev_b32 v9, 4, v9")
        a("v_lshl_add_u32 v9, v8, 8, v9\nv_add_u32 v16, s29, v9")
        a(f"s_mov_b32 s28, 0xffff0000\ns_mov_b32 s44, {f32hex(1.0/640.0)}\ns_mov_b32 s45, {f32hex(1e-5)}\ns_waitcnt lgkmcnt(0)")
        tasks = self.ln_stats_tasks()
        a("s_barrier")
        for i in range(5): a(f"buffer_load_dwordx2 v[{104+2*i}:{105+2*i}], v4, s[4:7], 0 offen offset:{256*i}")
        for i in range(5): a(f"buffer_load_dwordx2 v[{114+2*i}:{115+2*i}], v5, s[36:39], 0 offen offset:{256*i}")
        pk = "lnpk" in self.opts
        for m in range(10):
            if m >= 1: a("s_barrier")
            if "noside" in self.opts:
                self.b_stats = 1; continue
            wo = ((2 * m) & 7) * 8192
            for i in range(4): a(f"ds_read_b128 v[{48+4*i}:{51+4*i}], v16 offset:{wo + 1024*i}")
            for i in range(4):
                a(f"s_waitcnt lgkmcnt({3-i})")
                for d in range(4):
                    src = 48 + 4 * i + d; acc = 72 + 2 * d; t = 64 + 2 * (d & 1)
                    if m == 0 and i == 0:
                        a(f"v_lshlrev_b32 v{acc}, 16, v{src}\nv_and_b32 v{acc+1}, s28, v{src}")
                    elif pk:
                        a(f"v_lshlrev_b32 v{t}, 16, v{src}\nv_and_b32 v{t+1}, s28, v{src}\nv_pk_add_f32 v[{acc}:{acc+1}], v[{acc}:{acc+1}], v[{t}:{t+1}]")
                    else:
                        a(f"v_lshlrev_b32 v{t}, 16, v{src}\nv_and_b32 v{t+1}, s28, v{src}\nv_add_f32 v{acc}, v{acc}, v{t}\nv_add_f32 v{acc+1}, v{acc+1}, v{t+1}")
            q = self.Q1 if m >= self.LM0 else 0
            while tasks and q > 0:
                it = tasks.pop(0)
                if isinstance(it, tuple):
                    if it[0] == "mark": self.b_stats = m
                    else: a("s_waitcnt vmcnt(0)")
                else: a(it); q -= it.count("\n") + 1
        if "noside" not in self.opts:
            assert not tasks
            for p in range(4): a(f"v_permlane32_swap_b32 v{72+2*p}, v{73+2*p}")
            for p in range(4): a(f"v_add_f32 v{72+2*p}, v{72+2*p}, v{73+2*p}")
            a("v_permlane16_swap_b32 v72, v74\nv_permlane16_swap_b32 v76, v78")
            a("v_add_f32 v72, v72, v74\nv_add_f32 v76, v76, v78")
            self.cs_tail()
        a("s_waitcnt lgkmcnt(0)")
        a("s_branch L_a_bE1")

    def cs_tail(self):
        a = self.a
        a("v_and_b32 v7, 15, v1\nv_lshlrev_b32 v7, 3, v7\nv_bfe_u32 v8, v1, 4, 1\nv_lshl_add_u32 v7, v8, 1, v7\nv_add_u32 v7, v7, v3")
        a(f"s_lshl_b32 s29, s21, 9\ns_add_u32 s29, s29, {L_CSW}\nv_lshl_add_u32 v7, v7, 2, s29")
        a("ds_write_b32 v7, v72\nds_write_b32 v7, v76 offset:16")

    def phase_a(self):
        a = self.a
        a("; ---- phase A ----")
        a("s_cmp_ge_u32 s16, 4\ns_cbranch_scc1 L_ln")
        a("s_and_b32 s21, s16, 1\ns_lshr_b32 s22, s16, 1")
        self.stamp(0)
        a("v_and_b32 v2, 31, v1\nv_lshrrev_b32 v3, 5, v1")
        a("s_lshl_b32 s29, s22, 6\nv_add_u32 v4, s29, v2\nv_lshlrev_b32 v4, 7, v4")
        a("v_bfe_u32 v5, v1, 1, 3\nv_xor_b32 v8, v3, v5")
        for s4 in range(4):
            a(f"v_xor_b32 v7, {2*s4}, v8\nv_lshl_add_u32 v{12+s4}, v7, 4, v4")
        a("v_bfe_u32 v5, v1, 2, 2")
        a("v_lshl_add_u32 v8, v3, 3, v5\nv_lshlrev_b32 v8, 8, v8")
        a("v_bfe_u32 v9, v1, 4, 1\nv_lshlrev_b32 v9, 5, v9\nv_and_b32 v10, 3, v1\nv_lshlrev_b32 v10, 3, v10\nv_add3_u32 v8, v8, v9, v10")
        a("s_lshl_b32 s29, s21, 1")
        for ntl in range(2):
            a(f"s_add_u32 s30, s29, {ntl}\nv_xor_b32 v7, s30, v5\nv_lshl_add_u32 v7, v7, 6, v8\nv_add_u32 v{16+ntl}, 0x10000, v7")
        self.stamp(4)
        a("s_barrier")
        self.stamp(1)
        self.a_reads(0); self.a_reads(1)
        N = 40
        ACC = lambda ntl, stl: 72 + 32 * ntl + 16 * stl
        for n in range(N):
            m, i4 = n >> 2, n & 3
            fs = 24 + 16 * (n % 3)
            CL = self.stamps and "lloop" in self.opts and m in (4, 5) and i4 == 2
            if CL: self.stamp(5 + 2 * (m - 4))
            if i4 == 2 and m + 1 < 10: a("s_barrier")
            if CL: self.stamp(6 + 2 * (m - 4))
            if self.stamps and "bst" in self.opts and i4 == 2 and m < 9: a(f"s_memrealtime s[{72+2*(m+1)}:{73+2*(m+1)}]")
            a(f"s_waitcnt lgkmcnt({6 if n + 1 < N else 0})")
            rl = self.a_read_list(n + 2) if n + 2 < N else []
            nomf = "nomfma" in self.opts and n > 0
            k = 0
            for ntl in range(2):
                for stl in range(2):
                    A = ACC(ntl, stl)
                    c = "0" if n == 0 else f"v[{A}:{A+15}]"
                    if not nomf: a(f"v_mfma_f32_32x32x16_bf16 v[{A}:{A+15}], v[{fs+8+4*ntl}:{fs+11+4*ntl}], v[{fs+4*stl}:{fs+4*stl+3}], {c}")
                    for l in rl[2*k:2*k+2]: a(l)
                    k += 1
        self.stamp(2)
        a("L_a_bE1:")
        a("s_barrier")
        if "est" in self.opts: self.stamp(5)
        a("s_cmp_ge_u32 s16, 4\ns_cbranch_scc1 L_a_e2")
        a(f"s_lshl_b32 s29, s22, 9\ns_add_u32 s29, s29, {L_STAT}")
        a("v_lshl_add_u32 v4, v2, 3, s29")
        a("ds_read_b64 v[20:21], v4\nds_read_b64 v[22:23], v4 offset:256")
        a(f"s_lshl_b32 s29, s21, 8\ns_add_u32 s29, s29, {L_CSW}\nv_lshl_add_u32 v4, v2, 2, s29")
        for p in range(4):
            a(f"ds_read_b32 v{44+2*p}, v4 offset:{512*p}\nds_read_b32 v{45+2*p}, v4 offset:{512*p+128}")
        a(f"v_mov_b32 v5, {L_FLG}\nds_read_b32 v6, v5")
        a("s_lshl_b32 s33, s19, 7\ns_lshl_b32 s34, s22, 6\ns_add_u32 s33, s33, s34")
        a("v_add_u32 v4, s33, v2\nv_lshlrev_b32 v4, 4, v4\nv_lshl_add_u32 v4, v3, 15, v4")
        for r in (29, 30, 31, 33, 34, 35, 37, 38, 39, 41, 42, 43): a(f"v_mov_b32 v{r}, 0")
        a("v_cmp_gt_u32 vcc, 32, v1\nv_mov_b32 v7, 0")
        a("s_waitcnt lgkmcnt(0)")
        a("v_readfirstlane_b32 s41, v6")
        a("v_add_f32 v24, v44, v46\nv_add_f32 v25, v45, v47\nv_add_f32 v48, v48, v50\nv_add_f32 v49, v49, v51\nv_add_f32 v24, v24, v48\nv_add_f32 v25, v25, v49")
        for ntl in range(2):
            c = 24 + ntl; d = 28 + 4 * ntl
            a(f"v_cvt_pk_bf16_f32 v8, v{c}, v{c}\nv_lshlrev_b32 v8, 16, v8\nv_sub_f32 v8, v{c}, v8\nv_cvt_pk_bf16_f32 v8, v{c}, v8\nv_cndmask_b32 v{d}, v7, v8, vcc")
        for stl in range(2):
            mm = 20 + 2 * stl; d = 36 + 4 * stl
            a(f"v_sub_f32 v8, 0, v{mm}\nv_cvt_pk_bf16_f32 v8, v8, v8\nv_cndmask_b32 v{d}, v7, v8, vcc")
        for ntl in range(2):
            for stl in range(2):
                A = ACC(ntl, stl)
                a(f"v_mfma_f32_32x32x16_bf16 v[{A}:{A+15}], v[{28+4*ntl}:{31+4*ntl}], v[{36+4*stl}:{39+4*stl}], v[{A}:{A+15}]")
        for ntl in range(2):
            Ls = a.label("askip")
            a(f"s_lshl_b32 s29, s20, 2\ns_lshl_b32 s30, s21, 1\ns_add_u32 s29, s29, s30\ns_add_u32 s29, s29, {ntl}")
            a(f"s_cmp_eq_u32 s29, 15\ns_cbranch_scc1 {Ls}")
            self.col_oct("s29", "s31", "s32")
            a(f"s_lshl_b32 s31, s31, 15\ns_add_u32 s31, s31, {WS_QKV}")
            a(f"s_cmp_lt_u32 s29, 5\ns_cselect_b32 s40, {f32hex(QSCALE)}, 1.0")
            a("v_mul_f32 v56, s40, v21\nv_mul_f32 v58, s40, v23\nv_mov_b32 v57, v56\nv_mov_b32 v59, v58")
            for stl in range(2):
                A = ACC(ntl, stl); rr = 56 + 2 * stl
                for p in range(8): a(f"v_pk_mul_f32 v[{A+2*p}:{A+2*p+1}], v[{A+2*p}:{A+2*p+1}], v[{rr}:{rr+1}]")
                d = 136 + 16 * ntl + 8 * stl
                for p in range(8): a(f"v_cvt_pk_bf16_f32 v{d+p}, v{A+2*p}, v{A+2*p+1}")
                for pr in range(2):
                    b0 = d + 4 * pr
                    a(f"v_permlane32_swap_b32 v{b0}, v{b0+2}\nv_permlane32_swap_b32 v{b0+1}, v{b0+3}")
            Lf = a.label("afast"); Ld = a.label("adone")
            a(f"s_cmp_eq_u32 s41, 1\ns_cbranch_scc1 {Lf}")
            for fast in (0, 1):
                if fast: a(f"{Lf}:")
                for pr in range(2):
                    a(f"s_add_u32 s32, s31, {pr*65536}")
                    for stl in range(2):
                        b0 = 136 + 16 * ntl + 8 * stl + 4 * pr
                        a(f"buffer_store_dwordx4 v[{b0}:{b0+3}], v4, s[12:15], s32 offen offset:{512*stl}" + ("" if fast else " sc1"))
                if not fast: a(f"s_branch {Ld}")
            a(f"{Ld}:\n{Ls}:")
        a("L_a_e2:")
        if "est" in self.opts: self.stamp(6)
        a("s_waitcnt vmcnt(0)")
        if "est" in self.opts: self.stamp(7)
        a("s_barrier")
        self.stamp(3)
        if self.stop_after == "a":
            a("s_barrier")
            self.fin_stamps(10 if "bst" in self.opts else (9 if "lloop" in self.opts else (8 if "est" in self.opts else 5)), wave=self.swave)
            a("s_branch L_end")
            self.ln_wave()
            return
        self.phase_b()
        if self.stop_after == "b":
            self.fin_stamps(8, wave=self.swave)
            a("s_branch L_end")
            self.ln_wave()
            return
        self.phase_c()
        self.fin_stamps(10, wave=self.swave)
        a("s_branch L_end")
        self.ln_wave()

    def lg_reset(self): self.lg_seq = []
    def lg_issue(self, tag, n): self.lg_seq += [tag] * n
    def lg_wait(self, tag):
        last = max(i for i, t in enumerate(self.lg_seq) if t == tag)
        self.a(f"s_waitcnt lgkmcnt({min(15, len(self.lg_seq) - 1 - last)})")

    def loader(self):
        a = self.a
        a("L_loader:")
        LS = self.stamps and "lstamp" in self.opts
        if LS: self.stamp(0)
        a("s_setprio 2")
        a("s_sub_u32 s21, s16, 8")
        a("v_lshrrev_b32 v3, 4, v1")
        self.post_srd = []
        self.srd(52, 16, 819200)
        a("s_cmp_eq_u32 s21, 1\ns_cbranch_scc1 L_l_w")
        a("v_lshrrev_b32 v2, 3, v1\nv_and_b32 v8, 7, v1\nv_xor_b32 v8, v8, v3")
        a("s_lshl_b32 s23, s19, 7\nv_add_u32 v9, s23, v2\nv_mul_u32_u24 v9, 1280, v9\nv_lshl_add_u32 v10, v8, 4, v9")
        a("v_xor_b32 v8, 4, v8\nv_lshl_add_u32 v11, v8, 4, v9")
        a("s_mov_b64 s[24:25], -1\ns_mov_b32 s26, 0\ns_movk_i32 s27, 10240\ns_movk_i32 s31, 128\ns_mov_b32 s32, 0")
        a("s_branch L_l_go")
        a("L_l_w:")
        a("v_and_b32 v8, 15, v1\nv_lshlrev_b32 v17, 2, v3\nv_xor_b32 v17, v8, v17")
        a("s_lshl_b32 s29, s20, 2\ns_mul_i32 s31, s46, 20")
        a("v_lshrrev_b32 v19, 2, v17\nv_add_u32 v19, s29, v19\nv_cmp_ne_u32 s[24:25], 15, v19")
        a("v_mul_u32_u24 v18, 13, v19\nv_lshrrev_b32 v18, 6, v18\nv_mul_u32_u24 v18, 60, v18")
        a("v_lshl_add_u32 v18, v19, 2, v18\nv_and_b32 v19, 3, v17\nv_add3_u32 v18, v18, v19, s31\nv_lshlrev_b32 v18, 4, v18")
        a("v_mul_u32_u24 v19, 3840, v3\nv_add_u32 v10, v18, v19\nv_mov_b32 v11, v10")
        a("s_mov_b32 s26, 65536\ns_movk_i32 s27, 15360\ns_mov_b32 s31, 245760\ns_mov_b32 s32, 0")
        a("L_l_go:")
        a("s_waitcnt lgkmcnt(0)")
        self.srd_fin()
        def granule(role, m):
            srd = "s[4:7]" if role == 0 else "s[8:11]"
            base = ((m & 3) * 16384) if role == 0 else (65536 + ((2 * m) & 7) * 8192)
            gs = 128 if role == 0 else 245760
            step = 10240 if role == 0 else 15360
            for i in range(16):
                a(f"s_mov_b32 m0, {base + 1024*i}\ns_add_u32 s30, s40, {step*i}")
                a(f"buffer_load_dwordx4 v{10 + (i & 1)}, {srd}, s30 offen lds")
            a(f"s_add_u32 s40, s40, {gs}\ns_cmp_eq_u32 s40, {10*gs}\ns_cselect_b32 s40, 0, s40")
        rh_, rr_ = 0, 0
        for o in self.opts:
            if o.startswith("roth="): rh_ = int(o[5:])
            if o.startswith("rotr="): rr_ = int(o[5:])
        if "norot" not in self.opts:
            a(f"s_mul_i32 s40, s20, 3\ns_add_u32 s40, s40, s48\ns_mul_i32 s41, s46, {rh_}\ns_add_u32 s40, s40, s41\ns_mul_i32 s41, s47, {rr_}\ns_add_u32 s40, s40, s41")
            a("s_mul_i32 s41, s40, 205\ns_lshr_b32 s41, s41, 11\ns_mul_i32 s41, s41, 10\ns_sub_u32 s40, s40, s41")
        else:
            a("s_mov_b32 s40, 0")
        a("s_movk_i32 s42, 128\ns_cmp_eq_u32 s21, 0\ns_cselect_b32 s41, s42, 245760\ns_mul_i32 s40, s40, s41")
        for role in range(2):
            a(f"L_l_r{role}:") if role == 1 else a("s_cmp_eq_u32 s21, 1\ns_cbranch_scc1 L_l_r1")
            a("s_mov_b64 exec, s[24:25]")
            if "k0late" in self.opts:
                for m in range(3): granule(role, m)
                a("s_waitcnt vmcnt(32)\ns_barrier")
            else:
                if LS: self.stamp(1)
                granule(role, 0)
                if LS: self.stamp(2)
                granule(role, 1)
                if LS: self.stamp(3)
                a("s_waitcnt vmcnt(16)")
                if LS: self.stamp(4)
                a("s_barrier")
                granule(role, 2)
                if LS: self.stamp(5)
            npf = 4 if (self.stop_after is None and "nolpf" not in self.opts) else 0
            for m in range(9):
                extra = npf if m >= 7 else 0
                LL = self.stamps and "lloop" in self.opts
                if LL and m in (4, 5): self.stamp(0 + 4 * (m - 4) + 0)
                a(f"s_waitcnt vmcnt({(16 if m < 8 else 0) + extra})")
                if LL and m in (4, 5): self.stamp(0 + 4 * (m - 4) + 1)
                a("s_barrier")
                if LL and m in (4, 5): self.stamp(0 + 4 * (m - 4) + 2)
                if m + 3 < 10: granule(role, m + 3)
                if LL and m in (4, 5): self.stamp(0 + 4 * (m - 4) + 3)
                if m == 6 and npf:
                    a("s_mov_b64 exec, -1")
                    self.l2pf(role)
            a("s_mov_b64 exec, -1")
            if role == 0: a("s_branch L_l_j")
        a("L_l_j:")
        if LS:
            self.stamp(6); self.stamp(7)
            self.fin_stamps(8, wave=8, slot=1)
        if self.stamps and "lloop" in self.opts:
            self.fin_stamps(8, wave=8 + ("lw1" in self.opts), slot=1)
        a("s_barrier\ns_barrier")
        if self.stop_after == "a":
            a("s_barrier\ns_endpgm"); return
        a("s_and_b32 s62, s18, 7\ns_lshl_b32 s29, s46, 3\ns_add_u32 s62, s62, s29")
        a("s_lshr_b32 s63, s18, 3\ns_lshl_b32 s29, s47, 2\ns_add_u32 s63, s63, s29")
        a("s_and_b32 s64, s62, 1\ns_mul_i32 s65, s62, 5\ns_lshr_b32 s65, s65, 1")
        a(f"s_mul_i32 s32, s21, 80\ns_add_u32 s32, s32, 80\ns_add_u32 s32, s32, s65\ns_lshl_b32 s32, s32, 15\ns_add_u32 s32, s32, {WS_QKV}")
        a(f"s_mul_i32 s33, s21, {LB_V}")
        a("s_lshl_b32 s31, s63, 8\ns_sub_u32 s31, s31, 256\ns_lshl_b32 s31, s31, 4\ns_add_u32 s32, s32, s31")
        a("v_lshlrev_b32 v4, 4, v1\nv_add_u32 v7, s33, v4")
        a(f"s_sub_u32 s35, 1, s64\ns_mul_i32 s35, s35, {2*PLS+8}\nv_add_u32 v8, s35, v7")
        a("v_mov_b32 v20, 0x3f803f80\ns_cmp_eq_u32 s21, 0\ns_cselect_b32 s35, 0, 0x3f803f80\nv_mov_b32 v21, s35")
        a("v_mov_b32 v22, 0x3f803f80\ns_mov_b32 s34, 0x3f803f80\ns_cselect_b32 s35, 0xf149, s34\nv_mov_b32 v23, s35")
        a("v_mov_b32 v24, 0\nv_mov_b32 v25, 0\nv_mov_b32 v26, 0\nv_mov_b32 v27, 0")
        self.wo_setup()
        a("s_barrier")
        a("s_cmp_eq_u32 s63, 0\ns_cbranch_scc1 L_l_c0")
        for blk in range(4):
            for p in range(3):
                a(f"s_add_u32 m0, s33, {p*PLS + blk*1024}\ns_add_u32 s30, s32, {p*32768 + blk*1024}\nbuffer_load_dwordx4 v4, s[12:15], s30 offen " + ("" if "kvplain" in self.opts else "sc1 ") + "lds")
        a("s_branch L_l_c1")
        a("L_l_c0:")
        for blk in range(4):
            for p in range(3): a(f"ds_write_b128 v7, v[24:27] offset:{p*PLS + blk*1024}")
        a("L_l_c1:")
        for blk in range(4, 8):
            for p in range(3):
                a(f"s_add_u32 m0, s33, {p*PLS + blk*1024}\ns_add_u32 s30, s32, {p*32768 + blk*1024}\nbuffer_load_dwordx4 v4, s[12:15], s30 offen " + ("" if "kvplain" in self.opts else "sc1 ") + "lds")
        a("s_waitcnt vmcnt(0) lgkmcnt(0)")
        a("s_cmp_eq_u32 s63, 0\ns_cbranch_scc1 L_l_p0")
        for blk in range(4): a(f"ds_write_b64 v8, v[20:21] offset:{blk*1024}")
        a("s_branch L_l_p1")
        a("L_l_p0:")
        for blk in range(4): a(f"ds_write_b64 v8, v[22:23] offset:{blk*1024}")
        a("L_l_p1:")
        for blk in range(4, 8): a(f"ds_write_b64 v8, v[20:21] offset:{blk*1024}")
        a(f"v_mov_b32 v5, {L_FLG}\nv_mov_b32 v6, 1\ns_waitcnt lgkmcnt(0)\ns_mov_b64 exec, 1\nds_add_u32 v5, v6 offset:8\ns_mov_b64 exec, -1")
        if self.stop_after == "b":
            a("s_endpgm"); return
        if self.stop_after is None:
            self.post_srd = []
            a("s_cmp_ge_u32 s18, 24\ns_cbranch_scc1 L_l_wd")
            a("s_lshl_b32 s29, s21, 3\ns_add_u32 s29, s29, 40\ns_load_dwordx2 s[56:57], s[0:1], s29")
            a("s_mov_b32 s58, 1966080\ns_mov_b32 s59, 0x20000")
            a("s_mul_i32 s29, s17, 24\ns_add_u32 s29, s29, s18\ns_lshl_b32 s29, s29, 4\nv_mul_u32_u24 v10, 3072, v1\nv_add_u32 v10, s29, v10")
            a(f"s_mul_i32 s33, s21, 10304\ns_add_u32 s33, s33, {L_AUX}\ns_waitcnt lgkmcnt(0)")
            for i in range(10):
                a(f"s_add_u32 m0, s33, {1024*i}\ns_mov_b32 s30, {i*196608}\nbuffer_load_dwordx4 v10, s[56:59], s30 offen lds")
            a("s_branch L_l_md")
            a("L_l_wd:")
            a("s_load_dwordx2 s[56:57], s[0:1], 56\ns_mov_b32 s58, 1966080\ns_mov_b32 s59, 0x20000")
            a("s_mul_i32 s29, s17, 10\ns_add_u32 s29, s29, s18\ns_sub_u32 s29, s29, 22\ns_lshl_b32 s29, s29, 4\nv_mul_u32_u24 v10, 1280, v1\nv_add_u32 v10, s29, v10")
            a(f"s_mul_i32 s33, s21, 12352\ns_add_u32 s33, s33, {L_AUX}\ns_mul_i32 s34, s21, {12*81920}\ns_waitcnt lgkmcnt(0)")
            for i in range(12):
                a(f"s_add_u32 m0, s33, {1024*i}\ns_add_u32 s30, s34, {i*81920}\nbuffer_load_dwordx4 v10, s[56:59], s30 offen lds")
            a("L_l_md:")
            a("s_waitcnt vmcnt(0)\nv_mov_b32 v6, 1\ns_mov_b64 exec, 1\nds_add_u32 v5, v6 offset:36\ns_mov_b64 exec, -1")
        a("s_lshl_b32 s34, s21, 10\ns_mul_i32 s35, s21, 10240")
        for q in range(28):
            a(f"s_add_u32 m0, s34, {LA1 + q*2048}\ns_add_u32 s30, s35, {q*20480}\nbuffer_load_dwordx4 v152, s[52:55], s30 offen lds")
        a("s_mul_i32 s35, s21, 40960")
        for q in range(10):
            a(f"s_add_u32 m0, s34, {LBB + q*2048}\ns_add_u32 s30, s35, {q*81920}\nbuffer_load_dwordx4 v153, s[52:55], s30 offen lds")
        a("s_cmp_eq_u32 s21, 1\ns_cbranch_scc1 L_l_poll")
        self.lds_spin("v5", "v6", "s35", "ge", 8, off=12)
        for q in range(12):
            for par in range(2):
                i = 56 + 2 * q + par
                a(f"s_mov_b32 m0, {LA2 + (i-56)*1024}\ns_mov_b32 s30, {i*10240}\nbuffer_load_dwordx4 v{152 if par == 0 else 154}, s[52:55], s30 offen lds")
        a("s_waitcnt vmcnt(0)\nv_mov_b32 v6, 1\ns_mov_b64 exec, 1\nds_add_u32 v5, v6 offset:32\ns_mov_b64 exec, -1\ns_endpgm")
        a("L_l_poll:")
        a("s_waitcnt vmcnt(0)\nv_mov_b32 v6, 1\ns_mov_b64 exec, 1\nds_add_u32 v5, v6 offset:32\ns_mov_b64 exec, -1")
        a(f"s_lshl_b32 s29, s17, 11\ns_add_u32 s29, s29, {WS_F2}\nv_and_b32 v26, 31, v1\nv_lshlrev_b32 v26, 6, v26\nds_read_b32 v6, v5 offset:4\ns_waitcnt lgkmcnt(0)")
        a("L_c_poll:\nbuffer_load_dword v27, v26, s[12:15], s29 offen sc1\ns_waitcnt vmcnt(0)")
        a("v_cmp_ne_u32 vcc, v6, v27\ns_cbranch_vccz L_c_poll_o\ns_add_u32 s100, s100, 1\ns_bitcmp1_b32 s100, 21\ns_cbranch_scc0 L_c_poll\nL_c_poll_o:")
        a("v_mov_b32 v6, 1\ns_mov_b64 exec, 1\nds_write_b32 v5, v6 offset:16\ns_mov_b64 exec, -1")
        a("s_endpgm")

    def l2pf(self, role):
        a = self.a
        if role == 0:
            a("s_load_dwordx2 s[56:57], s[0:1], 40\ns_load_dwordx2 s[60:61], s[0:1], 48\ns_load_dwordx2 s[64:65], s[0:1], 56")
            a("s_mov_b32 s58, 1966080\ns_mov_b32 s59, 0x20000\ns_mov_b32 s62, 1966080\ns_mov_b32 s63, 0x20000\ns_mov_b32 s66, 1966080\ns_mov_b32 s67, 0x20000")
            a("v_mul_u32_u24 v24, 43, v1\nv_lshrrev_b32 v24, 7, v24\nv_mul_u32_u24 v25, 3, v24\nv_sub_u32 v25, v1, v25")
            a("s_mul_i32 s29, s18, 20\nv_add_u32 v24, s29, v24\nv_mul_u32_u24 v24, 3072, v24\nv_lshl_add_u32 v24, v25, 7, v24")
            a("s_mul_i32 s29, s17, 384\nv_add_u32 v24, s29, v24")
            a("s_mul_i32 s29, s18, 48\nv_lshrrev_b32 v25, 1, v1\nv_add_u32 v25, s29, v25\nv_mul_u32_u24 v25, 1280, v25")
            a("s_mul_i32 s29, s17, 160\ns_and_b32 s29, s29, 0xffffff80\nv_and_b32 v26, 1, v1\nv_lshl_add_u32 v25, v26, 7, v25\nv_add_u32 v25, s29, v25")
            a("s_waitcnt lgkmcnt(0)")
            a("s_mov_b32 exec_hi, 0x0fffffff\nbuffer_load_dword v27, v24, s[56:59], 0 offen\nbuffer_load_dword v27, v24, s[60:63], 0 offen\ns_mov_b64 exec, -1")
            a("buffer_load_dword v27, v25, s[64:67], 0 offen")
            a("s_mov_b32 s30, 40960\ns_mov_b32 exec_hi, 0\nbuffer_load_dword v27, v25, s[64:67], s30 offen\ns_mov_b64 exec, -1")
        else:
            a("s_mul_i32 s29, s18, 25600\nv_lshlrev_b32 v26, 7, v1\nv_add_u32 v26, s29, v26")
            for i in range(4):
                a(f"s_mov_b32 s30, {8192*i}\n" + ("s_mov_b64 exec, 0xff\n" if i == 3 else "") + "buffer_load_dword v27, v26, s[52:55], s30 offen")
            a("s_mov_b64 exec, -1")

    def wo_setup(self):
        a = self.a
        a("s_and_b32 s67, s18, 7\ns_mul_i32 s69, s67, 160")
        for dst, par in (("v152", "s21"), ("v154", "1")):
            a(f"v_bfe_u32 v19, v1, 4, 1\ns_lshl_b32 s29, {par}, 1\nv_or_b32 v19, s29, v19\nv_lshlrev_b32 v19, 1, v19")
            a(f"v_and_b32 {dst}, 7, v1\nv_xor_b32 {dst}, {dst}, v19\nv_lshlrev_b32 {dst}, 4, {dst}")
            a(f"v_lshrrev_b32 v19, 3, v1\nv_mul_u32_u24 v19, 1280, v19\nv_add3_u32 {dst}, {dst}, v19, s69")
        a("v_lshrrev_b32 v19, 1, v1\nv_bfe_u32 v153, v19, 3, 1\nv_lshlrev_b32 v153, 2, v153\nv_xor_b32 v19, v19, v153\nv_mul_u32_u24 v19, 1280, v19")
        a("v_and_b32 v153, 1, v1\nv_lshlrev_b32 v153, 4, v153\nv_add3_u32 v153, v153, v19, s69\nv_add_u32 v153, 128, v153")

    def phase_b(self):
        a = self.a
        a("; ---- phase B ----")
        a("s_and_b32 s62, s18, 7\ns_lshl_b32 s29, s46, 3\ns_add_u32 s62, s62, s29")
        a("s_lshr_b32 s63, s18, 3\ns_lshl_b32 s29, s47, 2\ns_add_u32 s63, s63, s29")
        a("s_and_b32 s64, s62, 1\ns_mul_i32 s65, s62, 5\ns_lshr_b32 s65, s65, 1")
        a("v_and_b32 v2, 31, v1\nv_lshrrev_b32 v3, 5, v1")
        a(f"v_lshlrev_b32 v5, 2, v3\nv_sub_u32 v5, v2, v5\nv_mov_b32 v6, {NEGF}\nv_mov_b32 v7, 0")
        for r in range(16):
            cr = 8 * (r >> 2) + (r & 3)
            a(f"v_cmp_le_i32 vcc, {cr}, v5")
            a(f"v_cndmask_b32 v{108+r}, v6, v7, vcc\nv_cndmask_b32 v{124+r}, v7, v6, vcc")
        a("s_lshl_b32 s29, s16, 9")
        a(f"v_add_u32 v5, s64, v3\nv_mul_u32_u24 v5, {PLS}, v5\nv_lshl_add_u32 v16, v2, 4, v5\nv_add_u32 v16, s29, v16")
        a(f"s_sub_u32 s30, 1, s64\ns_mul_i32 s30, s30, {2*PLS}\ns_add_u32 s30, s30, s29\nv_lshl_add_u32 v17, v2, 4, s30")
        a("v_bfe_u32 v5, v1, 4, 1\nv_and_b32 v6, 3, v1\nv_lshl_add_u32 v5, v5, 2, v6")
        a("v_add_u32 v6, s64, v5")
        a("s_mul_i32 s30, s64, 6\nv_subrev_u32 v7, s30, v6\nv_cmp_eq_u32 vcc, 5, v5\nv_cndmask_b32 v6, v6, v7, vcc")
        a(f"v_lshrrev_b32 v7, 1, v6\nv_mul_u32_u24 v7, {PLS}, v7\nv_and_b32 v6, 1, v6\nv_lshl_add_u32 v7, v6, 3, v7")
        a("v_and_b32 v6, 1, v5\nv_lshlrev_b32 v6, 3, v6\nv_add_u32 v6, 192, v6")
        a("v_cmp_lt_u32 vcc, 5, v5\nv_cndmask_b32 v7, v7, v6, vcc")
        a("v_bfe_u32 v6, v1, 2, 2\nv_lshl_add_u32 v6, v3, 2, v6\nv_lshl_add_u32 v7, v6, 4, v7")
        a(f"s_add_u32 s30, s29, {LB_V}\nv_add_u32 v18, s30, v7")
        a("s_and_b32 s67, s18, 7\ns_lshr_b32 s68, s18, 3\ns_mul_i32 s69, s67, 160")
        a("s_and_b32 s29, s16, 3\ns_lshl_b32 s29, s29, 4\ns_lshl_b32 s30, s17, 8\ns_add_u32 s29, s29, s30\ns_lshl_b32 s30, s68, 6\ns_add_u32 s29, s29, s30")
        a("v_and_b32 v19, 15, v1\nv_add_u32 v163, s29, v19\nv_mul_u32_u24 v162, 1280, v163\nv_lshrrev_b32 v19, 4, v1\nv_lshl_add_u32 v162, v19, 3, v162")
        a("s_lshr_b32 s29, s16, 2\ns_mul_i32 s29, s29, 96\ns_add_u32 s29, s29, s69\nv_add_u32 v162, s29, v162")
        for i in range(3):
            a(f"buffer_load_dwordx2 v[{154+2*i}:{155+2*i}], v162, s[4:7], 0 offen offset:{32*i}")
        a("v_lshlrev_b32 v19, 4, v163\nbuffer_load_dwordx2 v[160:161], v19, s[12:15], 0 offen sc1")
        a(f"s_lshl_b32 s32, s65, 15\ns_add_u32 s32, s32, {WS_QKV}")
        a("s_lshl_b32 s34, s63, 8\ns_lshl_b32 s35, s16, 5\ns_add_u32 s34, s34, s35")
        a("v_add_u32 v5, s34, v2\nv_lshlrev_b32 v5, 4, v5\nv_lshl_add_u32 v6, v3, 15, v5")
        a("s_barrier")
        self.stamp(5)
        a("s_lshl_b32 s35, s64, 15\ns_add_u32 s35, s35, s32")
        a("buffer_load_dwordx4 v[8:11], v6, s[12:15], s35 offen sc1")
        a("s_sub_u32 s35, 1, s64\ns_lshl_b32 s35, s35, 16\ns_add_u32 s35, s35, s32")
        a("buffer_load_dwordx4 v[12:15], v5, s[12:15], s35 offen sc1")
        a("s_waitcnt vmcnt(0)")
        a("v_cmp_gt_u32 vcc, 32, v1\nv_mov_b32 v5, 0\nv_mov_b32 v6, 0x3f80")
        a("s_cmp_eq_u32 s64, 1\ns_cbranch_scc1 L_b_qodd")
        a("v_cndmask_b32 v12, v5, v12, vcc\nv_cndmask_b32 v13, v5, v13, vcc\nv_mov_b32 v14, 0\nv_cndmask_b32 v15, v5, v6, vcc")
        a("s_branch L_b_qd")
        a("L_b_qodd:")
        a("v_mov_b32 v12, 0\nv_cndmask_b32 v13, v5, v6, vcc\nv_cndmask_b32 v14, v5, v14, vcc\nv_cndmask_b32 v15, v5, v15, vcc")
        a("L_b_qd:")
        a(f"v_mov_b32 v5, {L_FLG}")
        self.lds_spin("v5", "v6", "s35", "ge", 2, off=8)
        self.stamp(6)
        KS = lambda kt: 20 + 8 * (kt & 1)
        VS = lambda kt: 36 + 8 * (kt & 1)
        SB = lambda kt: 52 + 16 * (kt & 1)
        def rdK(ps, kt):
            a(f"ds_read_b128 v[{KS(kt)}:{KS(kt)+3}], v16 offset:{512*kt}\nds_read_b128 v[{KS(kt)+4}:{KS(kt)+7}], v17 offset:{512*kt}")
            self.lg_issue(("K", ps, kt), 2)
        def rdV(kt):
            b = VS(kt)
            for j2 in range(2):
                for jj in range(2):
                    a(f"ds_read_b64_tr_b16 v[{b+4*j2+2*jj}:{b+4*j2+2*jj+1}], v18 offset:{512*kt+256*j2+128*jj}")
            self.lg_issue(("V", kt), 4)
        def cop(kt): return "v[124:139]" if kt == 0 else ("v[108:123]" if kt == 8 else "0")
        def qk1(kt): a(f"v_mfma_f32_32x32x16_bf16 v[{SB(kt)}:{SB(kt)+15}], v[{KS(kt)}:{KS(kt)+3}], v[8:11], {cop(kt)}")
        def qk2(kt): a(f"v_mfma_f32_32x32x16_bf16 v[{SB(kt)}:{SB(kt)+15}], v[{KS(kt)+4}:{KS(kt)+7}], v[12:15], v[{SB(kt)}:{SB(kt)+15}]")
        def maxes(kt):
            b = SB(kt)
            for i in range(8):
                acc = 140 + (i & 1)
                if kt == 0 and i < 2: a(f"v_max_f32 v{acc}, v{b+2*i}, v{b+2*i+1}")
                else: a(f"v_max3_f32 v{acc}, v{b+2*i}, v{b+2*i+1}, v{acc}")
        def ex(kt, r0, r1):
            for r in range(r0, r1): a(f"v_exp_f32 v{SB(kt)+r}, v{SB(kt)+r}")
        def cv(kt, i0, i1):
            for i in range(i0, i1): a(f"v_cvt_pk_bf16_f32 v{84+i}, v{SB(kt)+2*i}, v{SB(kt)+2*i+1}")
        self.lg_reset()
        rdK(1, 0); rdK(1, 1)
        for kt in range(9):
            self.lg_wait(("K", 1, kt))
            qk1(kt); qk2(kt)
            if kt + 2 <= 8: rdK(1, kt + 2)
            if kt == 7: rdK(2, 1)
            if kt == 8: rdK(2, 0); rdV(0); rdV(1)
            if kt >= 1: maxes(kt - 1)
        maxes(8)
        a("v_max_f32 v140, v140, v141\nv_mov_b32 v141, v140\nv_permlane32_swap_b32 v140, v141\nv_max_f32 v140, v140, v141")
        a("v_sub_f32 v140, 0, v140")
        a("v_cvt_pk_bf16_f32 v141, v140, v140\nv_lshlrev_b32 v141, 16, v141\nv_sub_f32 v141, v140, v141")
        a("v_cvt_pk_bf16_f32 v141, v140, v141")
        a("v_cmp_gt_u32 vcc, 32, v1\nv_mov_b32 v142, 0\nv_cndmask_b32 v141, v142, v141, vcc")
        a("s_cmp_eq_u32 s64, 1\ns_cbranch_scc1 L_b_mo\nv_mov_b32 v14, v141\ns_branch L_b_md\nL_b_mo:\nv_mov_b32 v12, v141\nL_b_md:")
        a("s_nop 1")
        self.lg_wait(("K", 2, 0))
        qk1(0); qk2(0)
        rdK(2, 2)
        for kt in range(9):
            if kt < 8:
                self.lg_wait(("K", 2, kt + 1)); qk1(kt + 1)
            ex(kt, 0, 4)
            if kt < 8:
                qk2(kt + 1)
                if kt + 3 <= 8: rdK(2, kt + 3)
            ex(kt, 4, 8); cv(kt, 0, 4); ex(kt, 8, 10)
            self.lg_wait(("V", kt))
            a(f"v_mfma_f32_32x32x16_bf16 v[92:107], v[{VS(kt)}:{VS(kt)+3}], v[84:87], {'0' if kt == 0 else 'v[92:107]'}")
            ex(kt, 10, 16); cv(kt, 4, 8)
            a(f"v_mfma_f32_32x32x16_bf16 v[92:107], v[{VS(kt)+4}:{VS(kt)+7}], v[88:91], v[92:107]")
            if kt + 2 <= 8: rdV(kt + 2)
        self.stamp(7)
        a("v_mov_b32 v140, v100\nv_mov_b32 v141, v100\nv_permlane32_swap_b32 v140, v141")
        a("v_rcp_f32 v141, v141")
        for r in range(12): a(f"v_mul_f32 v{92+r}, v{92+r}, v141")
        for i in range(6): a(f"v_cvt_pk_bf16_f32 v{84+i}, v{92+2*i}, v{92+2*i+1}")
        a("v_add_u32 v5, s34, v2\nv_lshlrev_b32 v5, 3, v5\nv_lshl_add_u32 v5, v3, 14, v5")
        a(f"s_mul_i32 s35, s62, {5*16384}\ns_add_u32 s35, s35, {WS_O}")
        a("buffer_store_dwordx2 v[84:85], v5, s[12:15], s35 offen sc1")
        a("s_add_u32 s35, s35, 32768\nbuffer_store_dwordx2 v[86:87], v5, s[12:15], s35 offen sc1")
        a("s_add_u32 s35, s35, 32768\ns_mov_b32 exec_hi, 0\nbuffer_store_dwordx2 v[88:89], v5, s[12:15], s35 offen sc1\ns_mov_b64 exec, -1")
        a("s_waitcnt vmcnt(0)")
        a(f"v_mov_b32 v5, {L_FLG}\nv_mov_b32 v6, 1\ns_mov_b64 exec, 1\nds_add_rtn_u32 v7, v5, v6 offset:12\ns_mov_b64 exec, -1\ns_waitcnt lgkmcnt(0)")
        a("v_readfirstlane_b32 s35, v7\ns_cmp_lg_u32 s35, 7\ns_cbranch_scc1 L_b_nf")
        a("ds_read_b32 v7, v5 offset:4\ns_waitcnt lgkmcnt(0)")
        a(f"s_lshl_b32 s35, s63, 5\ns_add_u32 s35, s35, s62\ns_lshl_b32 s35, s35, 6\ns_add_u32 s35, s35, {WS_F2}\nv_mov_b32 v6, s35")
        a("s_mov_b64 exec, 1\nbuffer_store_dword v7, v6, s[12:15], 0 offen sc1\ns_mov_b64 exec, -1")
        a("L_b_nf:")
        self.stamp(8)

    def phase_c(self):
        a = self.a
        a("; ---- phase C ----")
        self.post_srd = []
        self.srd(56, 64, 2621440)
        a("s_and_b32 s21, s16, 3\ns_lshr_b32 s22, s16, 2")
        a("v_and_b32 v2, 15, v1\nv_lshrrev_b32 v3, 4, v1\nv_mov_b32 v8, v163\nv_mov_b32 v10, v162")
        a(f"v_mov_b32 v5, {L_FLG}")
        a(f"s_mul_i32 s30, s22, {80*16384}\ns_add_u32 s30, s30, {WS_O}\nv_lshlrev_b32 v20, 3, v8\nv_lshl_add_u32 v20, v3, 15, v20")
        a("v_bfe_u32 v21, v1, 2, 2")
        a("v_lshrrev_b32 v22, 1, v21\nv_and_b32 v23, 1, v3\nv_lshl_or_b32 v22, v23, 1, v22")
        a("v_lshl_add_u32 v23, v3, 3, v21")
        a("v_and_b32 v24, 3, v1\nv_lshlrev_b32 v24, 3, v24")
        a("v_lshlrev_b32 v25, 7, v23\nv_lshl_add_u32 v25, v22, 5, v25\nv_add_u32 v25, v25, v24")
        a(f"s_mul_i32 s31, s22, {320*128}\ns_add_u32 s31, s31, {LA1}")
        a(f"s_cmp_eq_u32 s22, 0\ns_cselect_b32 s32, {LA1 + 128*128}, {LA2}")
        for nt in range(4):
            a(f"v_xor_b32 v26, {nt << 5}, v25\nv_add_u32 v{28+nt}, s31, v26\nv_add_u32 v{32+nt}, s32, v26")
        a("v_and_b32 v26, 1, v3\nv_lshlrev_b32 v26, 2, v26")
        a(f"s_mul_i32 s31, s22, {320*32}\ns_add_u32 s31, s31, {LBB}")
        for jj in range(2):
            a(f"v_xor_b32 v27, {4*jj}, v26\nv_add_u32 v27, v27, v23\nv_lshl_add_u32 v27, v27, 5, v24\nv_add_u32 v{36+jj}, s31, v27")
        a("s_waitcnt lgkmcnt(0)")
        self.srd_fin()
        a("ds_read_b32 v6, v5 offset:4\nv_lshlrev_b32 v11, 4, v8\ns_waitcnt lgkmcnt(0)")
        a("L_c_st:\nv_cmp_ne_u32 vcc, v6, v161\ns_cbranch_vccz L_c_stok")
        a("buffer_load_dwordx2 v[160:161], v11, s[12:15], 0 offen sc1\ns_waitcnt vmcnt(0)\ns_add_u32 s100, s100, 1\ns_bitcmp1_b32 s100, 21\ns_cbranch_scc0 L_c_st\nL_c_stok:")
        a("v_lshlrev_b32 v22, 16, v160\nv_and_b32 v23, 0xffff0000, v160\nv_rcp_f32 v23, v23")
        for i in range(3):
            for d in range(2):
                a(f"v_lshlrev_b32 v{40+4*i+2*d}, 16, v{154+2*i+d}\nv_and_b32 v{41+4*i+2*d}, 0xffff0000, v{154+2*i+d}")
            for d in range(2):
                e = 40 + 4 * i + 2 * d; o = 52 + 4 * i + 2 * d
                a(f"v_sub_f32 v{o}, v{e}, v22\nv_sub_f32 v{o+1}, v{e+1}, v22")
                a(f"v_cvt_pk_bf16_f32 v26, v{o}, v{o+1}\nv_lshlrev_b32 v{o}, 16, v26\nv_and_b32 v{o+1}, 0xffff0000, v26")
                a(f"v_mul_f32 v{o}, v{o}, v23\nv_mul_f32 v{o+1}, v{o+1}, v23")
                a(f"v_cvt_pk_bf16_f32 v26, v{o}, v{o+1}\nv_lshlrev_b32 v{o}, 16, v26\nv_and_b32 v{o+1}, 0xffff0000, v26")
        self.lds_spin("v5", "v6", "s35", "ge", 1, off=16)
        self.stamp(9)
        for sl in range(10):
            a(f"s_add_u32 s31, s30, {sl*8*16384}\nbuffer_load_dwordx2 v[{64+4*sl}:{65+4*sl}], v20, s[12:15], s31 offen sc1")
            a(f"s_add_u32 s31, s31, 16384\nbuffer_load_dwordx2 v[{66+4*sl}:{67+4*sl}], v20, s[12:15], s31 offen sc1")
        self.lds_spin("v5", "v6", "s35", "ge", 2, off=32)
        self.lg_reset()
        def rdW(sl):
            b = 104 + 20 * (sl & 1)
            for nt in range(4):
                ar = (28 if sl < 4 else 32) + nt
                off = (sl if sl < 4 else sl - 4) * 4096
                a(f"ds_read_b64_tr_b16 v[{b+4*nt}:{b+4*nt+1}], v{ar} offset:{off}\nds_read_b64_tr_b16 v[{b+4*nt+2}:{b+4*nt+3}], v{ar} offset:{off+512}")
            a(f"ds_read_b64_tr_b16 v[{b+16}:{b+17}], v36 offset:{1024*sl}\nds_read_b64_tr_b16 v[{b+18}:{b+19}], v37 offset:{1024*sl}")
            self.lg_issue(("W", sl), 10)
        rdW(0)
        for sl in range(10):
            if sl + 1 < 10: rdW(sl + 1)
            self.lg_wait(("W", sl))
            a(f"s_waitcnt vmcnt({2 * (9 - sl)})")
            b = 104 + 20 * (sl & 1)
            for nt in range(5):
                c = "0" if sl == 0 else f"v[{144+4*nt}:{147+4*nt}]"
                a(f"v_mfma_f32_16x16x32_bf16 v[{144+4*nt}:{147+4*nt}], v[{b+4*nt}:{b+4*nt+3}], v[{64+4*sl}:{67+4*sl}], {c}")
        a(f"s_mul_i32 s29, s16, 3072\ns_add_u32 s29, s29, {L_EX}\nv_lshlrev_b32 v26, 4, v1\nv_add_u32 v26, s29, v26")
        a("s_cmp_eq_u32 s22, 0\ns_cbranch_scc0 L_c_x1")
        a("ds_write_b128 v26, v[156:159]\nds_write_b128 v26, v[160:163] offset:1024")
        a("s_branch L_c_x2")
        a("L_c_x1:")
        a("ds_write_b128 v26, v[144:147]\nds_write_b128 v26, v[148:151] offset:1024\nds_write_b128 v26, v[152:155] offset:2048")
        for k in range(8): a(f"v_mov_b32 v{144+k}, v{156+k}")
        a("L_c_x2:")
        a(f"s_lshl_b32 s29, s16, 2\ns_add_u32 s29, s29, {L_FLG+64}\nv_mov_b32 v27, s29\nv_mov_b32 v6, 1\ns_waitcnt lgkmcnt(0)")
        a("s_mov_b64 exec, 1\nds_write_b32 v27, v6\ns_mov_b64 exec, -1")
        a(f"s_xor_b32 s31, s16, 4\ns_lshl_b32 s29, s31, 2\ns_add_u32 s29, s29, {L_FLG+64}\nv_mov_b32 v27, s29")
        self.lds_spin("v27", "v6", "s35", "ge", 1)
        a(f"s_mul_i32 s29, s31, 3072\ns_add_u32 s29, s29, {L_EX}\nv_lshlrev_b32 v26, 4, v1\nv_add_u32 v26, s29, v26")
        a("ds_read_b128 v[104:107], v26\nds_read_b128 v[108:111], v26 offset:1024\nds_read_b128 v[112:115], v26 offset:2048")
        a("s_waitcnt lgkmcnt(0)")
        for k in range(12): a(f"v_add_f32 v{144+k}, v{144+k}, v{104+k}")
        self.moe_hook()
        for i in range(3):
            if i == 2: a("s_cmp_eq_u32 s22, 1\ns_cbranch_scc1 L_c_done")
            for d in range(2):
                ac = 144 + 4 * i + 2 * d; e = 40 + 4 * i + 2 * d; o = 52 + 4 * i + 2 * d
                a(f"v_cvt_pk_bf16_f32 v26, v{ac}, v{ac+1}\nv_lshlrev_b32 v{ac}, 16, v26\nv_and_b32 v{ac+1}, 0xffff0000, v26")
                a(f"v_add_f32 v{ac}, v{ac}, v{e}\nv_add_f32 v{ac+1}, v{ac+1}, v{e+1}")
                a(f"v_cvt_pk_bf16_f32 v26, v{ac}, v{ac+1}\nv_lshlrev_b32 v{ac}, 16, v26\nv_and_b32 v{ac+1}, 0xffff0000, v26")
                a(f"v_add_f32 v{ac}, v{ac}, v{o}\nv_add_f32 v{ac+1}, v{ac+1}, v{o+1}")
                a(f"v_cvt_pk_bf16_f32 v{104+2*i+d}, v{ac}, v{ac+1}")
            a(f"buffer_store_dwordx2 v[{104+2*i}:{105+2*i}], v10, s[56:59], 0 offen offset:{32*i}")
        a("L_c_done:")

    def moe_hook(self):
        a = self.a
        self.lds_spin("v5", "v6", "s35", "ge", 1, off=20)
        a("ds_read_b64 v[26:27], v5 offset:24\nds_read_b32 v6, v5 offset:4\ns_waitcnt lgkmcnt(0)")
        a("v_cmp_eq_u32 s[30:31], v26, v8\nv_cmp_eq_u32 s[32:33], v27, v8\ns_or_b64 s[34:35], s[30:31], s[32:33]")
        a("s_cmp_eq_u64 s[34:35], 0\ns_cbranch_scc1 L_c_nomoe")
        a(f"s_lshl_b32 s29, s69, 2\ns_mul_i32 s36, s22, 384\ns_add_u32 s29, s29, s36\ns_add_u32 s29, s29, {WS_UPD}\nv_lshlrev_b32 v7, 5, v3")
        a("L_c_upd:")
        for i in range(3):
            a(f"buffer_load_dwordx4 v[{104+8*i}:{107+8*i}], v7, s[12:15], s29 offen offset:{128*i} sc1")
            a(f"buffer_load_dwordx4 v[{108+8*i}:{111+8*i}], v7, s[12:15], s29 offen offset:{128*i+16} sc1")
        a("s_waitcnt vmcnt(0)")
        a("v_cmp_ne_u32 vcc, v6, v105")
        regs = [105 + 2 * k for k in range(1, 8)]
        for r in regs: a(f"v_cmp_ne_u32 s[36:37], v6, v{r}\ns_or_b64 vcc, vcc, s[36:37]")
        L = a.label("u3")
        a(f"s_cmp_eq_u32 s22, 1\ns_cbranch_scc1 {L}")
        for r in [121, 123, 125, 127]: a(f"v_cmp_ne_u32 s[36:37], v6, v{r}\ns_or_b64 vcc, vcc, s[36:37]")
        a(f"{L}:")
        a("s_and_b64 vcc, vcc, s[34:35]\ns_cbranch_vccz L_c_upd_o\ns_add_u32 s100, s100, 1\ns_bitcmp1_b32 s100, 21\ns_cbranch_scc0 L_c_upd\nL_c_upd_o:")
        for i in range(3):
            for e in range(4):
                g = 104 + 8 * i + 2 * e; o = 52 + 4 * i + e
                a(f"v_lshlrev_b32 v26, 16, v{g}\nv_and_b32 v27, 0xffff0000, v{g}\nv_cndmask_b32 v26, v27, v26, s[30:31]")
                a(f"v_add_f32 v26, v{o}, v26\nv_cvt_pk_bf16_f32 v26, v26, v26\nv_lshlrev_b32 v26, 16, v26\nv_cndmask_b32 v{o}, v{o}, v26, s[34:35]")
        a("L_c_nomoe:")

    def moe_aux(self):
        a = self.a
        L_XS = L_MISC; L_H = L_MISC
        self.post_srd = []
        self.srd(52, 56, 1966080)
        a("s_waitcnt lgkmcnt(0)")
        self.srd_fin()
        def wd_dma():
            a("s_mul_i32 s29, s17, 10\ns_add_u32 s29, s29, s18\ns_sub_u32 s29, s29, 22\ns_lshl_b32 s29, s29, 4")
            a("v_mul_u32_u24 v6, 1280, v1\nv_add_u32 v6, s29, v6")
            for i in range(24):
                a(f"s_mov_b32 m0, {L_AUX + 1024*i + (64 if i >= 12 else 0)}\ns_mov_b32 s30, {i*81920}\nbuffer_load_dwordx4 v6, s[52:55], s30 offen lds")
        a(f"v_lshlrev_b32 v6, 4, v1\nv_add_u32 v6, {WS_FR}, v6")
        a("L_m_fr:")
        for i in range(4): a(f"buffer_load_dwordx4 v[{16+4*i}:{19+4*i}], v6, s[12:15], 0 offen offset:{1024*i} sc1")
        a("s_waitcnt vmcnt(0)")
        a("v_cmp_ne_u32 vcc, s61, v17")
        for r in (19, 21, 23, 25, 27, 29, 31): a(f"v_cmp_ne_u32 s[62:63], s61, v{r}\ns_or_b64 vcc, vcc, s[62:63]")
        a("s_cbranch_vccz L_m_fr_o\ns_add_u32 s100, s100, 1\ns_bitcmp1_b32 s100, 21\ns_cbranch_scc0 L_m_fr\nL_m_fr_o:")
        a("v_mov_b32 v8, v16\nv_mov_b32 v10, v18")
        for i in range(1, 4): self.top2_merge("v8", "v10", f"v{16+4*i}", f"v{18+4*i}", "v14")
        self.top2_wave("v8", "v10", "v12", "v13", "v14")
        a("v_readfirstlane_b32 s64, v8\nv_readfirstlane_b32 s65, v10")
        a("s_and_b32 s66, s64, 0x7ff\ns_sub_u32 s66, 2047, s66\ns_and_b32 s67, s65, 0x7ff\ns_sub_u32 s67, 2047, s67")
        a(f"v_mov_b32 v6, {L_FLG}\nv_mov_b32 v12, s66\nv_mov_b32 v13, s67\nv_mov_b32 v14, 1\nds_write_b64 v6, v[12:13] offset:24\ns_waitcnt lgkmcnt(0)\nds_write_b32 v6, v14 offset:20")
        for k, d in (("s64", "s68"), ("s65", "s69")):
            a(f"s_lshr_b32 s29, {k}, 16\ns_and_b32 s30, s29, 0x7fff\ns_xor_b32 s31, s29, 0xffff\ns_bitcmp1_b32 s29, 15\ns_cselect_b32 {d}, s30, s31\ns_lshl_b32 {d}, {d}, 16")
        self.stamp(5)
        a("s_cmp_ge_u32 s18, 24\ns_cbranch_scc1 L_m_y")
        a("v_cmp_gt_u32 vcc, 32, v1\nv_mov_b32 v6, s67\nv_mov_b32 v7, s66\nv_cndmask_b32 v6, v6, v7, vcc")
        a("v_and_b32 v7, 31, v1\nv_mul_u32_u24 v8, 1280, v6\nv_lshl_add_u32 v8, v7, 3, v8\nv_lshlrev_b32 v9, 4, v6")
        for i in range(5): a(f"buffer_load_dwordx2 v[{16+2*i}:{17+2*i}], v8, s[4:7], 0 offen offset:{256*i}")
        a("s_mul_i32 s29, s17, 24\ns_add_u32 s29, s29, s18\ns_mov_b32 s57, s29")
        a("L_m_st:\nbuffer_load_dwordx2 v[14:15], v9, s[12:15], 0 offen sc1\ns_waitcnt vmcnt(0)")
        a("v_cmp_ne_u32 vcc, s61, v15\ns_cbranch_vccz L_m_st_o\ns_add_u32 s100, s100, 1\ns_bitcmp1_b32 s100, 21\ns_cbranch_scc0 L_m_st\nL_m_st_o:")
        a("v_mov_b32 v15, v14")
        a("v_lshlrev_b32 v12, 16, v15\nv_and_b32 v13, 0xffff0000, v15\nv_rcp_f32 v13, v13")
        a(f"v_lshrrev_b32 v14, 5, v1\nv_mul_u32_u24 v14, 1280, v14\nv_lshl_add_u32 v14, v7, 3, v14\nv_add_u32 v14, {L_XS}, v14")
        for i in range(5):
            for d in range(2):
                r = 16 + 2 * i + d
                a(f"v_lshlrev_b32 v30, 16, v{r}\nv_and_b32 v31, 0xffff0000, v{r}\nv_sub_f32 v30, v30, v12\nv_sub_f32 v31, v31, v12")
                a("v_cvt_pk_bf16_f32 v32, v30, v31\nv_lshlrev_b32 v30, 16, v32\nv_and_b32 v31, 0xffff0000, v32")
                a(f"v_mul_f32 v30, v30, v13\nv_mul_f32 v31, v31, v13\nv_cvt_pk_bf16_f32 v{r}, v30, v31")
            a(f"ds_write_b64 v14, v[{16+2*i}:{17+2*i}] offset:{256*i}")
        a(f"v_and_b32 v30, 1, v1\nv_mul_u32_u24 v30, 1280, v30\nv_lshrrev_b32 v31, 4, v1\nv_lshl_add_u32 v30, v31, 4, v30\nv_add_u32 v30, {L_XS}, v30")
        a("v_bfe_u32 v32, v1, 2, 2\nv_lshl_add_u32 v32, v31, 3, v32\nv_lshlrev_b32 v32, 4, v32\nv_and_b32 v33, 1, v1\nv_lshl_add_u32 v32, v33, 3, v32")
        a(f"v_bfe_u32 v33, v1, 1, 1\nv_mul_u32_u24 v33, 10304, v33\nv_add3_u32 v32, v32, v33, {L_AUX}") if False else None
        a(f"v_bfe_u32 v33, v1, 1, 1\nv_mul_u32_u24 v33, 10304, v33\nv_add_u32 v32, v32, v33\nv_add_u32 v32, {L_AUX}, v32")
        a(f"v_mov_b32 v6, {L_FLG}\ns_waitcnt lgkmcnt(0)")
        self.lds_spin("v6", "v7", "s35", "ge", 2, off=36)
        self.small_gemm(20, 64, 64, 512)
        for c in range(2):
            d = 40 + c
            a(f"v_cvt_pk_bf16_f32 v{d}, v{d}, v{d}\nv_lshlrev_b32 v{d}, 16, v{d}")
            a(f"v_mov_b32_dpp v{44+c}, v{d} row_ror:8 row_mask:0xf bank_mask:0xf")
            a(f"v_mul_f32 v46, {f32hex(-1.4426950408889634)}, v{d}\nv_exp_f32 v46, v46\nv_add_f32 v46, 1.0, v46\nv_rcp_f32 v46, v46\nv_mul_f32 v46, v{d}, v46")
            a(f"v_cvt_pk_bf16_f32 v46, v46, v46\nv_lshlrev_b32 v46, 16, v46\nv_mul_f32 v{d}, v46, v{44+c}")
        a("v_cvt_pk_bf16_f32 v48, v40, v41\nv_mov_b32 v49, s61")
        a(f"s_lshl_b32 s29, s57, 6\ns_add_u32 s29, s29, {WS_XH}\nv_lshlrev_b32 v6, 3, v1\ns_mov_b64 exec, 0xff")
        a("buffer_store_dwordx2 v[48:49], v6, s[12:15], s29 offen sc1\ns_mov_b64 exec, -1")
        self.stamp(6)
        a("s_cmp_lt_u32 s18, 22\ns_cbranch_scc1 L_m_end")
        wd_dma()
        a("L_m_y:")
        a(f"v_lshlrev_b32 v6, 4, v1\nv_lshlrev_b32 v7, 2, v1\nv_add_u32 v7, {L_H}, v7")
        a("L_m_xh:")
        for i in range(12):
            a(f"s_mov_b32 s30, {WS_XH + 1024*i}\nbuffer_load_dwordx4 v[{64+4*i}:{67+4*i}], v6, s[12:15], s30 offen sc1")
        a("s_waitcnt vmcnt(0)")
        a("v_cmp_ne_u32 vcc, s61, v65")
        for r in [65 + 2 * k for k in range(1, 24)]: a(f"v_cmp_ne_u32 s[62:63], s61, v{r}\ns_or_b64 vcc, vcc, s[62:63]")
        a("s_cbranch_vccz L_m_xhok\ns_sleep 4\ns_add_u32 s100, s100, 1\ns_bitcmp1_b32 s100, 21\ns_cbranch_scc0 L_m_xh\nL_m_xhok:")
        for i in range(12):
            A, B = 64 + 4 * i, 66 + 4 * i
            a(f"v_and_b32 v12, 0xffff, v{A}\nv_lshl_or_b32 v12, v{B}, 16, v12\nv_lshrrev_b32 v13, 16, v{A}\nv_and_or_b32 v13, v{B}, s28, v13")
            a(f"ds_write_b32 v7, v12 offset:{256*i}\nds_write_b32 v7, v13 offset:{3072+256*i}")
        a(f"v_and_b32 v30, 1, v1\nv_mul_u32_u24 v30, 3072, v30\nv_bfe_u32 v33, v1, 1, 1\nv_mul_u32_u24 v33, 1536, v33\nv_lshrrev_b32 v31, 4, v1")
        a(f"v_lshl_add_u32 v30, v31, 4, v30\nv_add_u32 v30, v30, v33\nv_add_u32 v30, {L_H}, v30")
        a("v_bfe_u32 v32, v1, 2, 2\nv_lshl_add_u32 v32, v31, 3, v32\nv_lshlrev_b32 v32, 4, v32\nv_and_b32 v33, 1, v1\nv_lshl_add_u32 v32, v33, 3, v32")
        a(f"v_bfe_u32 v33, v1, 1, 1\nv_mul_u32_u24 v33, 12352, v33\nv_add_u32 v32, v32, v33\nv_add_u32 v32, {L_AUX}, v32")
        a(f"v_mov_b32 v6, {L_FLG}\ns_waitcnt vmcnt(0) lgkmcnt(0)")
        self.lds_spin("v6", "v7", "s35", "ge", 2, off=36)
        self.small_gemm(24, 64, 64, 512)
        for c in range(2):
            a(f"v_mov_b32_dpp v44, v{42+c} row_ror:8 row_mask:0xf bank_mask:0xf\nv_add_f32 v{40+c}, v{40+c}, v44")
            a(f"v_cvt_pk_bf16_f32 v{40+c}, v{40+c}, v{40+c}\nv_lshlrev_b32 v{40+c}, 16, v{40+c}")
            sr = "s68" if c == 0 else "s69"
            a(f"v_mov_b32 v46, {sr}\nv_mul_f32 v46, {f32hex(-1.4426950408889634)}, v46\nv_exp_f32 v46, v46\nv_add_f32 v46, 1.0, v46\nv_rcp_f32 v46, v46")
            a(f"v_cvt_pk_bf16_f32 v46, v46, v46\nv_lshlrev_b32 v46, 16, v46\nv_mul_f32 v{40+c}, v{40+c}, v46")
        a("v_cvt_pk_bf16_f32 v48, v40, v41\nv_mov_b32 v49, s61")
        a(f"s_mul_i32 s29, s17, 10\ns_add_u32 s29, s29, s18\ns_sub_u32 s29, s29, 22\ns_lshl_b32 s29, s29, 6\ns_add_u32 s29, s29, {WS_UPD}\nv_lshlrev_b32 v6, 3, v1\ns_mov_b64 exec, 0xff")
        a("buffer_store_dwordx2 v[48:49], v6, s[12:15], s29 offen sc1\ns_mov_b64 exec, -1")
        self.stamp(7)
        a("L_m_end:")

    def small_gemm(self, nk, astride, jjoff, bstride):
        a = self.a
        self.lg_reset()
        def rd(s_):
            b = 50 + 8 * (s_ % 3)
            a(f"ds_read_b128 v[{b}:{b+3}], v30 offset:{astride*s_}")
            a(f"ds_read_b64_tr_b16 v[{b+4}:{b+5}], v32 offset:{bstride*s_}\nds_read_b64_tr_b16 v[{b+6}:{b+7}], v32 offset:{bstride*s_+jjoff}")
            self.lg_issue(("G", s_), 3)
        rd(0); rd(1)
        for s_ in range(nk):
            if s_ + 2 < nk: rd(s_ + 2)
            self.lg_wait(("G", s_))
            b = 50 + 8 * (s_ % 3)
            a(f"v_mfma_f32_16x16x32_bf16 v[40:43], v[{b}:{b+3}], v[{b+4}:{b+7}], {'0' if s_ == 0 else 'v[40:43]'}")

    def aux(self):
        a = self.a
        a("L_aux:")
        self.post_srd = []
        self.srd(40, 72, 256)
        a("v_mov_b32 v2, 0")
        a(f"v_lshlrev_b32 v6, 2, v1\nv_add_u32 v6, {L_FLG}, v6\ns_mov_b32 exec_hi, 0\nds_write_b32 v6, v2\ns_mov_b64 exec, -1")
        a("s_memrealtime s[54:55]")
        a("s_lshl_b32 s23, s46, 2\ns_add_u32 s23, s23, s20")
        a("s_waitcnt lgkmcnt(0)")
        self.srd_fin()
        self.stamp(0)
        a("v_mov_b32 v9, 0")
        a("s_cmp_lg_u32 s2, 0\ns_cbranch_scc1 L_x_non")
        a("s_or_b32 s54, s54, 1\nv_mov_b32 v10, s54\ns_mov_b64 exec, 1\nbuffer_store_dword v10, v9, s[40:43], 0 offen sc1\ns_mov_b64 exec, -1")
        a("L_x_non:")
        a("s_getreg_b32 s52, hwreg(HW_REG_XCC_ID, 0, 4)")
        a("s_and_b32 s52, s52, 7\ns_or_b32 s52, s52, 16\ns_mov_b32 s28, 0xffff0000")
        a("s_barrier")
        a("buffer_load_dword v10, v9, s[40:43], 0 offen sc1")
        def get_nonce():
            a("s_waitcnt vmcnt(0)")
            a("L_x_wn:\nv_cmp_ne_u32 vcc, 0, v10\ns_cbranch_vccnz L_x_gotn")
            a("buffer_load_dword v10, v9, s[40:43], 0 offen sc1\ns_waitcnt vmcnt(0)\ns_add_u32 s100, s100, 1\ns_bitcmp1_b32 s100, 21\ns_cbranch_scc0 L_x_wn")
            a("L_x_gotn:")
            a("v_readfirstlane_b32 s61, v10")
            a(f"v_mov_b32 v6, {L_FLG}\nds_write_b32 v6, v10 offset:4")
            a(f"s_lshl_b32 s31, s17, 5\ns_add_u32 s31, s31, s18\ns_lshl_b32 s31, s31, 4\ns_add_u32 s31, s31, {WS_XF}")
            a("v_mov_b32 v14, s52\nv_mov_b32 v15, v10\ns_mov_b64 exec, 1\nbuffer_store_dwordx2 v[14:15], v9, s[12:15], s31 offen sc1\ns_mov_b64 exec, -1")
            self.stamp(1)
        def pub_st():
            a(f"v_and_b32 v12, 7, v1\nv_lshlrev_b32 v13, 3, v12\nv_add_u32 v13, {L_OWN}, v13\nds_read_b64 v[18:19], v13")
            a("s_lshl_b32 s29, s23, 3\ns_lshl_b32 s30, s19, 7\ns_add_u32 s29, s29, s30\ns_lshl_b32 s29, s29, 4")
            a("v_lshlrev_b32 v12, 4, v1\nv_mov_b32 v21, s61\nv_mov_b32 v23, s61")
            a("s_waitcnt lgkmcnt(0)\nv_mov_b32 v20, v18\nv_mov_b32 v22, v19")
            a("s_mov_b64 exec, 0xff\nbuffer_store_dwordx4 v[20:23], v12, s[12:15], s29 offen sc1\ns_mov_b64 exec, -1")
            a("v_cmp_gt_u32 vcc, 8, v1\nv_mov_b32 v30, 0\nv_cndmask_b32 v30, v30, v19, vcc\nv_mov_b32 v32, 0")
            for ctrl in ("quad_perm:[1,0,3,2]", "quad_perm:[2,3,0,1]", "row_half_mirror"):
                a(f"v_mov_b32_dpp v34, v30 {ctrl} row_mask:0xf bank_mask:0xf\nv_mov_b32_dpp v35, v32 {ctrl} row_mask:0xf bank_mask:0xf")
                self.top2_merge("v30", "v32", "v34", "v35", "v36")
            a(f"s_lshl_b32 s29, s2, 4\ns_add_u32 s29, s29, {WS_FR}\nv_mov_b32 v28, s29\nv_mov_b32 v31, s61\nv_mov_b32 v33, s61")
            a("s_mov_b64 exec, 1\nbuffer_store_dwordx4 v[30:33], v28, s[12:15], 0 offen sc1\ns_mov_b64 exec, -1")
        def gather_issue():
            a(f"s_lshl_b32 s29, s19, 11\ns_add_u32 s29, s29, {WS_ST}\nv_lshlrev_b32 v9, 5, v1")
            a("buffer_load_dwordx4 v[40:43], v9, s[12:15], s29 offen sc1")
            a("buffer_load_dwordx4 v[44:47], v9, s[12:15], s29 offen offset:16 sc1")
            a(f"s_lshl_b32 s31, s17, 9\ns_add_u32 s31, s31, {WS_XF}\nv_and_b32 v16, 31, v1\nv_lshlrev_b32 v16, 4, v16")
            a("buffer_load_dwordx2 v[18:19], v16, s[12:15], s31 offen sc1")
        def gather_check(Lok):
            a("s_waitcnt vmcnt(0)")
            a("v_cmp_ne_u32 vcc, s61, v41\nv_cmp_ne_u32 s[62:63], s61, v45\ns_or_b64 vcc, vcc, s[62:63]")
            if "nocheck" in self.opts: a(f"s_branch {Lok}")
            a(f"s_cbranch_vccz {Lok}")
        tst = self.b_stats
        for t in range(9):
            a("s_barrier")
            if t == 1: get_nonce()
            if t == tst: pub_st()
            if t == max(self.TG, tst + 2): gather_issue()
        gather_check("L_x_gdone")
        a("L_x_gretry:")
        gather_issue()
        gather_check("L_x_gdone")
        self.guard("L_x_gretry")
        a("L_x_gdone:")
        a("v_lshlrev_b32 v24, 16, v40\nv_and_b32 v25, 0xffff0000, v40\nv_lshlrev_b32 v26, 16, v44\nv_and_b32 v27, 0xffff0000, v44")
        a("v_rcp_f32 v25, v25\nv_rcp_f32 v27, v27")
        a(f"v_lshlrev_b32 v28, 4, v1\nv_add_u32 v28, {L_STAT}, v28")
        a("ds_write_b128 v28, v[24:27]")
        a("s_waitcnt vmcnt(0)")
        a("v_cmp_ne_u32 vcc, s52, v18\nv_cmp_ne_u32 s[62:63], s61, v19\ns_or_b64 vcc, vcc, s[62:63]")
        a("s_cmp_eq_u64 vcc, 0\ns_cselect_b32 s56, 1, 0")
        a("s_and_b32 s57, s19, 14\ns_cmp_eq_u32 s57, 6\ns_cselect_b32 s56, 0, s56")
        if "slow" in self.opts: a("s_mov_b32 s56, 0")
        a(f"v_mov_b32 v28, {L_FLG}\nv_mov_b32 v29, s56\nds_write_b32 v28, v29\ns_waitcnt lgkmcnt(0)")
        self.stamp(2)
        a("s_barrier")
        a("s_barrier")
        self.stamp(3)
        a(f"s_lshl_b32 s29, s46, 6\ns_lshl_b32 s30, s19, 2\ns_add_u32 s29, s29, s30\ns_add_u32 s29, s29, s20\ns_lshl_b32 s29, s29, 6\ns_add_u32 s29, s29, {WS_F1}")
        a("v_mov_b32 v6, s29\nv_mov_b32 v7, s61\ns_mov_b64 exec, 1")
        a("s_cmp_eq_u32 s56, 1\ns_cbranch_scc1 L_x_f1f")
        a("buffer_store_dword v7, v6, s[12:15], 0 offen sc1\ns_branch L_x_f1d")
        a("L_x_f1f:\nbuffer_store_dword v7, v6, s[12:15], 0 offen\nL_x_f1d:\ns_mov_b64 exec, -1")
        if self.stop_after != "a":
            a("s_lshr_b32 s63, s18, 3\ns_lshl_b32 s29, s47, 2\ns_add_u32 s63, s63, s29")
            a(f"s_lshl_b32 s29, s46, 6\ns_lshl_b32 s30, s63, 3\ns_add_u32 s29, s29, s30\ns_sub_u32 s29, s29, 8\ns_lshl_b32 s29, s29, 6\ns_add_u32 s29, s29, {WS_F1}")
            a("v_and_b32 v6, 15, v1\ns_cmp_eq_u32 s63, 0\ns_cselect_b32 s30, 8, 0\nv_max_u32 v6, s30, v6\nv_lshlrev_b32 v6, 6, v6")
            a("L_x_p1:\nbuffer_load_dword v8, v6, s[12:15], s29 offen sc1\ns_waitcnt vmcnt(0)")
            a("v_cmp_ne_u32 vcc, s61, v8\ns_cbranch_vccz L_x_p1_o\ns_add_u32 s100, s100, 1\ns_bitcmp1_b32 s100, 21\ns_cbranch_scc0 L_x_p1\nL_x_p1_o:")
        a("s_barrier")
        self.stamp(4)
        if self.stop_after is None:
            a("s_mov_b32 s28, 0xffff0000\ns_setprio 3")
            if self.stamps:
                for k in (5, 6, 7): a(f"s_mov_b64 s[{72+2*k}:{73+2*k}], 0")
            self.moe_aux()
        if "lstamp" not in self.opts and "lloop" not in self.opts: self.fin_stamps(8 if self.stop_after is None else 5, wave=10, slot=1)
        a("s_endpgm")

if __name__ == "__main__":
    import argparse
    ap = argparse.ArgumentParser()
    ap.add_argument("-o", default="k.s")
    ap.add_argument("--stamps", action="store_true")
    ap.add_argument("--opt", action="append", default=[])
    args = ap.parse_args()
    g = Gen(stamps=args.stamps, opts=args.opt)
    open(args.o, "w").write(g.build())
    print("wrote", args.o)
```

```python
import sys, struct
from asmlib import Asm

KNAME = "parallel_sum__sliding_block__moe_arch_mod__prompt_kernel"

WS_ST = 0
WS_CSP = 0x8000
WS_F1 = 0x48000
WS_F2 = 0x4C000
WS_FR = 0x57000
WS_XF = 0x50400
WS_XH = 0x52000
WS_UPD = 0x55000
WS_QKV = 0x100000
WS_O = 0x900000
WS_DBG = 0xC00000
WS_SIZE = 0xD00000
L_MISC = 131072
L_STAT = L_MISC
L_CS = L_MISC + 1024
L_CSW = L_MISC + 2176
L_OWN = L_MISC + 2048
L_FLG = L_MISC + 6400
L_AUX = 138240
LB_K = 0
LB_V = 24768
PLS = 8256
LA1 = 49664
LBB = 107008
LA2 = 0
L_EX = 24832
LQ = 107008
NEGF = "0xf149f2ca"
LDS_BYTES = 163840
QSCALE = 0.22360679774997896 * 1.4426950408889634

def f32hex(x):
    return "0x%08x" % struct.unpack("<I", struct.pack("<f", x))[0]

class Gen:
    def __init__(self, stop_after=None, stamps=False, opts=()):
        self.a = Asm()
        self.opts = set(opts)
        self.stop_after = stop_after
        self.stamps = stamps
        self.in_main = False
        self.swave = 0; self.quota = 24; self.TG = 6; self.TP = 1; self.SIDE0 = 1; self.Q0 = 50; self.Q1 = 100; self.LM0 = 1; self.PRE = 3
        for o in self.opts:
            if o.startswith("swave="): self.swave = int(o[6:])
            if o.startswith("quota="): self.quota = int(o[6:])
            if o.startswith("pre="): self.PRE = int(o[4:])
            if o.startswith("tg="): self.TG = int(o[3:])
            if o.startswith("side0="): self.SIDE0 = int(o[6:])
            if o.startswith("tp="): self.TP = int(o[3:])
            if o.startswith("q0="): self.Q0 = int(o[3:])
            if o.startswith("q1="): self.Q1 = int(o[3:])
            if o.startswith("lm0="): self.LM0 = int(o[4:])
            if o.startswith("stop="): self.stop_after = o[5:]

    def srd(self, base, kofs, size):
        self.a(f"s_load_dwordx2 s[{base}:{base+1}], s[0:1], {kofs}")
        self.post_srd.append((base, size))
    def srd_fin(self):
        for base, size in self.post_srd:
            self.a(f"s_mov_b32 s{base+2}, {size}\ns_mov_b32 s{base+3}, 0x20000")
        self.post_srd = []
    def stamp(self, idx):
        if self.stamps and self.in_main and "bst" in self.opts and idx != 0: return
        if self.stamps:
            self.a(f"s_memrealtime s[{72+2*idx}:{73+2*idx}]")
            if idx == 0: self.a("s_memtime s[96:97]")
    def fin_stamps(self, n, wave=0, slot=0):
        if not self.stamps: return
        a = self.a
        L = a.label("nostamp")
        a("s_memtime s[98:99]")
        a("s_waitcnt lgkmcnt(0)")
        a(f"s_cmp_lg_u32 s16, {wave}\ns_cbranch_scc1 {L}")
        a(f"s_lshl_b32 s29, s2, 8\ns_add_u32 s29, s29, {WS_DBG + 128*slot}\nv_mov_b32 v4, s29\ns_mov_b64 exec, 1")
        for i in range(n):
            a(f"v_mov_b32 v6, s{72+2*i}\nv_mov_b32 v7, s{73+2*i}\nbuffer_store_dwordx2 v[6:7], v4, s[12:15], 0 offen offset:{8*i}")
        a("s_sub_u32 s98, s98, s96\nv_mov_b32 v6, s98\nv_mov_b32 v7, 0\nbuffer_store_dwordx2 v[6:7], v4, s[12:15], 0 offen offset:120")
        a(f"s_mov_b64 exec, -1\n{L}:")

    def top2_merge(self, a1, a2, b1, b2, mn):
        a = self.a
        a(f"v_min_u32 {mn}, {a1}, {b1}")
        a(f"v_max_u32 {a1}, {a1}, {b1}")
        a(f"v_max3_u32 {a2}, {a2}, {b2}, {mn}")
    def top2_wave(self, a1, a2, b1, b2, mn):
        a = self.a
        for ctrl in ("quad_perm:[1,0,3,2]", "quad_perm:[2,3,0,1]", "row_half_mirror", "row_mirror"):
            a(f"v_mov_b32_dpp {b1}, {a1} {ctrl} row_mask:0xf bank_mask:0xf")
            a(f"v_mov_b32_dpp {b2}, {a2} {ctrl} row_mask:0xf bank_mask:0xf")
            self.top2_merge(a1, a2, b1, b2, mn)
        for sw in ("v_permlane16_swap_b32", "v_permlane32_swap_b32"):
            a(f"v_mov_b32 {b1}, {a1}\nv_mov_b32 {b2}, {a2}")
            a(f"{sw} {a1}, {b1}\n{sw} {a2}, {b2}")
            self.top2_merge(a1, a2, b1, b2, mn)
    def sum_wave_lines(self, regs, tmps):
        out = []
        for ctrl in ("quad_perm:[1,0,3,2]", "quad_perm:[2,3,0,1]", "row_half_mirror", "row_mirror"):
            for r in regs: out.append(f"v_add_f32_dpp {r}, {r}, {r} {ctrl} row_mask:0xf bank_mask:0xf")
        for sw in ("v_permlane16_swap_b32", "v_permlane32_swap_b32"):
            for r, t in zip(regs, tmps): out.append(f"v_mov_b32 {t}, {r}")
            for r, t in zip(regs, tmps): out.append(f"{sw} {r}, {t}")
            for r, t in zip(regs, tmps): out.append(f"v_add_f32 {r}, {r}, {t}")
        return out
    @staticmethod
    def bf16r(dst, src):
        return [f"v_cvt_pk_bf16_f32 {dst}, {src}, {src}", f"v_lshlrev_b32 {dst}, 16, {dst}"]
    @staticmethod
    def key_lines(rf, row, dst, t1, t2):
        return [f"v_cvt_pk_bf16_f32 {dst}, {rf}, {rf}", f"v_and_b32 {dst}, 0xffff, {dst}",
                f"v_or_b32 {t1}, 0x8000, {dst}", f"v_xor_b32 {t2}, 0xffff, {dst}",
                f"v_cmp_lt_u32 vcc, 0x7fff, {dst}\nv_cndmask_b32 {dst}, {t1}, {t2}, vcc",
                f"v_mov_b32 {t1}, 0",
                f"v_cmp_u_f32 vcc, {rf}, {rf}\nv_cndmask_b32 {dst}, {dst}, {t1}, vcc",
                f"v_sub_u32 {t1}, 0xfff, {row}", f"v_lshl_or_b32 {dst}, {dst}, 16, {t1}"]
    def guard(self, L):
        self.a(f"s_add_u32 s100, s100, 1\ns_bitcmp1_b32 s100, 21\ns_cbranch_scc0 {L}")
    def lds_spin(self, vaddr, vtmp, stmp, cmp_, val, off=0):
        a = self.a
        L = a.label("spin")
        a(f"{L}:\nds_read_b32 {vtmp}, {vaddr} offset:{off}\ns_waitcnt lgkmcnt(0)")
        Lo = a.label("spino")
        a(f"v_readfirstlane_b32 {stmp}, {vtmp}\ns_cmp_{cmp_}_u32 {stmp}, {val}\ns_cbranch_scc1 {Lo}")
        self.guard(L)
        a(f"{Lo}:")

    def build(self):
        a = self.a
        a.raw(f"; @launch grid=(256,1,1) block=(704,1,1) lds={LDS_BYTES}")
        a.raw('.amdgcn_target "amdgcn-amd-amdhsa--gfx950"')
        a.raw(".text")
        a.raw(f".globl {KNAME}")
        a.raw(".p2align 8")
        a.raw(f".type {KNAME},@function")
        a.raw(f"{KNAME}:")
        self.post_srd = []
        a("s_cmp_ge_u32 s2, 256\ns_cbranch_scc1 L_end")
        self.srd(4, 0, 2621440)
        self.srd(8, 8, 2457600)
        self.srd(12, 80, WS_SIZE)
        self.srd(36, 32, 1280)
        a("v_and_b32 v1, 63, v0\nv_lshrrev_b32 v2, 6, v0\ns_mov_b32 s100, 0")
        a("s_and_b32 s17, s2, 7\ns_lshr_b32 s18, s2, 3")
        a("v_readfirstlane_b32 s16, v2")
        a("s_and_b32 s46, s17, 3\ns_lshr_b32 s47, s17, 2\ns_lshr_b32 s48, s18, 2\ns_and_b32 s20, s18, 3")
        a("s_lshl_b32 s19, s47, 3\ns_add_u32 s19, s19, s48")
        self.srd_fin()
        a("s_cmp_eq_u32 s16, 10\ns_cbranch_scc1 L_aux")
        a("s_cmp_ge_u32 s16, 8\ns_cbranch_scc1 L_loader")
        self.in_main = True
        self.phase_a()
        self.in_main = False
        a("L_end:\ns_endpgm")
        self.loader()
        self.aux()
        a.raw(".section .rodata,\"a\"\n.p2align 6")
        a.raw(f".amdhsa_kernel {KNAME}")
        a.raw("  .amdhsa_next_free_vgpr 168\n  .amdhsa_next_free_sgpr 102\n  .amdhsa_accum_offset 168")
        a.raw("  .amdhsa_group_segment_fixed_size 0\n  .amdhsa_kernarg_size 88\n  .amdhsa_user_sgpr_count 2")
        a.raw("  .amdhsa_user_sgpr_kernarg_segment_ptr 1\n  .amdhsa_system_sgpr_workgroup_id_x 1")
        a.raw("  .amdhsa_float_denorm_mode_32 3\n  .amdhsa_float_denorm_mode_16_64 3")
        a.raw(".end_amdhsa_kernel")
        return a.finalize()

    NST = 20
    def dma_x(self, m, half):
        self.a(f"s_add_u32 m0, s26, {(m & 3) * 16384 + 1024 * half}\ns_nop 0")
        self.a(f"buffer_load_dwordx4 v{10 if half == 0 else 9}, s[4:7], s58 offen lds")
        if half == 1: self.a("s_add_u32 s58, s58, 128\ns_cmp_eq_u32 s58, 1280\ns_cselect_b32 s58, 0, s58")
        self.vm_seq.append(("X", m))
    def dma_w(self, t):
        self.a(f"s_add_u32 m0, s27, {(t & 7) * 8192}\ns_mov_b64 exec, s[24:25]")
        self.a("buffer_load_dwordx4 v11, s[8:11], s59 offen lds\ns_mov_b64 exec, -1")
        self.a(f"s_add_u32 s59, s59, 122880\ns_cmp_eq_u32 s59, {20*122880}\ns_cselect_b32 s59, 0, s59")
        self.vm_seq.append(("W", t))
    def vm_need(self, needs):
        if not any(op in needs for op in self.vm_seq): return 0
        last = max(i for i, op in enumerate(self.vm_seq) if op in needs)
        return len(self.vm_seq) - 1 - last
    def a_read_list(self, n):
        if "noreads" in self.opts: return []
        t, s = n >> 1, n & 1
        m, s4 = n >> 2, n & 3
        xo = (m & 3) * 16384
        wo = (t & 7) * 8192 + 4096 * s
        fs = 24 + 16 * (n % 3)
        return [f"ds_read_b128 v[{fs}:{fs+3}], v{12+s4} offset:{xo}",
                f"ds_read_b64_tr_b16 v[{fs+8}:{fs+9}], v16 offset:{wo}",
                f"ds_read_b64_tr_b16 v[{fs+10}:{fs+11}], v16 offset:{wo+1024}",
                f"ds_read_b128 v[{fs+4}:{fs+7}], v{12+s4} offset:{xo+4096}",
                f"ds_read_b64_tr_b16 v[{fs+12}:{fs+13}], v17 offset:{wo}",
                f"ds_read_b64_tr_b16 v[{fs+14}:{fs+15}], v17 offset:{wo+1024}"]
    def a_reads(self, n):
        for l in self.a_read_list(n): self.a(l)
    def col_oct(self, gam, dst, t):
        a = self.a
        a(f"s_mul_i32 {t}, {gam}, 13\ns_lshr_b32 {t}, {t}, 6\ns_mul_i32 {t}, {t}, 60")
        a(f"s_lshl_b32 {dst}, {gam}, 2\ns_add_u32 {dst}, {dst}, {t}\ns_mul_i32 {t}, s46, 20\ns_add_u32 {dst}, {dst}, {t}")

    def ln_stats_tasks(self):
        pk = "lnpk" in self.opts
        g = []
        X, Wr = 104, 114
        g.append(("wait",))
        g.append("v_lshlrev_b32 v124, 16, v104\nv_readlane_b32 s51, v124, 0\nv_readlane_b32 s52, v124, 32")
        g.append("v_mov_b32 v138, s52\nv_mov_b32 v139, s51\nv_cmp_gt_u32 vcc, 32, v1\nv_cndmask_b32 v138, v138, v139, vcc")
        for i in range(10):
            g += [f"v_lshlrev_b32 v132, 16, v{X+i}", f"v_and_b32 v133, s28, v{X+i}",
                  f"v_lshlrev_b32 v134, 16, v{Wr+i}", f"v_and_b32 v135, s28, v{Wr+i}",
                  "v_sub_f32 v136, v132, v138", "v_sub_f32 v137, v133, v138"]
            if i == 0:
                g += ["v_mul_f32 v128, v132, v134", "v_add_f32 v124, v136, v137", "v_mul_f32 v126, v136, v136", "v_add_f32 v130, v134, v135",
                      "v_fmac_f32 v128, v133, v135", "v_fmac_f32 v126, v137, v137"]
            else:
                g += ["v_fmac_f32 v128, v132, v134", "v_add_f32 v124, v124, v136", "v_fmac_f32 v126, v136, v136", "v_add_f32 v130, v130, v134",
                      "v_fmac_f32 v128, v133, v135", "v_add_f32 v124, v124, v137", "v_fmac_f32 v126, v137, v137", "v_add_f32 v130, v130, v135"]
        regs = ["v124", "v126", "v128", "v130"]; tm = ["v125", "v127", "v129", "v131"]
        for ctrl in ("quad_perm:[1,0,3,2]", "quad_perm:[2,3,0,1]", "row_half_mirror", "row_mirror"):
            for r in regs: g.append(f"v_add_f32_dpp {r}, {r}, {r} {ctrl} row_mask:0xf bank_mask:0xf")
        for r, t in zip(regs, tm): g.append(f"v_mov_b32 {t}, {r}")
        for r, t in zip(regs, tm): g.append(f"v_permlane16_swap_b32 {r}, {t}")
        for r, t in zip(regs, tm): g.append(f"v_add_f32 {r}, {r}, {t}")
        g += ["v_mul_f32 v124, s44, v124", "v_mul_f32 v132, v124, v124", "v_fma_f32 v126, v126, s44, -v132", "v_max_f32 v126, 0, v126",
              "v_add_f32 v124, v138, v124"]
        g += self.bf16r("v124", "v124") + self.bf16r("v126", "v126") + ["v_add_f32 v126, s45, v126"] + self.bf16r("v126", "v126")
        g += ["v_sqrt_f32 v126, v126"] + self.bf16r("v126", "v126") + ["v_rcp_f32 v132, v126"]
        g += ["v_fma_f32 v128, -v124, v130, v128", "v_mul_f32 v128, v128, v132"]
        g += self.key_lines("v128", "v20", "v141", "v134", "v135")
        g += ["v_lshrrev_b32 v140, 16, v124", "v_or_b32 v140, v140, v126"]
        g.append("s_mov_b32 exec_lo, 1\ns_mov_b32 exec_hi, 1\nds_write_b64 v21, v[140:141]\ns_mov_b64 exec, -1\ns_waitcnt lgkmcnt(0)")
        g.append(("mark",))
        return g

    def ln_wave(self):
        a = self.a
        a("L_ln:")
        a("s_sub_u32 s21, s16, 4")
        a("v_and_b32 v2, 31, v1\nv_lshrrev_b32 v3, 5, v1")
        a("s_lshl_b32 s23, s46, 2\ns_add_u32 s23, s23, s20\ns_lshl_b32 s23, s23, 3\ns_lshl_b32 s29, s21, 1\ns_add_u32 s23, s23, s29")
        a("s_lshl_b32 s29, s19, 7\ns_add_u32 s23, s23, s29\nv_add_u32 v20, s23, v3")
        a("v_mul_u32_u24 v4, 1280, v20\nv_lshl_add_u32 v4, v2, 3, v4\nv_lshlrev_b32 v5, 3, v2")
        a(f"s_lshl_b32 s29, s21, 4\ns_add_u32 s29, s29, {L_OWN}\nv_lshl_add_u32 v21, v3, 3, s29")
        a("s_lshr_b32 s29, s21, 1\ns_lshl_b32 s29, s29, 13\ns_and_b32 s30, s21, 1\ns_lshl_b32 s30, s30, 12\ns_add_u32 s29, s29, s30\ns_add_u32 s29, s29, 65536")
        a("v_lshrrev_b32 v8, 4, v1\nv_lshlrev_b32 v9, 2, v8\nv_and_b32 v10, 15, v1\nv_xor_b32 v9, v9, v10\nv_lshlrev_b32 v9, 4, v9")
        a("v_lshl_add_u32 v9, v8, 8, v9\nv_add_u32 v16, s29, v9")
        a(f"s_mov_b32 s28, 0xffff0000\ns_mov_b32 s44, {f32hex(1.0/640.0)}\ns_mov_b32 s45, {f32hex(1e-5)}\ns_waitcnt lgkmcnt(0)")
        tasks = self.ln_stats_tasks()
        a("s_barrier")
        for i in range(5): a(f"buffer_load_dwordx2 v[{104+2*i}:{105+2*i}], v4, s[4:7], 0 offen offset:{256*i}")
        for i in range(5): a(f"buffer_load_dwordx2 v[{114+2*i}:{115+2*i}], v5, s[36:39], 0 offen offset:{256*i}")
        pk = "lnpk" in self.opts
        for m in range(10):
            if m >= 1: a("s_barrier")
            if "noside" in self.opts:
                self.b_stats = 1; continue
            wo = ((2 * m) & 7) * 8192
            for i in range(4): a(f"ds_read_b128 v[{48+4*i}:{51+4*i}], v16 offset:{wo + 1024*i}")
            for i in range(4):
                a(f"s_waitcnt lgkmcnt({3-i})")
                for d in range(4):
                    src = 48 + 4 * i + d; acc = 72 + 2 * d; t = 64 + 2 * (d & 1)
                    if m == 0 and i == 0:
                        a(f"v_lshlrev_b32 v{acc}, 16, v{src}\nv_and_b32 v{acc+1}, s28, v{src}")
                    elif pk:
                        a(f"v_lshlrev_b32 v{t}, 16, v{src}\nv_and_b32 v{t+1}, s28, v{src}\nv_pk_add_f32 v[{acc}:{acc+1}], v[{acc}:{acc+1}], v[{t}:{t+1}]")
                    else:
                        a(f"v_lshlrev_b32 v{t}, 16, v{src}\nv_and_b32 v{t+1}, s28, v{src}\nv_add_f32 v{acc}, v{acc}, v{t}\nv_add_f32 v{acc+1}, v{acc+1}, v{t+1}")
            q = self.Q1 if m >= self.LM0 else 0
            while tasks and q > 0:
                it = tasks.pop(0)
                if isinstance(it, tuple):
                    if it[0] == "mark": self.b_stats = m
                    else: a("s_waitcnt vmcnt(0)")
                else: a(it); q -= it.count("\n") + 1
        if "noside" not in self.opts:
            assert not tasks
            for p in range(4): a(f"v_permlane32_swap_b32 v{72+2*p}, v{73+2*p}")
            for p in range(4): a(f"v_add_f32 v{72+2*p}, v{72+2*p}, v{73+2*p}")
            a("v_permlane16_swap_b32 v72, v74\nv_permlane16_swap_b32 v76, v78")
            a("v_add_f32 v72, v72, v74\nv_add_f32 v76, v76, v78")
            self.cs_tail()
        a("s_waitcnt lgkmcnt(0)")
        a("s_branch L_a_bE1")

    def cs_tail(self):
        a = self.a
        a("v_and_b32 v7, 15, v1\nv_lshlrev_b32 v7, 3, v7\nv_bfe_u32 v8, v1, 4, 1\nv_lshl_add_u32 v7, v8, 1, v7\nv_add_u32 v7, v7, v3")
        a(f"s_lshl_b32 s29, s21, 9\ns_add_u32 s29, s29, {L_CSW}\nv_lshl_add_u32 v7, v7, 2, s29")
        a("ds_write_b32 v7, v72\nds_write_b32 v7, v76 offset:16")

    def phase_a(self):
        a = self.a
        a("; ---- phase A ----")
        a("s_cmp_ge_u32 s16, 4\ns_cbranch_scc1 L_ln")
        a("s_and_b32 s21, s16, 1\ns_lshr_b32 s22, s16, 1")
        self.stamp(0)
        a("v_and_b32 v2, 31, v1\nv_lshrrev_b32 v3, 5, v1")
        a("s_lshl_b32 s29, s22, 6\nv_add_u32 v4, s29, v2\nv_lshlrev_b32 v4, 7, v4")
        a("v_bfe_u32 v5, v1, 1, 3\nv_xor_b32 v8, v3, v5")
        for s4 in range(4):
            a(f"v_xor_b32 v7, {2*s4}, v8\nv_lshl_add_u32 v{12+s4}, v7, 4, v4")
        a("v_bfe_u32 v5, v1, 2, 2")
        a("v_lshl_add_u32 v8, v3, 3, v5\nv_lshlrev_b32 v8, 8, v8")
        a("v_bfe_u32 v9, v1, 4, 1\nv_lshlrev_b32 v9, 5, v9\nv_and_b32 v10, 3, v1\nv_lshlrev_b32 v10, 3, v10\nv_add3_u32 v8, v8, v9, v10")
        a("s_lshl_b32 s29, s21, 1")
        for ntl in range(2):
            a(f"s_add_u32 s30, s29, {ntl}\nv_xor_b32 v7, s30, v5\nv_lshl_add_u32 v7, v7, 6, v8\nv_add_u32 v{16+ntl}, 0x10000, v7")
        self.stamp(4)
        a("s_barrier")
        self.stamp(1)
        self.a_reads(0); self.a_reads(1)
        N = 40
        ACC = lambda ntl, stl: 72 + 32 * ntl + 16 * stl
        for n in range(N):
            m, i4 = n >> 2, n & 3
            fs = 24 + 16 * (n % 3)
            CL = self.stamps and "lloop" in self.opts and m in (4, 5) and i4 == 2
            if CL: self.stamp(5 + 2 * (m - 4))
            if i4 == 2 and m + 1 < 10: a("s_barrier")
            if CL: self.stamp(6 + 2 * (m - 4))
            if self.stamps and "bst" in self.opts and i4 == 2 and m < 9: a(f"s_memrealtime s[{72+2*(m+1)}:{73+2*(m+1)}]")
            a(f"s_waitcnt lgkmcnt({6 if n + 1 < N else 0})")
            rl = self.a_read_list(n + 2) if n + 2 < N else []
            nomf = "nomfma" in self.opts and n > 0
            k = 0
            for ntl in range(2):
                for stl in range(2):
                    A = ACC(ntl, stl)
                    c = "0" if n == 0 else f"v[{A}:{A+15}]"
                    if not nomf: a(f"v_mfma_f32_32x32x16_bf16 v[{A}:{A+15}], v[{fs+8+4*ntl}:{fs+11+4*ntl}], v[{fs+4*stl}:{fs+4*stl+3}], {c}")
                    for l in rl[2*k:2*k+2]: a(l)
                    k += 1
        self.stamp(2)
        a("L_a_bE1:")
        a("s_barrier")
        if "est" in self.opts: self.stamp(5)
        a("s_cmp_ge_u32 s16, 4\ns_cbranch_scc1 L_a_e2")
        a(f"s_lshl_b32 s29, s22, 9\ns_add_u32 s29, s29, {L_STAT}")
        a("v_lshl_add_u32 v4, v2, 3, s29")
        a("ds_read_b64 v[20:21], v4\nds_read_b64 v[22:23], v4 offset:256")
        a(f"s_lshl_b32 s29, s21, 8\ns_add_u32 s29, s29, {L_CSW}\nv_lshl_add_u32 v4, v2, 2, s29")
        for p in range(4):
            a(f"ds_read_b32 v{44+2*p}, v4 offset:{512*p}\nds_read_b32 v{45+2*p}, v4 offset:{512*p+128}")
        a(f"v_mov_b32 v5, {L_FLG}\nds_read_b32 v6, v5")
        a("s_lshl_b32 s33, s19, 7\ns_lshl_b32 s34, s22, 6\ns_add_u32 s33, s33, s34")
        a("v_add_u32 v4, s33, v2\nv_lshlrev_b32 v4, 4, v4\nv_lshl_add_u32 v4, v3, 15, v4")
        for r in (29, 30, 31, 33, 34, 35, 37, 38, 39, 41, 42, 43): a(f"v_mov_b32 v{r}, 0")
        a("v_cmp_gt_u32 vcc, 32, v1\nv_mov_b32 v7, 0")
        a("s_waitcnt lgkmcnt(0)")
        a("v_readfirstlane_b32 s41, v6")
        a("v_add_f32 v24, v44, v46\nv_add_f32 v25, v45, v47\nv_add_f32 v48, v48, v50\nv_add_f32 v49, v49, v51\nv_add_f32 v24, v24, v48\nv_add_f32 v25, v25, v49")
        for ntl in range(2):
            c = 24 + ntl; d = 28 + 4 * ntl
            a(f"v_cvt_pk_bf16_f32 v8, v{c}, v{c}\nv_lshlrev_b32 v8, 16, v8\nv_sub_f32 v8, v{c}, v8\nv_cvt_pk_bf16_f32 v8, v{c}, v8\nv_cndmask_b32 v{d}, v7, v8, vcc")
        for stl in range(2):
            mm = 20 + 2 * stl; d = 36 + 4 * stl
            a(f"v_sub_f32 v8, 0, v{mm}\nv_cvt_pk_bf16_f32 v8, v8, v8\nv_cndmask_b32 v{d}, v7, v8, vcc")
        for ntl in range(2):
            for stl in range(2):
                A = ACC(ntl, stl)
                a(f"v_mfma_f32_32x32x16_bf16 v[{A}:{A+15}], v[{28+4*ntl}:{31+4*ntl}], v[{36+4*stl}:{39+4*stl}], v[{A}:{A+15}]")
        for ntl in range(2):
            Ls = a.label("askip")
            a(f"s_lshl_b32 s29, s20, 2\ns_lshl_b32 s30, s21, 1\ns_add_u32 s29, s29, s30\ns_add_u32 s29, s29, {ntl}")
            a(f"s_cmp_eq_u32 s29, 15\ns_cbranch_scc1 {Ls}")
            self.col_oct("s29", "s31", "s32")
            a(f"s_lshl_b32 s31, s31, 15\ns_add_u32 s31, s31, {WS_QKV}")
            a(f"s_cmp_lt_u32 s29, 5\ns_cselect_b32 s40, {f32hex(QSCALE)}, 1.0")
            a("v_mul_f32 v56, s40, v21\nv_mul_f32 v58, s40, v23\nv_mov_b32 v57, v56\nv_mov_b32 v59, v58")
            for stl in range(2):
                A = ACC(ntl, stl); rr = 56 + 2 * stl
                for p in range(8): a(f"v_pk_mul_f32 v[{A+2*p}:{A+2*p+1}], v[{A+2*p}:{A+2*p+1}], v[{rr}:{rr+1}]")
                d = 136 + 16 * ntl + 8 * stl
                for p in range(8): a(f"v_cvt_pk_bf16_f32 v{d+p}, v{A+2*p}, v{A+2*p+1}")
                for pr in range(2):
                    b0 = d + 4 * pr
                    a(f"v_permlane32_swap_b32 v{b0}, v{b0+2}\nv_permlane32_swap_b32 v{b0+1}, v{b0+3}")
            Lf = a.label("afast"); Ld = a.label("adone")
            a(f"s_cmp_eq_u32 s41, 1\ns_cbranch_scc1 {Lf}")
            for fast in (0, 1):
                if fast: a(f"{Lf}:")
                for pr in range(2):
                    a(f"s_add_u32 s32, s31, {pr*65536}")
                    for stl in range(2):
                        b0 = 136 + 16 * ntl + 8 * stl + 4 * pr
                        a(f"buffer_store_dwordx4 v[{b0}:{b0+3}], v4, s[12:15], s32 offen offset:{512*stl}" + ("" if fast else " sc1"))
                if not fast: a(f"s_branch {Ld}")
            a(f"{Ld}:\n{Ls}:")
        if "est" in self.opts: self.stamp(6)
        a("s_waitcnt vmcnt(0)")
        if "est" in self.opts: self.stamp(7)
        a(f"v_mov_b32 v5, {L_FLG}\nv_mov_b32 v6, 1\ns_mov_b64 exec, 1\nds_add_rtn_u32 v7, v5, v6 offset:44\nds_read_b32 v8, v5 offset:4\ns_waitcnt lgkmcnt(0)")
        a("v_readfirstlane_b32 s35, v7\ns_cmp_lg_u32 s35, 3\ns_cbranch_scc1 L_a_nf")
        a(f"s_lshl_b32 s29, s46, 6\ns_lshl_b32 s30, s19, 2\ns_add_u32 s29, s29, s30\ns_add_u32 s29, s29, s20\ns_lshl_b32 s29, s29, 6\ns_add_u32 s29, s29, {WS_F1}\nv_mov_b32 v6, s29")
        a("s_cmp_eq_u32 s41, 1\ns_cbranch_scc1 L_a_f1f")
        a("buffer_store_dword v8, v6, s[12:15], 0 offen sc1\ns_branch L_a_nf")
        a("L_a_f1f:\nbuffer_store_dword v8, v6, s[12:15], 0 offen")
        a("L_a_nf:\ns_mov_b64 exec, -1")
        a("L_a_e2:")
        self.stamp(3)
        if self.stop_after == "a":
            self.fin_stamps(10 if "bst" in self.opts else (9 if "lloop" in self.opts else (8 if "est" in self.opts else 5)), wave=self.swave)
            a("s_branch L_end")
            self.ln_wave()
            return
        self.phase_b()
        if self.stop_after == "b":
            self.fin_stamps(8, wave=self.swave)
            a("s_branch L_end")
            self.ln_wave()
            return
        self.phase_c()
        self.fin_stamps(10, wave=self.swave)
        a("s_branch L_end")
        self.ln_wave()

    def lg_reset(self): self.lg_seq = []
    def lg_issue(self, tag, n): self.lg_seq += [tag] * n
    def lg_wait(self, tag):
        last = max(i for i, t in enumerate(self.lg_seq) if t == tag)
        self.a(f"s_waitcnt lgkmcnt({min(15, len(self.lg_seq) - 1 - last)})")

    def loader(self):
        a = self.a
        a("L_loader:")
        LS = self.stamps and "lstamp" in self.opts
        if LS: self.stamp(0)
        a("s_setprio 2")
        a("s_sub_u32 s21, s16, 8")
        a("v_lshrrev_b32 v3, 4, v1")
        self.post_srd = []
        self.srd(52, 16, 819200)
        a("s_cmp_eq_u32 s21, 1\ns_cbranch_scc1 L_l_w")
        a("v_lshrrev_b32 v2, 3, v1\nv_and_b32 v8, 7, v1\nv_xor_b32 v8, v8, v3")
        a("s_lshl_b32 s23, s19, 7\nv_add_u32 v9, s23, v2\nv_mul_u32_u24 v9, 1280, v9\nv_lshl_add_u32 v10, v8, 4, v9")
        a("v_xor_b32 v8, 4, v8\nv_lshl_add_u32 v11, v8, 4, v9")
        a("s_mov_b64 s[24:25], -1\ns_mov_b32 s26, 0\ns_movk_i32 s27, 10240\ns_movk_i32 s31, 128\ns_mov_b32 s32, 0")
        a("s_branch L_l_go")
        a("L_l_w:")
        a("v_and_b32 v8, 15, v1\nv_lshlrev_b32 v17, 2, v3\nv_xor_b32 v17, v8, v17")
        a("s_lshl_b32 s29, s20, 2\ns_mul_i32 s31, s46, 20")
        a("v_lshrrev_b32 v19, 2, v17\nv_add_u32 v19, s29, v19\nv_cmp_ne_u32 s[24:25], 15, v19")
        a("v_mul_u32_u24 v18, 13, v19\nv_lshrrev_b32 v18, 6, v18\nv_mul_u32_u24 v18, 60, v18")
        a("v_lshl_add_u32 v18, v19, 2, v18\nv_and_b32 v19, 3, v17\nv_add3_u32 v18, v18, v19, s31\nv_lshlrev_b32 v18, 4, v18")
        a("v_mul_u32_u24 v19, 3840, v3\nv_add_u32 v10, v18, v19\nv_mov_b32 v11, v10")
        a("s_mov_b32 s26, 65536\ns_movk_i32 s27, 15360\ns_mov_b32 s31, 245760\ns_mov_b32 s32, 0")
        a("L_l_go:")
        a("s_waitcnt lgkmcnt(0)")
        self.srd_fin()
        def granule(role, m):
            srd = "s[4:7]" if role == 0 else "s[8:11]"
            base = ((m & 3) * 16384) if role == 0 else (65536 + ((2 * m) & 7) * 8192)
            gs = 128 if role == 0 else 245760
            step = 10240 if role == 0 else 15360
            for i in range(16):
                a(f"s_mov_b32 m0, {base + 1024*i}\ns_add_u32 s30, s40, {step*i}")
                a(f"buffer_load_dwordx4 v{10 + (i & 1)}, {srd}, s30 offen lds")
            a(f"s_add_u32 s40, s40, {gs}\ns_cmp_eq_u32 s40, {10*gs}\ns_cselect_b32 s40, 0, s40")
        rh_, rr_ = 0, 0
        for o in self.opts:
            if o.startswith("roth="): rh_ = int(o[5:])
            if o.startswith("rotr="): rr_ = int(o[5:])
        rc, rb = 3, 1
        for o in self.opts:
            if o.startswith("rotc="): rc = int(o[5:])
            if o.startswith("rotb="): rb = int(o[5:])
        rbm = 7
        for o in self.opts:
            if o.startswith("rotbm="): rbm = int(o[6:])
        rcm = 3
        for o in self.opts:
            if o.startswith("rotcm="): rcm = int(o[6:])
        if "norot" not in self.opts:
            a(f"s_and_b32 s41, s20, {rcm}\ns_mul_i32 s40, s41, {rc}\ns_and_b32 s41, s48, {rbm}\ns_mul_i32 s41, s41, {rb}\ns_add_u32 s40, s40, s41")
            a(f"s_mul_i32 s41, s46, {rh_}\ns_add_u32 s40, s40, s41\ns_mul_i32 s41, s47, {rr_}\ns_add_u32 s40, s40, s41")
            a("s_mul_i32 s41, s40, 205\ns_lshr_b32 s41, s41, 11\ns_mul_i32 s41, s41, 10\ns_sub_u32 s40, s40, s41")
        else:
            a("s_mov_b32 s40, 0")
        a("s_movk_i32 s42, 128\ns_cmp_eq_u32 s21, 0\ns_cselect_b32 s41, s42, 245760\ns_mul_i32 s40, s40, s41")
        for role in range(2):
            a(f"L_l_r{role}:") if role == 1 else a("s_cmp_eq_u32 s21, 1\ns_cbranch_scc1 L_l_r1")
            a("s_mov_b64 exec, s[24:25]")
            if "k0late" in self.opts:
                for m in range(3): granule(role, m)
                a("s_waitcnt vmcnt(32)\ns_barrier")
            else:
                if LS: self.stamp(1)
                granule(role, 0)
                if LS: self.stamp(2)
                granule(role, 1)
                if LS: self.stamp(3)
                a("s_waitcnt vmcnt(16)")
                if LS: self.stamp(4)
                a("s_barrier")
                granule(role, 2)
                if LS: self.stamp(5)
            npf = 4 if (self.stop_after is None and "nolpf" not in self.opts) else 0
            for m in range(9):
                extra = npf if m >= 7 else 0
                LL = self.stamps and "lloop" in self.opts
                if LL and m in (4, 5): self.stamp(0 + 4 * (m - 4) + 0)
                a(f"s_waitcnt vmcnt({(16 if m < 8 else 0) + extra})")
                if LL and m in (4, 5): self.stamp(0 + 4 * (m - 4) + 1)
                a("s_barrier")
                if LL and m in (4, 5): self.stamp(0 + 4 * (m - 4) + 2)
                if m + 3 < 10: granule(role, m + 3)
                if LL and m in (4, 5): self.stamp(0 + 4 * (m - 4) + 3)
                if m == 6 and npf:
                    a("s_mov_b64 exec, -1")
                    self.l2pf(role)
            a("s_mov_b64 exec, -1")
            if role == 0: a("s_branch L_l_j")
        a("L_l_j:")
        if LS:
            self.stamp(6); self.stamp(7)
            self.fin_stamps(8, wave=8, slot=1)
        if self.stamps and "lloop" in self.opts:
            self.fin_stamps(8, wave=8 + ("lw1" in self.opts), slot=1)
        a("s_barrier")
        if self.stop_after == "a":
            a("s_endpgm"); return
        a("s_and_b32 s62, s18, 7\ns_lshl_b32 s29, s46, 3\ns_add_u32 s62, s62, s29")
        a("s_lshr_b32 s63, s18, 3\ns_lshl_b32 s29, s47, 2\ns_add_u32 s63, s63, s29")
        a("s_and_b32 s64, s62, 1\ns_mul_i32 s65, s62, 5\ns_lshr_b32 s65, s65, 1")
        a(f"s_sub_u32 s36, 1, s21\ns_mul_i32 s32, s36, 80\ns_add_u32 s32, s32, 80\ns_add_u32 s32, s32, s65\ns_lshl_b32 s32, s32, 15\ns_add_u32 s32, s32, {WS_QKV}")
        a(f"s_mul_i32 s33, s36, {LB_V}")
        a("s_lshl_b32 s31, s63, 8\ns_sub_u32 s31, s31, 256\ns_lshl_b32 s31, s31, 4\ns_add_u32 s32, s32, s31")
        a("v_lshlrev_b32 v4, 4, v1\nv_add_u32 v7, s33, v4")
        a(f"s_sub_u32 s35, 1, s64\ns_mul_i32 s35, s35, {2*PLS+8}\nv_add_u32 v8, s35, v7")
        a("v_mov_b32 v20, 0x3f803f80\ns_cmp_eq_u32 s36, 0\ns_cselect_b32 s35, 0, 0x3f803f80\nv_mov_b32 v21, s35")
        a("v_mov_b32 v22, 0x3f803f80\ns_mov_b32 s34, 0x3f803f80\ns_cselect_b32 s35, 0xf149, s34\nv_mov_b32 v23, s35")
        a("v_mov_b32 v24, 0\nv_mov_b32 v25, 0\nv_mov_b32 v26, 0\nv_mov_b32 v27, 0")
        a(f"v_mov_b32 v5, {L_FLG}")
        a("s_cmp_eq_u32 s21, 0\ns_cbranch_scc1 L_l_b0")
        a(f"s_lshl_b32 s29, s46, 6\ns_lshl_b32 s30, s63, 3\ns_add_u32 s29, s29, s30\ns_sub_u32 s29, s29, 8\ns_lshl_b32 s29, s29, 6\ns_add_u32 s29, s29, {WS_F1}")
        a("v_and_b32 v6, 15, v1\ns_cmp_eq_u32 s63, 0\ns_cselect_b32 s30, 8, 0\nv_max_u32 v6, s30, v6\nv_lshlrev_b32 v6, 6, v6\nds_read_b32 v9, v5 offset:4\ns_waitcnt lgkmcnt(0)")
        a("L_x_p1:\nbuffer_load_dword v10, v6, s[12:15], s29 offen sc1\ns_waitcnt vmcnt(0)")
        a("v_cmp_ne_u32 vcc, v9, v10\ns_cbranch_vccz L_x_p1_o\ns_add_u32 s100, s100, 1\ns_bitcmp1_b32 s100, 21\ns_cbranch_scc0 L_x_p1\nL_x_p1_o:")
        a("v_mov_b32 v6, 1\ns_mov_b64 exec, 1\nds_write_b32 v5, v6 offset:48\ns_mov_b64 exec, -1")
        a("s_branch L_l_kv")
        a("L_l_b0:")
        self.lds_spin("v5", "v6", "s35", "ge", 1, off=48)
        a("L_l_kv:")
        a("s_cmp_eq_u32 s63, 0\ns_cbranch_scc1 L_l_c0")
        for blk in range(4):
            for p in range(3):
                a(f"s_add_u32 m0, s33, {p*PLS + blk*1024}\ns_add_u32 s30, s32, {p*32768 + blk*1024}\nbuffer_load_dwordx4 v4, s[12:15], s30 offen sc1 lds")
        a("s_branch L_l_c1")
        a("L_l_c0:")
        for blk in range(4):
            for p in range(3): a(f"ds_write_b128 v7, v[24:27] offset:{p*PLS + blk*1024}")
        a("L_l_c1:")
        for blk in range(4, 8):
            for p in range(3):
                a(f"s_add_u32 m0, s33, {p*PLS + blk*1024}\ns_add_u32 s30, s32, {p*32768 + blk*1024}\nbuffer_load_dwordx4 v4, s[12:15], s30 offen sc1 lds")
        a("s_cmp_eq_u32 s21, 0\ns_cbranch_scc1 L_l_noq")
        a(f"s_lshl_b32 s35, s65, 15\ns_lshl_b32 s34, s63, 12\ns_add_u32 s35, s35, s34\ns_add_u32 s35, s35, {WS_QKV}")
        for p in range(3):
            for blk in range(4):
                a(f"s_mov_b32 m0, {LQ + p*4096 + blk*1024}\ns_add_u32 s30, s35, {p*32768 + blk*1024}\nbuffer_load_dwordx4 v4, s[12:15], s30 offen sc1 lds")
        a("s_branch L_l_w0")
        a("L_l_noq:")
        a("L_l_w0:")
        a("s_waitcnt vmcnt(0) lgkmcnt(0)")
        a("s_cmp_eq_u32 s63, 0\ns_cbranch_scc1 L_l_p0")
        for blk in range(4): a(f"ds_write_b64 v8, v[20:21] offset:{blk*1024}")
        a("s_branch L_l_p1")
        a("L_l_p0:")
        for blk in range(4): a(f"ds_write_b64 v8, v[22:23] offset:{blk*1024}")
        a("L_l_p1:")
        for blk in range(4, 8): a(f"ds_write_b64 v8, v[20:21] offset:{blk*1024}")
        a("v_mov_b32 v6, 1\ns_waitcnt lgkmcnt(0)\ns_mov_b64 exec, 1\nds_add_u32 v5, v6 offset:8\ns_mov_b64 exec, -1")
        if self.stop_after == "b":
            a("s_endpgm"); return
        a("s_cmp_eq_u32 s21, 1\ns_cbranch_scc1 L_l_nm")
        if self.stop_after is None and "nomoe" not in self.opts:
            a("s_cmp_ge_u32 s18, 24\ns_cbranch_scc1 L_l_wd")
            a("s_load_dwordx2 s[56:57], s[0:1], 40")
            a("s_mov_b32 s58, 1966080\ns_mov_b32 s59, 0x20000\ns_mov_b32 s38, 1966080\ns_mov_b32 s39, 0x20000")
            a("s_load_dwordx2 s[36:37], s[0:1], 48")
            a("s_mul_i32 s29, s17, 24\ns_add_u32 s29, s29, s18\ns_lshl_b32 s29, s29, 4\nv_mul_u32_u24 v10, 3072, v1\nv_add_u32 v10, s29, v10\ns_waitcnt lgkmcnt(0)")
            for i in range(10):
                a(f"s_mov_b32 m0, {L_AUX + 1024*i}\ns_mov_b32 s30, {i*196608}\nbuffer_load_dwordx4 v10, s[56:59], s30 offen lds")
            for i in range(10):
                a(f"s_mov_b32 m0, {L_AUX + 10304 + 1024*i}\ns_mov_b32 s30, {i*196608}\nbuffer_load_dwordx4 v10, s[36:39], s30 offen lds")
            a("s_branch L_l_md")
            a("L_l_wd:")
            a("s_load_dwordx2 s[56:57], s[0:1], 56\ns_mov_b32 s58, 1966080\ns_mov_b32 s59, 0x20000")
            a("s_mul_i32 s29, s17, 10\ns_add_u32 s29, s29, s18\ns_sub_u32 s29, s29, 22\ns_lshl_b32 s29, s29, 4\nv_mul_u32_u24 v10, 1280, v1\nv_add_u32 v10, s29, v10\ns_waitcnt lgkmcnt(0)")
            for i in range(24):
                a(f"s_mov_b32 m0, {L_AUX + 1024*i + (64 if i >= 12 else 0)}\ns_mov_b32 s30, {i*81920}\nbuffer_load_dwordx4 v10, s[56:59], s30 offen lds")
            a("L_l_md:")
        a("s_waitcnt vmcnt(0)\nv_mov_b32 v6, 1\ns_mov_b64 exec, 1\nds_add_u32 v5, v6 offset:36\ns_mov_b64 exec, -1")
        a("L_l_nm:")
        self.wo_setup()
        a("s_lshl_b32 s34, s21, 10\ns_mul_i32 s35, s21, 10240")
        for q in range(28):
            a(f"s_add_u32 m0, s34, {LA1 + q*2048}\ns_add_u32 s30, s35, {q*20480}\nbuffer_load_dwordx4 v152, s[52:55], s30 offen lds")
        self.lds_spin("v5", "v6", "s35", "ge", 8, off=40)
        a("s_mul_i32 s35, s21, 40960")
        for q in range(10):
            a(f"s_add_u32 m0, s34, {LBB + q*2048}\ns_add_u32 s30, s35, {q*81920}\nbuffer_load_dwordx4 v153, s[52:55], s30 offen lds")
        a("s_cmp_eq_u32 s21, 1\ns_cbranch_scc1 L_l_poll")
        self.lds_spin("v5", "v6", "s35", "ge", 8, off=12)
        for q in range(12):
            for par in range(2):
                i = 56 + 2 * q + par
                a(f"s_mov_b32 m0, {LA2 + (i-56)*1024}\ns_mov_b32 s30, {i*10240}\nbuffer_load_dwordx4 v{152 if par == 0 else 154}, s[52:55], s30 offen lds")
        a("s_waitcnt vmcnt(0)\nv_mov_b32 v6, 1\ns_mov_b64 exec, 1\nds_add_u32 v5, v6 offset:32\ns_mov_b64 exec, -1\ns_endpgm")
        a("L_l_poll:")
        a("s_waitcnt vmcnt(0)\nv_mov_b32 v6, 1\ns_mov_b64 exec, 1\nds_add_u32 v5, v6 offset:32\ns_mov_b64 exec, -1")
        a(f"s_lshl_b32 s29, s17, 11\ns_add_u32 s29, s29, {WS_F2}\nv_and_b32 v26, 31, v1\nv_lshlrev_b32 v26, 6, v26\nds_read_b32 v6, v5 offset:4\ns_waitcnt lgkmcnt(0)")
        a("L_c_poll:\nbuffer_load_dword v27, v26, s[12:15], s29 offen sc1\ns_waitcnt vmcnt(0)")
        a("v_cmp_ne_u32 vcc, v6, v27\ns_cbranch_vccz L_c_poll_o\ns_add_u32 s100, s100, 1\ns_bitcmp1_b32 s100, 21\ns_cbranch_scc0 L_c_poll\nL_c_poll_o:")
        a("v_mov_b32 v6, 1\ns_mov_b64 exec, 1\nds_write_b32 v5, v6 offset:16\ns_mov_b64 exec, -1")
        a("s_endpgm")

    def l2pf(self, role):
        a = self.a
        if role == 0:
            a("s_load_dwordx2 s[56:57], s[0:1], 40\ns_load_dwordx2 s[60:61], s[0:1], 48\ns_load_dwordx2 s[64:65], s[0:1], 56")
            a("s_mov_b32 s58, 1966080\ns_mov_b32 s59, 0x20000\ns_mov_b32 s62, 1966080\ns_mov_b32 s63, 0x20000\ns_mov_b32 s66, 1966080\ns_mov_b32 s67, 0x20000")
            a("v_mul_u32_u24 v24, 43, v1\nv_lshrrev_b32 v24, 7, v24\nv_mul_u32_u24 v25, 3, v24\nv_sub_u32 v25, v1, v25")
            a("s_mul_i32 s29, s18, 20\nv_add_u32 v24, s29, v24\nv_mul_u32_u24 v24, 3072, v24\nv_lshl_add_u32 v24, v25, 7, v24")
            a("s_mul_i32 s29, s17, 384\nv_add_u32 v24, s29, v24")
            a("s_mul_i32 s29, s18, 48\nv_lshrrev_b32 v25, 1, v1\nv_add_u32 v25, s29, v25\nv_mul_u32_u24 v25, 1280, v25")
            a("s_mul_i32 s29, s17, 160\ns_and_b32 s29, s29, 0xffffff80\nv_and_b32 v26, 1, v1\nv_lshl_add_u32 v25, v26, 7, v25\nv_add_u32 v25, s29, v25")
            a("s_waitcnt lgkmcnt(0)")
            a("s_mov_b32 exec_hi, 0x0fffffff\nbuffer_load_dword v27, v24, s[56:59], 0 offen\nbuffer_load_dword v27, v24, s[60:63], 0 offen\ns_mov_b64 exec, -1")
            a("buffer_load_dword v27, v25, s[64:67], 0 offen")
            a("s_mov_b32 s30, 40960\ns_mov_b32 exec_hi, 0\nbuffer_load_dword v27, v25, s[64:67], s30 offen\ns_mov_b64 exec, -1")
        else:
            a("s_mul_i32 s29, s18, 25600\nv_lshlrev_b32 v26, 7, v1\nv_add_u32 v26, s29, v26")
            for i in range(4):
                a(f"s_mov_b32 s30, {8192*i}\n" + ("s_mov_b64 exec, 0xff\n" if i == 3 else "") + "buffer_load_dword v27, v26, s[52:55], s30 offen")
            a("s_mov_b64 exec, -1")

    def wo_setup(self):
        a = self.a
        a("s_and_b32 s67, s18, 7\ns_mul_i32 s69, s67, 160")
        for dst, par in (("v152", "s21"), ("v154", "1")):
            a(f"v_bfe_u32 v19, v1, 4, 1\ns_lshl_b32 s29, {par}, 1\nv_or_b32 v19, s29, v19\nv_lshlrev_b32 v19, 1, v19")
            a(f"v_and_b32 {dst}, 7, v1\nv_xor_b32 {dst}, {dst}, v19\nv_lshlrev_b32 {dst}, 4, {dst}")
            a(f"v_lshrrev_b32 v19, 3, v1\nv_mul_u32_u24 v19, 1280, v19\nv_add3_u32 {dst}, {dst}, v19, s69")
        a("v_lshrrev_b32 v19, 1, v1\nv_bfe_u32 v153, v19, 3, 1\nv_lshlrev_b32 v153, 2, v153\nv_xor_b32 v19, v19, v153\nv_mul_u32_u24 v19, 1280, v19")
        a("v_and_b32 v153, 1, v1\nv_lshlrev_b32 v153, 4, v153\nv_add3_u32 v153, v153, v19, s69\nv_add_u32 v153, 128, v153")

    def phase_b(self):
        a = self.a
        a("; ---- phase B ----")
        a("s_and_b32 s62, s18, 7\ns_lshl_b32 s29, s46, 3\ns_add_u32 s62, s62, s29")
        a("s_lshr_b32 s63, s18, 3\ns_lshl_b32 s29, s47, 2\ns_add_u32 s63, s63, s29")
        a("s_and_b32 s64, s62, 1\ns_mul_i32 s65, s62, 5\ns_lshr_b32 s65, s65, 1")
        a("v_and_b32 v2, 31, v1\nv_lshrrev_b32 v3, 5, v1")
        a(f"v_lshlrev_b32 v5, 2, v3\nv_sub_u32 v5, v2, v5\nv_mov_b32 v6, {NEGF}\nv_mov_b32 v7, 0")
        for r in range(16):
            cr = 8 * (r >> 2) + (r & 3)
            a(f"v_cmp_le_i32 vcc, {cr}, v5")
            a(f"v_cndmask_b32 v{108+r}, v6, v7, vcc\nv_cndmask_b32 v{124+r}, v7, v6, vcc")
        a("s_lshl_b32 s29, s16, 9")
        a(f"v_add_u32 v5, s64, v3\nv_mul_u32_u24 v5, {PLS}, v5\nv_lshl_add_u32 v16, v2, 4, v5\nv_add_u32 v16, s29, v16")
        a(f"s_sub_u32 s30, 1, s64\ns_mul_i32 s30, s30, {2*PLS}\ns_add_u32 s30, s30, s29\nv_lshl_add_u32 v17, v2, 4, s30")
        a("v_bfe_u32 v5, v1, 4, 1\nv_and_b32 v6, 3, v1\nv_lshl_add_u32 v5, v5, 2, v6")
        a("v_add_u32 v6, s64, v5")
        a("s_mul_i32 s30, s64, 6\nv_subrev_u32 v7, s30, v6\nv_cmp_eq_u32 vcc, 5, v5\nv_cndmask_b32 v6, v6, v7, vcc")
        a(f"v_lshrrev_b32 v7, 1, v6\nv_mul_u32_u24 v7, {PLS}, v7\nv_and_b32 v6, 1, v6\nv_lshl_add_u32 v7, v6, 3, v7")
        a("v_and_b32 v6, 1, v5\nv_lshlrev_b32 v6, 3, v6\nv_add_u32 v6, 192, v6")
        a("v_cmp_lt_u32 vcc, 5, v5\nv_cndmask_b32 v7, v7, v6, vcc")
        a("v_bfe_u32 v6, v1, 2, 2\nv_lshl_add_u32 v6, v3, 2, v6\nv_lshl_add_u32 v7, v6, 4, v7")
        a(f"s_add_u32 s30, s29, {LB_V}\nv_add_u32 v18, s30, v7")
        a("s_and_b32 s67, s18, 7\ns_lshr_b32 s68, s18, 3\ns_mul_i32 s69, s67, 160")
        a("s_and_b32 s29, s16, 3\ns_lshl_b32 s29, s29, 4\ns_lshl_b32 s30, s17, 8\ns_add_u32 s29, s29, s30\ns_lshl_b32 s30, s68, 6\ns_add_u32 s29, s29, s30")
        a("v_and_b32 v19, 15, v1\nv_add_u32 v163, s29, v19\nv_mul_u32_u24 v162, 1280, v163\nv_lshrrev_b32 v19, 4, v1\nv_lshl_add_u32 v162, v19, 3, v162")
        a("s_lshr_b32 s29, s16, 2\ns_mul_i32 s29, s29, 96\ns_add_u32 s29, s29, s69\nv_add_u32 v162, s29, v162")
        for i in range(3):
            a(f"buffer_load_dwordx2 v[{154+2*i}:{155+2*i}], v162, s[4:7], 0 offen offset:{32*i}")
        a("v_lshlrev_b32 v19, 4, v163\nbuffer_load_dwordx2 v[160:161], v19, s[12:15], 0 offen sc1")
        a("s_lshl_b32 s34, s63, 8\ns_lshl_b32 s35, s16, 5\ns_add_u32 s34, s34, s35")
        a(f"s_lshl_b32 s29, s16, 9\ns_add_u32 s29, s29, {LQ}\nv_add_u32 v5, s64, v3\nv_lshlrev_b32 v5, 12, v5\nv_lshl_add_u32 v5, v2, 4, v5\nv_add_u32 v6, s29, v5")
        a("s_sub_u32 s30, 1, s64\ns_lshl_b32 s30, s30, 13\ns_add_u32 s30, s30, s29\nv_lshl_add_u32 v7, v2, 4, s30")
        a(f"v_mov_b32 v5, {L_FLG}")
        self.stamp(5)
        self.lds_spin("v5", "v19", "s35", "ge", 2, off=8)
        self.stamp(6)
        a("ds_read_b128 v[8:11], v6\nds_read_b128 v[12:15], v7\ns_waitcnt lgkmcnt(0)")
        a("v_mov_b32 v6, 1\ns_mov_b64 exec, 1\nds_add_u32 v5, v6 offset:40\ns_mov_b64 exec, -1")
        a("v_cmp_gt_u32 vcc, 32, v1\nv_mov_b32 v5, 0\nv_mov_b32 v6, 0x3f80")
        a("s_cmp_eq_u32 s64, 1\ns_cbranch_scc1 L_b_qodd")
        a("v_cndmask_b32 v12, v5, v12, vcc\nv_cndmask_b32 v13, v5, v13, vcc\nv_mov_b32 v14, 0\nv_cndmask_b32 v15, v5, v6, vcc")
        a("s_branch L_b_qd")
        a("L_b_qodd:")
        a("v_mov_b32 v12, 0\nv_cndmask_b32 v13, v5, v6, vcc\nv_cndmask_b32 v14, v5, v14, vcc\nv_cndmask_b32 v15, v5, v15, vcc")
        a("L_b_qd:")
        KS = lambda kt: 20 + 8 * (kt & 1)
        VS = lambda kt: 36 + 8 * (kt & 1)
        SB = lambda kt: 52 + 16 * (kt & 1)
        def rdK(ps, kt):
            a(f"ds_read_b128 v[{KS(kt)}:{KS(kt)+3}], v16 offset:{512*kt}\nds_read_b128 v[{KS(kt)+4}:{KS(kt)+7}], v17 offset:{512*kt}")
            self.lg_issue(("K", ps, kt), 2)
        def rdV(kt):
            b = VS(kt)
            for j2 in range(2):
                for jj in range(2):
                    a(f"ds_read_b64_tr_b16 v[{b+4*j2+2*jj}:{b+4*j2+2*jj+1}], v18 offset:{512*kt+256*j2+128*jj}")
            self.lg_issue(("V", kt), 4)
        def cop(kt): return "v[124:139]" if kt == 0 else ("v[108:123]" if kt == 8 else "0")
        def qk1(kt): a(f"v_mfma_f32_32x32x16_bf16 v[{SB(kt)}:{SB(kt)+15}], v[{KS(kt)}:{KS(kt)+3}], v[8:11], {cop(kt)}")
        def qk2(kt): a(f"v_mfma_f32_32x32x16_bf16 v[{SB(kt)}:{SB(kt)+15}], v[{KS(kt)+4}:{KS(kt)+7}], v[12:15], v[{SB(kt)}:{SB(kt)+15}]")
        def maxes(kt):
            b = SB(kt)
            for i in range(8):
                acc = 140 + (i & 1)
                if kt == 0 and i < 2: a(f"v_max_f32 v{acc}, v{b+2*i}, v{b+2*i+1}")
                else: a(f"v_max3_f32 v{acc}, v{b+2*i}, v{b+2*i+1}, v{acc}")
        def ex(kt, r0, r1):
            for r in range(r0, r1): a(f"v_exp_f32 v{SB(kt)+r}, v{SB(kt)+r}")
        def cv(kt, i0, i1):
            for i in range(i0, i1): a(f"v_cvt_pk_bf16_f32 v{84+i}, v{SB(kt)+2*i}, v{SB(kt)+2*i+1}")
        self.lg_reset()
        rdK(1, 0); rdK(1, 1)
        for kt in range(9):
            self.lg_wait(("K", 1, kt))
            qk1(kt); qk2(kt)
            if kt + 2 <= 8: rdK(1, kt + 2)
            if kt == 7: rdK(2, 1)
            if kt == 8: rdK(2, 0); rdV(0); rdV(1)
            if kt >= 1: maxes(kt - 1)
        maxes(8)
        a("v_max_f32 v140, v140, v141\nv_mov_b32 v141, v140\nv_permlane32_swap_b32 v140, v141\nv_max_f32 v140, v140, v141")
        a("v_sub_f32 v140, 0, v140")
        a("v_cvt_pk_bf16_f32 v141, v140, v140\nv_lshlrev_b32 v141, 16, v141\nv_sub_f32 v141, v140, v141")
        a("v_cvt_pk_bf16_f32 v141, v140, v141")
        a("v_cmp_gt_u32 vcc, 32, v1\nv_mov_b32 v142, 0\nv_cndmask_b32 v141, v142, v141, vcc")
        a("s_cmp_eq_u32 s64, 1\ns_cbranch_scc1 L_b_mo\nv_mov_b32 v14, v141\ns_branch L_b_md\nL_b_mo:\nv_mov_b32 v12, v141\nL_b_md:")
        a("s_nop 1")
        self.lg_wait(("K", 2, 0))
        qk1(0); qk2(0)
        rdK(2, 2)
        for kt in range(9):
            if kt < 8:
                self.lg_wait(("K", 2, kt + 1)); qk1(kt + 1)
            ex(kt, 0, 4)
            if kt < 8:
                qk2(kt + 1)
                if kt + 3 <= 8: rdK(2, kt + 3)
            ex(kt, 4, 8); cv(kt, 0, 4); ex(kt, 8, 10)
            self.lg_wait(("V", kt))
            a(f"v_mfma_f32_32x32x16_bf16 v[92:107], v[{VS(kt)}:{VS(kt)+3}], v[84:87], {'0' if kt == 0 else 'v[92:107]'}")
            ex(kt, 10, 16); cv(kt, 4, 8)
            a(f"v_mfma_f32_32x32x16_bf16 v[92:107], v[{VS(kt)+4}:{VS(kt)+7}], v[88:91], v[92:107]")
            if kt + 2 <= 8: rdV(kt + 2)
        self.stamp(7)
        a("v_mov_b32 v140, v100\nv_mov_b32 v141, v100\nv_permlane32_swap_b32 v140, v141")
        a("v_rcp_f32 v141, v141")
        for r in range(12): a(f"v_mul_f32 v{92+r}, v{92+r}, v141")
        for i in range(6): a(f"v_cvt_pk_bf16_f32 v{84+i}, v{92+2*i}, v{92+2*i+1}")
        a("v_add_u32 v5, s34, v2\nv_lshlrev_b32 v5, 3, v5\nv_lshl_add_u32 v5, v3, 14, v5")
        a(f"s_mul_i32 s35, s62, {5*16384}\ns_add_u32 s35, s35, {WS_O}")
        a("buffer_store_dwordx2 v[84:85], v5, s[12:15], s35 offen sc1")
        a("s_add_u32 s35, s35, 32768\nbuffer_store_dwordx2 v[86:87], v5, s[12:15], s35 offen sc1")
        a("s_add_u32 s35, s35, 32768\ns_mov_b32 exec_hi, 0\nbuffer_store_dwordx2 v[88:89], v5, s[12:15], s35 offen sc1\ns_mov_b64 exec, -1")
        a("s_waitcnt vmcnt(0)")
        a(f"v_mov_b32 v5, {L_FLG}\nv_mov_b32 v6, 1\ns_mov_b64 exec, 1\nds_add_rtn_u32 v7, v5, v6 offset:12\ns_mov_b64 exec, -1\ns_waitcnt lgkmcnt(0)")
        a("v_readfirstlane_b32 s35, v7\ns_cmp_lg_u32 s35, 7\ns_cbranch_scc1 L_b_nf")
        a("ds_read_b32 v7, v5 offset:4\ns_waitcnt lgkmcnt(0)")
        a(f"s_lshl_b32 s35, s63, 5\ns_add_u32 s35, s35, s62\ns_lshl_b32 s35, s35, 6\ns_add_u32 s35, s35, {WS_F2}\nv_mov_b32 v6, s35")
        a("s_mov_b64 exec, 1\nbuffer_store_dword v7, v6, s[12:15], 0 offen sc1\ns_mov_b64 exec, -1")
        a("L_b_nf:")
        self.stamp(8)

    def phase_c(self):
        a = self.a
        a("; ---- phase C ----")
        self.post_srd = []
        self.srd(56, 64, 2621440)
        a("s_and_b32 s21, s16, 3\ns_lshr_b32 s22, s16, 2")
        a("v_and_b32 v2, 15, v1\nv_lshrrev_b32 v3, 4, v1\nv_mov_b32 v8, v163\nv_mov_b32 v10, v162")
        a(f"v_mov_b32 v5, {L_FLG}")
        a(f"s_mul_i32 s30, s22, {80*16384}\ns_add_u32 s30, s30, {WS_O}\nv_lshlrev_b32 v20, 3, v8\nv_lshl_add_u32 v20, v3, 15, v20")
        a("v_bfe_u32 v21, v1, 2, 2")
        a("v_lshrrev_b32 v22, 1, v21\nv_and_b32 v23, 1, v3\nv_lshl_or_b32 v22, v23, 1, v22")
        a("v_lshl_add_u32 v23, v3, 3, v21")
        a("v_and_b32 v24, 3, v1\nv_lshlrev_b32 v24, 3, v24")
        a("v_lshlrev_b32 v25, 7, v23\nv_lshl_add_u32 v25, v22, 5, v25\nv_add_u32 v25, v25, v24")
        a(f"s_mul_i32 s31, s22, {320*128}\ns_add_u32 s31, s31, {LA1}")
        a(f"s_cmp_eq_u32 s22, 0\ns_cselect_b32 s32, {LA1 + 128*128}, {LA2}")
        for nt in range(4):
            a(f"v_xor_b32 v26, {nt << 5}, v25\nv_add_u32 v{28+nt}, s31, v26\nv_add_u32 v{32+nt}, s32, v26")
        a("v_and_b32 v26, 1, v3\nv_lshlrev_b32 v26, 2, v26")
        a(f"s_mul_i32 s31, s22, {320*32}\ns_add_u32 s31, s31, {LBB}")
        for jj in range(2):
            a(f"v_xor_b32 v27, {4*jj}, v26\nv_add_u32 v27, v27, v23\nv_lshl_add_u32 v27, v27, 5, v24\nv_add_u32 v{36+jj}, s31, v27")
        a("s_waitcnt lgkmcnt(0)")
        self.srd_fin()
        a("ds_read_b32 v6, v5 offset:4\nv_lshlrev_b32 v11, 4, v8\ns_waitcnt lgkmcnt(0)")
        a("L_c_st:\nv_cmp_ne_u32 vcc, v6, v161\ns_cbranch_vccz L_c_stok")
        a("buffer_load_dwordx2 v[160:161], v11, s[12:15], 0 offen sc1\ns_waitcnt vmcnt(0)\ns_add_u32 s100, s100, 1\ns_bitcmp1_b32 s100, 21\ns_cbranch_scc0 L_c_st\nL_c_stok:")
        a("v_lshlrev_b32 v22, 16, v160\nv_and_b32 v23, 0xffff0000, v160\nv_rcp_f32 v23, v23")
        for i in range(3):
            for d in range(2):
                a(f"v_lshlrev_b32 v{40+4*i+2*d}, 16, v{154+2*i+d}\nv_and_b32 v{41+4*i+2*d}, 0xffff0000, v{154+2*i+d}")
            for d in range(2):
                e = 40 + 4 * i + 2 * d; o = 52 + 4 * i + 2 * d
                a(f"v_sub_f32 v{o}, v{e}, v22\nv_sub_f32 v{o+1}, v{e+1}, v22")
                a(f"v_cvt_pk_bf16_f32 v26, v{o}, v{o+1}\nv_lshlrev_b32 v{o}, 16, v26\nv_and_b32 v{o+1}, 0xffff0000, v26")
                a(f"v_mul_f32 v{o}, v{o}, v23\nv_mul_f32 v{o+1}, v{o+1}, v23")
                a(f"v_cvt_pk_bf16_f32 v26, v{o}, v{o+1}\nv_lshlrev_b32 v{o}, 16, v26\nv_and_b32 v{o+1}, 0xffff0000, v26")
        self.lds_spin("v5", "v6", "s35", "ge", 1, off=16)
        self.stamp(9)
        for sl in range(10):
            a(f"s_add_u32 s31, s30, {sl*8*16384}\nbuffer_load_dwordx2 v[{64+4*sl}:{65+4*sl}], v20, s[12:15], s31 offen sc1")
            a(f"s_add_u32 s31, s31, 16384\nbuffer_load_dwordx2 v[{66+4*sl}:{67+4*sl}], v20, s[12:15], s31 offen sc1")
        self.lds_spin("v5", "v6", "s35", "ge", 2, off=32)
        self.lg_reset()
        def rdW(sl):
            b = 104 + 20 * (sl & 1)
            for nt in range(4):
                ar = (28 if sl < 4 else 32) + nt
                off = (sl if sl < 4 else sl - 4) * 4096
                a(f"ds_read_b64_tr_b16 v[{b+4*nt}:{b+4*nt+1}], v{ar} offset:{off}\nds_read_b64_tr_b16 v[{b+4*nt+2}:{b+4*nt+3}], v{ar} offset:{off+512}")
            a(f"ds_read_b64_tr_b16 v[{b+16}:{b+17}], v36 offset:{1024*sl}\nds_read_b64_tr_b16 v[{b+18}:{b+19}], v37 offset:{1024*sl}")
            self.lg_issue(("W", sl), 10)
        rdW(0)
        for sl in range(10):
            if sl + 1 < 10: rdW(sl + 1)
            self.lg_wait(("W", sl))
            a(f"s_waitcnt vmcnt({2 * (9 - sl)})")
            b = 104 + 20 * (sl & 1)
            for nt in range(5):
                c = "0" if sl == 0 else f"v[{144+4*nt}:{147+4*nt}]"
                a(f"v_mfma_f32_16x16x32_bf16 v[{144+4*nt}:{147+4*nt}], v[{b+4*nt}:{b+4*nt+3}], v[{64+4*sl}:{67+4*sl}], {c}")
        a(f"s_mul_i32 s29, s16, 3072\ns_add_u32 s29, s29, {L_EX}\nv_lshlrev_b32 v26, 4, v1\nv_add_u32 v26, s29, v26")
        a("s_cmp_eq_u32 s22, 0\ns_cbranch_scc0 L_c_x1")
        a("ds_write_b128 v26, v[156:159]\nds_write_b128 v26, v[160:163] offset:1024")
        a("s_branch L_c_x2")
        a("L_c_x1:")
        a("ds_write_b128 v26, v[144:147]\nds_write_b128 v26, v[148:151] offset:1024\nds_write_b128 v26, v[152:155] offset:2048")
        for k in range(8): a(f"v_mov_b32 v{144+k}, v{156+k}")
        a("L_c_x2:")
        a(f"s_lshl_b32 s29, s16, 2\ns_add_u32 s29, s29, {L_FLG+64}\nv_mov_b32 v27, s29\nv_mov_b32 v6, 1\ns_waitcnt lgkmcnt(0)")
        a("s_mov_b64 exec, 1\nds_write_b32 v27, v6\ns_mov_b64 exec, -1")
        a(f"s_xor_b32 s31, s16, 4\ns_lshl_b32 s29, s31, 2\ns_add_u32 s29, s29, {L_FLG+64}\nv_mov_b32 v27, s29")
        self.lds_spin("v27", "v6", "s35", "ge", 1)
        a(f"s_mul_i32 s29, s31, 3072\ns_add_u32 s29, s29, {L_EX}\nv_lshlrev_b32 v26, 4, v1\nv_add_u32 v26, s29, v26")
        a("ds_read_b128 v[104:107], v26\nds_read_b128 v[108:111], v26 offset:1024\nds_read_b128 v[112:115], v26 offset:2048")
        a("s_waitcnt lgkmcnt(0)")
        for k in range(12): a(f"v_add_f32 v{144+k}, v{144+k}, v{104+k}")
        self.moe_hook()
        for i in range(3):
            if i == 2: a("s_cmp_eq_u32 s22, 1\ns_cbranch_scc1 L_c_done")
            for d in range(2):
                ac = 144 + 4 * i + 2 * d; e = 40 + 4 * i + 2 * d; o = 52 + 4 * i + 2 * d
                a(f"v_cvt_pk_bf16_f32 v26, v{ac}, v{ac+1}\nv_lshlrev_b32 v{ac}, 16, v26\nv_and_b32 v{ac+1}, 0xffff0000, v26")
                a(f"v_add_f32 v{ac}, v{ac}, v{e}\nv_add_f32 v{ac+1}, v{ac+1}, v{e+1}")
                a(f"v_cvt_pk_bf16_f32 v26, v{ac}, v{ac+1}\nv_lshlrev_b32 v{ac}, 16, v26\nv_and_b32 v{ac+1}, 0xffff0000, v26")
                a(f"v_add_f32 v{ac}, v{ac}, v{o}\nv_add_f32 v{ac+1}, v{ac+1}, v{o+1}")
                a(f"v_cvt_pk_bf16_f32 v{104+2*i+d}, v{ac}, v{ac+1}")
            a(f"buffer_store_dwordx2 v[{104+2*i}:{105+2*i}], v10, s[56:59], 0 offen offset:{32*i}")
        a("L_c_done:")

    def moe_hook(self):
        a = self.a
        if "nomoe" in self.opts: return
        self.lds_spin("v5", "v6", "s35", "ge", 1, off=20)
        a("ds_read_b64 v[26:27], v5 offset:24\nds_read_b32 v6, v5 offset:4\ns_waitcnt lgkmcnt(0)")
        a("v_cmp_eq_u32 s[30:31], v26, v8\nv_cmp_eq_u32 s[32:33], v27, v8\ns_or_b64 s[34:35], s[30:31], s[32:33]")
        a("s_cmp_eq_u64 s[34:35], 0\ns_cbranch_scc1 L_c_nomoe")
        a(f"s_lshl_b32 s29, s69, 2\ns_mul_i32 s36, s22, 384\ns_add_u32 s29, s29, s36\ns_add_u32 s29, s29, {WS_UPD}\nv_lshlrev_b32 v7, 5, v3")
        a("L_c_upd:")
        for i in range(3):
            a(f"buffer_load_dwordx4 v[{104+8*i}:{107+8*i}], v7, s[12:15], s29 offen offset:{128*i} sc1")
            a(f"buffer_load_dwordx4 v[{108+8*i}:{111+8*i}], v7, s[12:15], s29 offen offset:{128*i+16} sc1")
        a("s_waitcnt vmcnt(0)")
        a("v_cmp_ne_u32 vcc, v6, v105")
        regs = [105 + 2 * k for k in range(1, 8)]
        for r in regs: a(f"v_cmp_ne_u32 s[36:37], v6, v{r}\ns_or_b64 vcc, vcc, s[36:37]")
        L = a.label("u3")
        a(f"s_cmp_eq_u32 s22, 1\ns_cbranch_scc1 {L}")
        for r in [121, 123, 125, 127]: a(f"v_cmp_ne_u32 s[36:37], v6, v{r}\ns_or_b64 vcc, vcc, s[36:37]")
        a(f"{L}:")
        a("s_and_b64 vcc, vcc, s[34:35]\ns_cbranch_vccz L_c_upd_o\ns_add_u32 s100, s100, 1\ns_bitcmp1_b32 s100, 21\ns_cbranch_scc0 L_c_upd\nL_c_upd_o:")
        for i in range(3):
            for e in range(4):
                g = 104 + 8 * i + 2 * e; o = 52 + 4 * i + e
                a(f"v_lshlrev_b32 v26, 16, v{g}\nv_and_b32 v27, 0xffff0000, v{g}\nv_cndmask_b32 v26, v27, v26, s[30:31]")
                a(f"v_add_f32 v26, v{o}, v26\nv_cvt_pk_bf16_f32 v26, v26, v26\nv_lshlrev_b32 v26, 16, v26\nv_cndmask_b32 v{o}, v{o}, v26, s[34:35]")
        a("L_c_nomoe:")

    def moe_aux(self):
        a = self.a
        L_XS = L_MISC; L_H = L_MISC
        self.post_srd = []
        self.srd(52, 56, 1966080)
        a("s_waitcnt lgkmcnt(0)")
        self.srd_fin()
        def wd_dma():
            a("s_mul_i32 s29, s17, 10\ns_add_u32 s29, s29, s18\ns_sub_u32 s29, s29, 22\ns_lshl_b32 s29, s29, 4")
            a("v_mul_u32_u24 v6, 1280, v1\nv_add_u32 v6, s29, v6")
            for i in range(24):
                a(f"s_mov_b32 m0, {L_AUX + 1024*i + (64 if i >= 12 else 0)}\ns_mov_b32 s30, {i*81920}\nbuffer_load_dwordx4 v6, s[52:55], s30 offen lds")
        a(f"v_lshlrev_b32 v6, 4, v1\nv_add_u32 v6, {WS_FR}, v6")
        a("L_m_fr:")
        for i in range(4): a(f"buffer_load_dwordx4 v[{16+4*i}:{19+4*i}], v6, s[12:15], 0 offen offset:{1024*i} sc1")
        a("s_waitcnt vmcnt(0)")
        a("v_cmp_ne_u32 vcc, s61, v17")
        for r in (19, 21, 23, 25, 27, 29, 31): a(f"v_cmp_ne_u32 s[62:63], s61, v{r}\ns_or_b64 vcc, vcc, s[62:63]")
        a("s_cbranch_vccz L_m_fr_o\ns_add_u32 s100, s100, 1\ns_bitcmp1_b32 s100, 21\ns_cbranch_scc0 L_m_fr\nL_m_fr_o:")
        a("v_mov_b32 v8, v16\nv_mov_b32 v10, v18")
        for i in range(1, 4): self.top2_merge("v8", "v10", f"v{16+4*i}", f"v{18+4*i}", "v14")
        self.top2_wave("v8", "v10", "v12", "v13", "v14")
        a("v_readfirstlane_b32 s64, v8\nv_readfirstlane_b32 s65, v10")
        a("s_and_b32 s66, s64, 0x7ff\ns_sub_u32 s66, 2047, s66\ns_and_b32 s67, s65, 0x7ff\ns_sub_u32 s67, 2047, s67")
        a(f"v_mov_b32 v6, {L_FLG}\nv_mov_b32 v12, s66\nv_mov_b32 v13, s67\nv_mov_b32 v14, 1\nds_write_b64 v6, v[12:13] offset:24\ns_waitcnt lgkmcnt(0)\nds_write_b32 v6, v14 offset:20")
        for k, d in (("s64", "s68"), ("s65", "s69")):
            a(f"s_lshr_b32 s29, {k}, 16\ns_and_b32 s30, s29, 0x7fff\ns_xor_b32 s31, s29, 0xffff\ns_bitcmp1_b32 s29, 15\ns_cselect_b32 {d}, s30, s31\ns_lshl_b32 {d}, {d}, 16")
        self.stamp(5)
        a(f"v_mov_b32 v6, {L_FLG}")
        self.lds_spin("v6", "v7", "s35", "ge", 4, off=44)
        a("s_cmp_ge_u32 s18, 24\ns_cbranch_scc1 L_m_y")
        a("v_cmp_gt_u32 vcc, 32, v1\nv_mov_b32 v6, s67\nv_mov_b32 v7, s66\nv_cndmask_b32 v6, v6, v7, vcc")
        a("v_and_b32 v7, 31, v1\nv_mul_u32_u24 v8, 1280, v6\nv_lshl_add_u32 v8, v7, 3, v8\nv_lshlrev_b32 v9, 4, v6")
        for i in range(5): a(f"buffer_load_dwordx2 v[{16+2*i}:{17+2*i}], v8, s[4:7], 0 offen offset:{256*i}")
        a("s_mul_i32 s29, s17, 24\ns_add_u32 s29, s29, s18\ns_mov_b32 s57, s29")
        a("L_m_st:\nbuffer_load_dwordx2 v[14:15], v9, s[12:15], 0 offen sc1\ns_waitcnt vmcnt(0)")
        a("v_cmp_ne_u32 vcc, s61, v15\ns_cbranch_vccz L_m_st_o\ns_add_u32 s100, s100, 1\ns_bitcmp1_b32 s100, 21\ns_cbranch_scc0 L_m_st\nL_m_st_o:")
        a("v_mov_b32 v15, v14")
        a("v_lshlrev_b32 v12, 16, v15\nv_and_b32 v13, 0xffff0000, v15\nv_rcp_f32 v13, v13")
        a(f"v_lshrrev_b32 v14, 5, v1\nv_mul_u32_u24 v14, 1280, v14\nv_lshl_add_u32 v14, v7, 3, v14\nv_add_u32 v14, {L_XS}, v14")
        for i in range(5):
            for d in range(2):
                r = 16 + 2 * i + d
                a(f"v_lshlrev_b32 v30, 16, v{r}\nv_and_b32 v31, 0xffff0000, v{r}\nv_sub_f32 v30, v30, v12\nv_sub_f32 v31, v31, v12")
                a("v_cvt_pk_bf16_f32 v32, v30, v31\nv_lshlrev_b32 v30, 16, v32\nv_and_b32 v31, 0xffff0000, v32")
                a(f"v_mul_f32 v30, v30, v13\nv_mul_f32 v31, v31, v13\nv_cvt_pk_bf16_f32 v{r}, v30, v31")
            a(f"ds_write_b64 v14, v[{16+2*i}:{17+2*i}] offset:{256*i}")
        a(f"v_and_b32 v30, 1, v1\nv_mul_u32_u24 v30, 1280, v30\nv_lshrrev_b32 v31, 4, v1\nv_lshl_add_u32 v30, v31, 4, v30\nv_add_u32 v30, {L_XS}, v30")
        a("v_bfe_u32 v32, v1, 2, 2\nv_lshl_add_u32 v32, v31, 3, v32\nv_lshlrev_b32 v32, 4, v32\nv_and_b32 v33, 1, v1\nv_lshl_add_u32 v32, v33, 3, v32")
        a(f"v_bfe_u32 v33, v1, 1, 1\nv_mul_u32_u24 v33, 10304, v33\nv_add3_u32 v32, v32, v33, {L_AUX}") if False else None
        a(f"v_bfe_u32 v33, v1, 1, 1\nv_mul_u32_u24 v33, 10304, v33\nv_add_u32 v32, v32, v33\nv_add_u32 v32, {L_AUX}, v32")
        a(f"v_mov_b32 v6, {L_FLG}\ns_waitcnt lgkmcnt(0)")
        self.lds_spin("v6", "v7", "s35", "ge", 1, off=36)
        self.small_gemm(20, 64, 64, 512)
        for c in range(2):
            d = 40 + c
            a(f"v_cvt_pk_bf16_f32 v{d}, v{d}, v{d}\nv_lshlrev_b32 v{d}, 16, v{d}")
            a(f"v_mov_b32_dpp v{44+c}, v{d} row_ror:8 row_mask:0xf bank_mask:0xf")
            a(f"v_mul_f32 v46, {f32hex(-1.4426950408889634)}, v{d}\nv_exp_f32 v46, v46\nv_add_f32 v46, 1.0, v46\nv_rcp_f32 v46, v46\nv_mul_f32 v46, v{d}, v46")
            a(f"v_cvt_pk_bf16_f32 v46, v46, v46\nv_lshlrev_b32 v46, 16, v46\nv_mul_f32 v{d}, v46, v{44+c}")
        a("v_cvt_pk_bf16_f32 v48, v40, v41\nv_mov_b32 v49, s61")
        a(f"s_lshl_b32 s29, s57, 6\ns_add_u32 s29, s29, {WS_XH}\nv_lshlrev_b32 v6, 3, v1\ns_mov_b64 exec, 0xff")
        a("buffer_store_dwordx2 v[48:49], v6, s[12:15], s29 offen sc1\ns_mov_b64 exec, -1")
        self.stamp(6)
        a("s_cmp_lt_u32 s18, 22\ns_cbranch_scc1 L_m_end")
        a(f"v_mov_b32 v6, {L_FLG}")
        self.lds_spin("v6", "v7", "s35", "ge", 8, off=12)
        wd_dma()
        a("L_m_y:")
        a(f"v_lshlrev_b32 v6, 4, v1\nv_lshlrev_b32 v7, 2, v1\nv_add_u32 v7, {L_H}, v7")
        a("L_m_xh:")
        for i in range(12):
            a(f"s_mov_b32 s30, {WS_XH + 1024*i}\nbuffer_load_dwordx4 v[{64+4*i}:{67+4*i}], v6, s[12:15], s30 offen sc1")
        a("s_waitcnt vmcnt(0)")
        a("v_cmp_ne_u32 vcc, s61, v65")
        for r in [65 + 2 * k for k in range(1, 24)]: a(f"v_cmp_ne_u32 s[62:63], s61, v{r}\ns_or_b64 vcc, vcc, s[62:63]")
        a("s_cbranch_vccz L_m_xhok\ns_sleep 4\ns_add_u32 s100, s100, 1\ns_bitcmp1_b32 s100, 21\ns_cbranch_scc0 L_m_xh\nL_m_xhok:")
        for i in range(12):
            A, B = 64 + 4 * i, 66 + 4 * i
            a(f"v_and_b32 v12, 0xffff, v{A}\nv_lshl_or_b32 v12, v{B}, 16, v12\nv_lshrrev_b32 v13, 16, v{A}\nv_and_or_b32 v13, v{B}, s28, v13")
            a(f"ds_write_b32 v7, v12 offset:{256*i}\nds_write_b32 v7, v13 offset:{3072+256*i}")
        a(f"v_and_b32 v30, 1, v1\nv_mul_u32_u24 v30, 3072, v30\nv_bfe_u32 v33, v1, 1, 1\nv_mul_u32_u24 v33, 1536, v33\nv_lshrrev_b32 v31, 4, v1")
        a(f"v_lshl_add_u32 v30, v31, 4, v30\nv_add_u32 v30, v30, v33\nv_add_u32 v30, {L_H}, v30")
        a("v_bfe_u32 v32, v1, 2, 2\nv_lshl_add_u32 v32, v31, 3, v32\nv_lshlrev_b32 v32, 4, v32\nv_and_b32 v33, 1, v1\nv_lshl_add_u32 v32, v33, 3, v32")
        a(f"v_bfe_u32 v33, v1, 1, 1\nv_mul_u32_u24 v33, 12352, v33\nv_add_u32 v32, v32, v33\nv_add_u32 v32, {L_AUX}, v32")
        a(f"v_mov_b32 v6, {L_FLG}\ns_waitcnt vmcnt(0) lgkmcnt(0)")
        self.lds_spin("v6", "v7", "s35", "ge", 1, off=36)
        self.small_gemm(24, 64, 64, 512)
        for c in range(2):
            a(f"v_mov_b32_dpp v44, v{42+c} row_ror:8 row_mask:0xf bank_mask:0xf\nv_add_f32 v{40+c}, v{40+c}, v44")
            a(f"v_cvt_pk_bf16_f32 v{40+c}, v{40+c}, v{40+c}\nv_lshlrev_b32 v{40+c}, 16, v{40+c}")
            sr = "s68" if c == 0 else "s69"
            a(f"v_mov_b32 v46, {sr}\nv_mul_f32 v46, {f32hex(-1.4426950408889634)}, v46\nv_exp_f32 v46, v46\nv_add_f32 v46, 1.0, v46\nv_rcp_f32 v46, v46")
            a(f"v_cvt_pk_bf16_f32 v46, v46, v46\nv_lshlrev_b32 v46, 16, v46\nv_mul_f32 v{40+c}, v{40+c}, v46")
        a("v_cvt_pk_bf16_f32 v48, v40, v41\nv_mov_b32 v49, s61")
        a(f"s_mul_i32 s29, s17, 10\ns_add_u32 s29, s29, s18\ns_sub_u32 s29, s29, 22\ns_lshl_b32 s29, s29, 6\ns_add_u32 s29, s29, {WS_UPD}\nv_lshlrev_b32 v6, 3, v1\ns_mov_b64 exec, 0xff")
        a("buffer_store_dwordx2 v[48:49], v6, s[12:15], s29 offen sc1\ns_mov_b64 exec, -1")
        self.stamp(7)
        a("L_m_end:")

    def small_gemm(self, nk, astride, jjoff, bstride):
        a = self.a
        self.lg_reset()
        def rd(s_):
            b = 50 + 8 * (s_ % 3)
            a(f"ds_read_b128 v[{b}:{b+3}], v30 offset:{astride*s_}")
            a(f"ds_read_b64_tr_b16 v[{b+4}:{b+5}], v32 offset:{bstride*s_}\nds_read_b64_tr_b16 v[{b+6}:{b+7}], v32 offset:{bstride*s_+jjoff}")
            self.lg_issue(("G", s_), 3)
        rd(0); rd(1)
        for s_ in range(nk):
            if s_ + 2 < nk: rd(s_ + 2)
            self.lg_wait(("G", s_))
            b = 50 + 8 * (s_ % 3)
            a(f"v_mfma_f32_16x16x32_bf16 v[40:43], v[{b}:{b+3}], v[{b+4}:{b+7}], {'0' if s_ == 0 else 'v[40:43]'}")

    def aux(self):
        a = self.a
        a("L_aux:")
        self.post_srd = []
        self.srd(40, 72, 256)
        a("v_mov_b32 v2, 0")
        a(f"v_lshlrev_b32 v6, 2, v1\nv_add_u32 v6, {L_FLG}, v6\ns_mov_b32 exec_hi, 0\nds_write_b32 v6, v2\ns_mov_b64 exec, -1")
        a("s_memrealtime s[54:55]")
        a("s_lshl_b32 s23, s46, 2\ns_add_u32 s23, s23, s20")
        a("s_waitcnt lgkmcnt(0)")
        self.srd_fin()
        self.stamp(0)
        a("v_mov_b32 v9, 0")
        a("s_cmp_lg_u32 s2, 0\ns_cbranch_scc1 L_x_non")
        a("s_or_b32 s54, s54, 1\nv_mov_b32 v10, s54\ns_mov_b64 exec, 1\nbuffer_store_dword v10, v9, s[40:43], 0 offen sc1\ns_mov_b64 exec, -1")
        a("L_x_non:")
        a("s_getreg_b32 s52, hwreg(HW_REG_XCC_ID, 0, 4)")
        a("s_and_b32 s52, s52, 7\ns_or_b32 s52, s52, 16\ns_mov_b32 s28, 0xffff0000")
        a("s_barrier")
        a("buffer_load_dword v10, v9, s[40:43], 0 offen sc1")
        def get_nonce():
            a("s_waitcnt vmcnt(0)")
            a("L_x_wn:\nv_cmp_ne_u32 vcc, 0, v10\ns_cbranch_vccnz L_x_gotn")
            a("buffer_load_dword v10, v9, s[40:43], 0 offen sc1\ns_waitcnt vmcnt(0)\ns_add_u32 s100, s100, 1\ns_bitcmp1_b32 s100, 21\ns_cbranch_scc0 L_x_wn")
            a("L_x_gotn:")
            a("v_readfirstlane_b32 s61, v10")
            a(f"v_mov_b32 v6, {L_FLG}\nds_write_b32 v6, v10 offset:4")
            a(f"s_lshl_b32 s31, s17, 5\ns_add_u32 s31, s31, s18\ns_lshl_b32 s31, s31, 4\ns_add_u32 s31, s31, {WS_XF}")
            a("v_mov_b32 v14, s52\nv_mov_b32 v15, v10\ns_mov_b64 exec, 1\nbuffer_store_dwordx2 v[14:15], v9, s[12:15], s31 offen sc1\ns_mov_b64 exec, -1")
            self.stamp(1)
        def pub_st():
            a(f"v_and_b32 v12, 7, v1\nv_lshlrev_b32 v13, 3, v12\nv_add_u32 v13, {L_OWN}, v13\nds_read_b64 v[18:19], v13")
            a("s_lshl_b32 s29, s23, 3\ns_lshl_b32 s30, s19, 7\ns_add_u32 s29, s29, s30\ns_lshl_b32 s29, s29, 4")
            a("v_lshlrev_b32 v12, 4, v1\nv_mov_b32 v21, s61\nv_mov_b32 v23, s61")
            a("s_waitcnt lgkmcnt(0)\nv_mov_b32 v20, v18\nv_mov_b32 v22, v19")
            a("s_mov_b64 exec, 0xff\nbuffer_store_dwordx4 v[20:23], v12, s[12:15], s29 offen sc1\ns_mov_b64 exec, -1")
            a("v_cmp_gt_u32 vcc, 8, v1\nv_mov_b32 v30, 0\nv_cndmask_b32 v30, v30, v19, vcc\nv_mov_b32 v32, 0")
            for ctrl in ("quad_perm:[1,0,3,2]", "quad_perm:[2,3,0,1]", "row_half_mirror"):
                a(f"v_mov_b32_dpp v34, v30 {ctrl} row_mask:0xf bank_mask:0xf\nv_mov_b32_dpp v35, v32 {ctrl} row_mask:0xf bank_mask:0xf")
                self.top2_merge("v30", "v32", "v34", "v35", "v36")
            a(f"s_lshl_b32 s29, s2, 4\ns_add_u32 s29, s29, {WS_FR}\nv_mov_b32 v28, s29\nv_mov_b32 v31, s61\nv_mov_b32 v33, s61")
            a("s_mov_b64 exec, 1\nbuffer_store_dwordx4 v[30:33], v28, s[12:15], 0 offen sc1\ns_mov_b64 exec, -1")
        def gather_issue():
            a(f"s_lshl_b32 s29, s19, 11\ns_add_u32 s29, s29, {WS_ST}\nv_lshlrev_b32 v9, 5, v1")
            a("buffer_load_dwordx4 v[40:43], v9, s[12:15], s29 offen sc1")
            a("buffer_load_dwordx4 v[44:47], v9, s[12:15], s29 offen offset:16 sc1")
            a(f"s_lshl_b32 s31, s17, 9\ns_add_u32 s31, s31, {WS_XF}\nv_and_b32 v16, 31, v1\nv_lshlrev_b32 v16, 4, v16")
            a("buffer_load_dwordx2 v[18:19], v16, s[12:15], s31 offen sc1")
        def gather_check(Lok):
            a("s_waitcnt vmcnt(0)")
            a("v_cmp_ne_u32 vcc, s61, v41\nv_cmp_ne_u32 s[62:63], s61, v45\ns_or_b64 vcc, vcc, s[62:63]")
            if "nocheck" in self.opts: a(f"s_branch {Lok}")
            a(f"s_cbranch_vccz {Lok}")
        tst = self.b_stats
        for t in range(9):
            a("s_barrier")
            if t == 1: get_nonce()
            if t == tst: pub_st()
            if t == max(self.TG, tst + 2): gather_issue()
        gather_check("L_x_gdone")
        a("L_x_gretry:")
        gather_issue()
        gather_check("L_x_gdone")
        self.guard("L_x_gretry")
        a("L_x_gdone:")
        a("v_lshlrev_b32 v24, 16, v40\nv_and_b32 v25, 0xffff0000, v40\nv_lshlrev_b32 v26, 16, v44\nv_and_b32 v27, 0xffff0000, v44")
        a("v_rcp_f32 v25, v25\nv_rcp_f32 v27, v27")
        a(f"v_lshlrev_b32 v28, 4, v1\nv_add_u32 v28, {L_STAT}, v28")
        a("ds_write_b128 v28, v[24:27]")
        a("s_waitcnt vmcnt(0)")
        a("v_cmp_ne_u32 vcc, s52, v18\nv_cmp_ne_u32 s[62:63], s61, v19\ns_or_b64 vcc, vcc, s[62:63]")
        a("s_cmp_eq_u64 vcc, 0\ns_cselect_b32 s56, 1, 0")
        a("s_and_b32 s57, s19, 14\ns_cmp_eq_u32 s57, 6\ns_cselect_b32 s56, 0, s56")
        if "slow" in self.opts: a("s_mov_b32 s56, 0")
        a(f"v_mov_b32 v28, {L_FLG}\nv_mov_b32 v29, s56\nds_write_b32 v28, v29\ns_waitcnt lgkmcnt(0)")
        self.stamp(2)
        a("s_barrier")
        self.stamp(3); self.stamp(4)
        if self.stop_after is None:
            a("s_mov_b32 s28, 0xffff0000\ns_setprio 3")
            if self.stamps:
                for k in (5, 6, 7): a(f"s_mov_b64 s[{72+2*k}:{73+2*k}], 0")
            if "nomoe" not in self.opts: self.moe_aux()
        if "lstamp" not in self.opts and "lloop" not in self.opts: self.fin_stamps(8 if self.stop_after is None else 5, wave=10, slot=1)
        a("s_endpgm")

if __name__ == "__main__":
    import argparse
    ap = argparse.ArgumentParser()
    ap.add_argument("-o", default="k.s")
    ap.add_argument("--stamps", action="store_true")
    ap.add_argument("--opt", action="append", default=[])
    args = ap.parse_args()
    g = Gen(stamps=args.stamps, opts=args.opt)
    open(args.o, "w").write(g.build())
    print("wrote", args.o)
```

```python
import sys, struct
from asmlib import Asm

KNAME = "parallel_sum__sliding_block__moe_arch_mod__prompt_kernel"

WS_ST = 0
WS_CSP = 0x8000
WS_F1 = 0x48000
WS_F2 = 0xBC0000
WS_FR = 0x57000
WS_XF = 0x50400
WS_XH = 0x52000
WS_UPD = 0x55000
WS_P1 = 0x60000
WS_P3 = 0xB80000
WS_QKV = 0x100000
WS_O = 0x900000
WS_DBG = 0xC00000
WS_SIZE = 0xD00000
L_MISC = 131072
L_STAT = L_MISC
L_CS = L_MISC + 1024
L_CSW = L_MISC + 2176
L_OWN = L_MISC + 2048
L_FLG = L_MISC + 6400
L_XS = L_MISC + 6656
L_HS = L_MISC + 6912
L_AUX = 138240
LB_K = 0
LB_V = 24768
PLS = 8256
LA1 = 49664
LBB = 107008
LA2 = 0
L_EX = 24832
LQ = 107008
NEGF = "0xf149f2ca"
LDS_BYTES = 163840
QSCALE = 0.22360679774997896 * 1.4426950408889634

def f32hex(x):
    return "0x%08x" % struct.unpack("<I", struct.pack("<f", x))[0]

class Gen:
    def __init__(self, stop_after=None, stamps=False, opts=()):
        self.a = Asm()
        self.opts = set(opts)
        self.stop_after = stop_after
        self.stamps = stamps
        self.in_main = False
        self.swave = 0; self.quota = 24; self.TG = 6; self.TP = 1; self.SIDE0 = 1; self.Q0 = 50; self.Q1 = 100; self.LM0 = 1; self.BACK = 8; self.PRE = 3
        for o in self.opts:
            if o.startswith("swave="): self.swave = int(o[6:])
            if o.startswith("quota="): self.quota = int(o[6:])
            if o.startswith("pre="): self.PRE = int(o[4:])
            if o.startswith("tg="): self.TG = int(o[3:])
            if o.startswith("side0="): self.SIDE0 = int(o[6:])
            if o.startswith("tp="): self.TP = int(o[3:])
            if o.startswith("q0="): self.Q0 = int(o[3:])
            if o.startswith("q1="): self.Q1 = int(o[3:])
            if o.startswith("lm0="): self.LM0 = int(o[4:])
            if o.startswith("back="): self.BACK = int(o[5:])
            if o.startswith("stop="): self.stop_after = o[5:]

    def srd(self, base, kofs, size):
        self.a(f"s_load_dwordx2 s[{base}:{base+1}], s[0:1], {kofs}")
        self.post_srd.append((base, size))
    def srd_fin(self):
        for base, size in self.post_srd:
            self.a(f"s_mov_b32 s{base+2}, {size}\ns_mov_b32 s{base+3}, 0x20000")
        self.post_srd = []
    def stamp(self, idx):
        if self.stamps and self.in_main and "bst" in self.opts and idx != 0: return
        if self.stamps:
            self.a(f"s_memrealtime s[{72+2*idx}:{73+2*idx}]")
            if idx == 0: self.a("s_memtime s[96:97]")
    def fin_stamps(self, n, wave=0, slot=0):
        if not self.stamps: return
        a = self.a
        L = a.label("nostamp")
        a("s_memtime s[98:99]")
        a("s_waitcnt lgkmcnt(0)")
        a(f"s_cmp_lg_u32 s16, {wave}\ns_cbranch_scc1 {L}")
        a(f"s_lshl_b32 s29, s2, 8\ns_add_u32 s29, s29, {WS_DBG + 128*slot}\nv_mov_b32 v4, s29\ns_mov_b64 exec, 1")
        for i in range(n):
            a(f"v_mov_b32 v6, s{72+2*i}\nv_mov_b32 v7, s{73+2*i}\nbuffer_store_dwordx2 v[6:7], v4, s[12:15], 0 offen offset:{8*i}")
        a("s_sub_u32 s98, s98, s96\nv_mov_b32 v6, s98\nv_mov_b32 v7, 0\nbuffer_store_dwordx2 v[6:7], v4, s[12:15], 0 offen offset:120")
        a(f"s_mov_b64 exec, -1\n{L}:")

    def top2_merge(self, a1, a2, b1, b2, mn):
        a = self.a
        a(f"v_min_u32 {mn}, {a1}, {b1}")
        a(f"v_max_u32 {a1}, {a1}, {b1}")
        a(f"v_max3_u32 {a2}, {a2}, {b2}, {mn}")
    def top2_wave(self, a1, a2, b1, b2, mn):
        a = self.a
        for ctrl in ("quad_perm:[1,0,3,2]", "quad_perm:[2,3,0,1]", "row_half_mirror", "row_mirror"):
            a(f"v_mov_b32_dpp {b1}, {a1} {ctrl} row_mask:0xf bank_mask:0xf")
            a(f"v_mov_b32_dpp {b2}, {a2} {ctrl} row_mask:0xf bank_mask:0xf")
            self.top2_merge(a1, a2, b1, b2, mn)
        for sw in ("v_permlane16_swap_b32", "v_permlane32_swap_b32"):
            a(f"v_mov_b32 {b1}, {a1}\nv_mov_b32 {b2}, {a2}")
            a(f"{sw} {a1}, {b1}\n{sw} {a2}, {b2}")
            self.top2_merge(a1, a2, b1, b2, mn)
    def sum_wave_lines(self, regs, tmps):
        out = []
        for ctrl in ("quad_perm:[1,0,3,2]", "quad_perm:[2,3,0,1]", "row_half_mirror", "row_mirror"):
            for r in regs: out.append(f"v_add_f32_dpp {r}, {r}, {r} {ctrl} row_mask:0xf bank_mask:0xf")
        for sw in ("v_permlane16_swap_b32", "v_permlane32_swap_b32"):
            for r, t in zip(regs, tmps): out.append(f"v_mov_b32 {t}, {r}")
            for r, t in zip(regs, tmps): out.append(f"{sw} {r}, {t}")
            for r, t in zip(regs, tmps): out.append(f"v_add_f32 {r}, {r}, {t}")
        return out
    @staticmethod
    def bf16r(dst, src):
        return [f"v_cvt_pk_bf16_f32 {dst}, {src}, {src}", f"v_lshlrev_b32 {dst}, 16, {dst}"]
    @staticmethod
    def key_lines(rf, row, dst, t1, t2):
        return [f"v_cvt_pk_bf16_f32 {dst}, {rf}, {rf}", f"v_and_b32 {dst}, 0xffff, {dst}",
                f"v_or_b32 {t1}, 0x8000, {dst}", f"v_xor_b32 {t2}, 0xffff, {dst}",
                f"v_cmp_lt_u32 vcc, 0x7fff, {dst}\nv_cndmask_b32 {dst}, {t1}, {t2}, vcc",
                f"v_mov_b32 {t1}, 0",
                f"v_cmp_u_f32 vcc, {rf}, {rf}\nv_cndmask_b32 {dst}, {dst}, {t1}, vcc",
                f"v_sub_u32 {t1}, 0xfff, {row}", f"v_lshl_or_b32 {dst}, {dst}, 16, {t1}"]
    def guard(self, L):
        self.a(f"s_add_u32 s100, s100, 1\ns_bitcmp1_b32 s100, 21\ns_cbranch_scc0 {L}")
    def lds_spin(self, vaddr, vtmp, stmp, cmp_, val, off=0):
        a = self.a
        L = a.label("spin")
        a(f"{L}:\nds_read_b32 {vtmp}, {vaddr} offset:{off}\ns_waitcnt lgkmcnt(0)")
        Lo = a.label("spino")
        a(f"v_readfirstlane_b32 {stmp}, {vtmp}\ns_cmp_{cmp_}_u32 {stmp}, {val}\ns_cbranch_scc1 {Lo}")
        self.guard(L)
        a(f"{Lo}:")

    def build(self):
        a = self.a
        a.raw(f"; @launch grid=(256,1,1) block=(704,1,1) lds={LDS_BYTES}")
        a.raw('.amdgcn_target "amdgcn-amd-amdhsa--gfx950"')
        a.raw(".text")
        a.raw(f".globl {KNAME}")
        a.raw(".p2align 8")
        a.raw(f".type {KNAME},@function")
        a.raw(f"{KNAME}:")
        self.post_srd = []
        a("s_cmp_ge_u32 s2, 256\ns_cbranch_scc1 L_end")
        self.srd(4, 0, 2621440)
        self.srd(8, 8, 2457600)
        self.srd(12, 80, WS_SIZE)
        self.srd(36, 32, 1280)
        a("v_and_b32 v1, 63, v0\nv_lshrrev_b32 v2, 6, v0\ns_mov_b32 s100, 0")
        a("s_and_b32 s17, s2, 7\ns_lshr_b32 s18, s2, 3")
        a("v_readfirstlane_b32 s16, v2")
        a("s_and_b32 s46, s17, 3\ns_lshr_b32 s47, s17, 2\ns_lshr_b32 s48, s18, 2\ns_and_b32 s20, s18, 3")
        a("s_lshl_b32 s19, s47, 3\ns_add_u32 s19, s19, s48")
        self.srd_fin()
        a("s_cmp_eq_u32 s16, 10\ns_cbranch_scc1 L_aux")
        a("s_cmp_ge_u32 s16, 8\ns_cbranch_scc1 L_loader")
        self.in_main = True
        self.phase_a()
        self.in_main = False
        a("L_end:\ns_endpgm")
        self.loader()
        self.aux()
        a.raw(".section .rodata,\"a\"\n.p2align 6")
        a.raw(f".amdhsa_kernel {KNAME}")
        a.raw("  .amdhsa_next_free_vgpr 168\n  .amdhsa_next_free_sgpr 102\n  .amdhsa_accum_offset 168")
        a.raw("  .amdhsa_group_segment_fixed_size 0\n  .amdhsa_kernarg_size 88\n  .amdhsa_user_sgpr_count 2")
        a.raw("  .amdhsa_user_sgpr_kernarg_segment_ptr 1\n  .amdhsa_system_sgpr_workgroup_id_x 1")
        a.raw("  .amdhsa_float_denorm_mode_32 3\n  .amdhsa_float_denorm_mode_16_64 3")
        a.raw(".end_amdhsa_kernel")
        return a.finalize()

    NST = 20
    def dma_x(self, m, half):
        self.a(f"s_add_u32 m0, s26, {(m & 3) * 16384 + 1024 * half}\ns_nop 0")
        self.a(f"buffer_load_dwordx4 v{10 if half == 0 else 9}, s[4:7], s58 offen lds")
        if half == 1: self.a("s_add_u32 s58, s58, 128\ns_cmp_eq_u32 s58, 1280\ns_cselect_b32 s58, 0, s58")
        self.vm_seq.append(("X", m))
    def dma_w(self, t):
        self.a(f"s_add_u32 m0, s27, {(t & 7) * 8192}\ns_mov_b64 exec, s[24:25]")
        self.a("buffer_load_dwordx4 v11, s[8:11], s59 offen lds\ns_mov_b64 exec, -1")
        self.a(f"s_add_u32 s59, s59, 122880\ns_cmp_eq_u32 s59, {20*122880}\ns_cselect_b32 s59, 0, s59")
        self.vm_seq.append(("W", t))
    def vm_need(self, needs):
        if not any(op in needs for op in self.vm_seq): return 0
        last = max(i for i, op in enumerate(self.vm_seq) if op in needs)
        return len(self.vm_seq) - 1 - last
    def a_read_list(self, n):
        if "noreads" in self.opts: return []
        t, s = n >> 1, n & 1
        m, s4 = n >> 2, n & 3
        xo = (m & 3) * 16384
        wo = (t & 7) * 8192 + 4096 * s
        fs = 24 + 16 * (n % 3)
        return [f"ds_read_b128 v[{fs}:{fs+3}], v{12+s4} offset:{xo}",
                f"ds_read_b64_tr_b16 v[{fs+8}:{fs+9}], v16 offset:{wo}",
                f"ds_read_b64_tr_b16 v[{fs+10}:{fs+11}], v16 offset:{wo+1024}",
                f"ds_read_b128 v[{fs+4}:{fs+7}], v{12+s4} offset:{xo+4096}",
                f"ds_read_b64_tr_b16 v[{fs+12}:{fs+13}], v17 offset:{wo}",
                f"ds_read_b64_tr_b16 v[{fs+14}:{fs+15}], v17 offset:{wo+1024}"]
    def a_reads(self, n):
        for l in self.a_read_list(n): self.a(l)
    def col_oct(self, gam, dst, t):
        a = self.a
        a(f"s_mul_i32 {t}, {gam}, 13\ns_lshr_b32 {t}, {t}, 6\ns_mul_i32 {t}, {t}, 60")
        a(f"s_lshl_b32 {dst}, {gam}, 2\ns_add_u32 {dst}, {dst}, {t}\ns_mul_i32 {t}, s46, 20\ns_add_u32 {dst}, {dst}, {t}")

    def ln_stats_tasks(self):
        pk = "lnpk" in self.opts
        g = []
        X, Wr = 104, 114
        g.append(("wait",))
        g.append("v_lshlrev_b32 v124, 16, v104\nv_readlane_b32 s51, v124, 0\nv_readlane_b32 s52, v124, 32")
        g.append("v_mov_b32 v138, s52\nv_mov_b32 v139, s51\nv_cmp_gt_u32 vcc, 32, v1\nv_cndmask_b32 v138, v138, v139, vcc")
        for i in range(10):
            g += [f"v_lshlrev_b32 v132, 16, v{X+i}", f"v_and_b32 v133, s28, v{X+i}",
                  f"v_lshlrev_b32 v134, 16, v{Wr+i}", f"v_and_b32 v135, s28, v{Wr+i}",
                  "v_sub_f32 v136, v132, v138", "v_sub_f32 v137, v133, v138"]
            if i == 0:
                g += ["v_mul_f32 v128, v132, v134", "v_add_f32 v124, v136, v137", "v_mul_f32 v126, v136, v136", "v_add_f32 v130, v134, v135",
                      "v_fmac_f32 v128, v133, v135", "v_fmac_f32 v126, v137, v137"]
            else:
                g += ["v_fmac_f32 v128, v132, v134", "v_add_f32 v124, v124, v136", "v_fmac_f32 v126, v136, v136", "v_add_f32 v130, v130, v134",
                      "v_fmac_f32 v128, v133, v135", "v_add_f32 v124, v124, v137", "v_fmac_f32 v126, v137, v137", "v_add_f32 v130, v130, v135"]
        regs = ["v124", "v126", "v128", "v130"]; tm = ["v125", "v127", "v129", "v131"]
        for ctrl in ("quad_perm:[1,0,3,2]", "quad_perm:[2,3,0,1]", "row_half_mirror", "row_mirror"):
            for r in regs: g.append(f"v_add_f32_dpp {r}, {r}, {r} {ctrl} row_mask:0xf bank_mask:0xf")
        for r, t in zip(regs, tm): g.append(f"v_mov_b32 {t}, {r}")
        for r, t in zip(regs, tm): g.append(f"v_permlane16_swap_b32 {r}, {t}")
        for r, t in zip(regs, tm): g.append(f"v_add_f32 {r}, {r}, {t}")
        g += ["v_mul_f32 v124, s44, v124", "v_mul_f32 v132, v124, v124", "v_fma_f32 v126, v126, s44, -v132", "v_max_f32 v126, 0, v126",
              "v_add_f32 v124, v138, v124"]
        g += self.bf16r("v124", "v124") + self.bf16r("v126", "v126") + ["v_add_f32 v126, s45, v126"] + self.bf16r("v126", "v126")
        g += ["v_sqrt_f32 v126, v126"] + self.bf16r("v126", "v126") + ["v_rcp_f32 v132, v126"]
        g += ["v_fma_f32 v128, -v124, v130, v128", "v_mul_f32 v128, v128, v132"]
        g += self.key_lines("v128", "v20", "v141", "v134", "v135")
        g += ["v_lshrrev_b32 v140, 16, v124", "v_or_b32 v140, v140, v126"]
        g.append("s_mov_b32 exec_lo, 1\ns_mov_b32 exec_hi, 1\nds_write_b64 v21, v[140:141]\ns_mov_b64 exec, -1\ns_waitcnt lgkmcnt(0)")
        g.append(("mark",))
        return g

    def ln_wave(self):
        a = self.a
        a("L_ln:")
        a("s_sub_u32 s21, s16, 4")
        a("v_and_b32 v2, 31, v1\nv_lshrrev_b32 v3, 5, v1")
        a("s_lshl_b32 s23, s46, 2\ns_add_u32 s23, s23, s20\ns_lshl_b32 s23, s23, 3\ns_lshl_b32 s29, s21, 1\ns_add_u32 s23, s23, s29")
        a("s_lshl_b32 s29, s19, 7\ns_add_u32 s23, s23, s29\nv_add_u32 v20, s23, v3")
        a("v_mul_u32_u24 v4, 1280, v20\nv_lshl_add_u32 v4, v2, 3, v4\nv_lshlrev_b32 v5, 3, v2")
        a(f"s_lshl_b32 s29, s21, 4\ns_add_u32 s29, s29, {L_OWN}\nv_lshl_add_u32 v21, v3, 3, s29")
        a("s_lshr_b32 s29, s21, 1\ns_lshl_b32 s29, s29, 13\ns_and_b32 s30, s21, 1\ns_lshl_b32 s30, s30, 12\ns_add_u32 s29, s29, s30\ns_add_u32 s29, s29, 65536")
        a("v_lshrrev_b32 v8, 4, v1\nv_lshlrev_b32 v9, 2, v8\nv_and_b32 v10, 15, v1\nv_xor_b32 v9, v9, v10\nv_lshlrev_b32 v9, 4, v9")
        a("v_lshl_add_u32 v9, v8, 8, v9\nv_add_u32 v16, s29, v9")
        a(f"s_mov_b32 s28, 0xffff0000\ns_mov_b32 s44, {f32hex(1.0/640.0)}\ns_mov_b32 s45, {f32hex(1e-5)}\ns_waitcnt lgkmcnt(0)")
        tasks = self.ln_stats_tasks()
        a("s_barrier")
        for i in range(5): a(f"buffer_load_dwordx2 v[{104+2*i}:{105+2*i}], v4, s[4:7], 0 offen offset:{256*i}")
        for i in range(5): a(f"buffer_load_dwordx2 v[{114+2*i}:{115+2*i}], v5, s[36:39], 0 offen offset:{256*i}")
        pk = "lnpk" in self.opts
        for m in range(10):
            if m >= 1: a("s_barrier")
            if "noside" in self.opts:
                self.b_stats = 1; continue
            wo = ((2 * m) & 7) * 8192
            for i in range(4): a(f"ds_read_b128 v[{48+4*i}:{51+4*i}], v16 offset:{wo + 1024*i}")
            for i in range(4):
                a(f"s_waitcnt lgkmcnt({3-i})")
                for d in range(4):
                    src = 48 + 4 * i + d; acc = 72 + 2 * d; t = 64 + 2 * (d & 1)
                    if m == 0 and i == 0:
                        a(f"v_lshlrev_b32 v{acc}, 16, v{src}\nv_and_b32 v{acc+1}, s28, v{src}")
                    elif pk:
                        a(f"v_lshlrev_b32 v{t}, 16, v{src}\nv_and_b32 v{t+1}, s28, v{src}\nv_pk_add_f32 v[{acc}:{acc+1}], v[{acc}:{acc+1}], v[{t}:{t+1}]")
                    else:
                        a(f"v_lshlrev_b32 v{t}, 16, v{src}\nv_and_b32 v{t+1}, s28, v{src}\nv_add_f32 v{acc}, v{acc}, v{t}\nv_add_f32 v{acc+1}, v{acc+1}, v{t+1}")
            q = self.Q1 if m >= self.LM0 else 0
            while tasks and q > 0:
                it = tasks.pop(0)
                if isinstance(it, tuple):
                    if it[0] == "mark": self.b_stats = m
                    else: a("s_waitcnt vmcnt(0)")
                else: a(it); q -= it.count("\n") + 1
        if "noside" not in self.opts:
            assert not tasks
            for p in range(4): a(f"v_permlane32_swap_b32 v{72+2*p}, v{73+2*p}")
            for p in range(4): a(f"v_add_f32 v{72+2*p}, v{72+2*p}, v{73+2*p}")
            a("v_permlane16_swap_b32 v72, v74\nv_permlane16_swap_b32 v76, v78")
            a("v_add_f32 v72, v72, v74\nv_add_f32 v76, v76, v78")
            self.cs_tail()
        a("s_waitcnt lgkmcnt(0)")
        a("s_branch L_a_bE1")

    def cs_tail(self):
        a = self.a
        a("v_and_b32 v7, 15, v1\nv_lshlrev_b32 v7, 3, v7\nv_bfe_u32 v8, v1, 4, 1\nv_lshl_add_u32 v7, v8, 1, v7\nv_add_u32 v7, v7, v3")
        a(f"s_lshl_b32 s29, s21, 9\ns_add_u32 s29, s29, {L_CSW}\nv_lshl_add_u32 v7, v7, 2, s29")
        a("ds_write_b32 v7, v72\nds_write_b32 v7, v76 offset:16")

    def phase_a(self):
        a = self.a
        a("; ---- phase A ----")
        if self.stop_after is None:
            a("s_and_b32 s62, s18, 7\ns_lshl_b32 s29, s46, 3\ns_add_u32 s62, s62, s29\ns_lshr_b32 s63, s18, 3\ns_lshl_b32 s29, s47, 2\ns_add_u32 s63, s63, s29")
            a("s_lshl_b32 s34, s63, 8\ns_lshl_b32 s35, s16, 5\ns_add_u32 s34, s34, s35")
            a("v_and_b32 v2, 31, v1\nv_lshrrev_b32 v3, 5, v1\nv_add_u32 v5, s34, v2\nv_lshlrev_b32 v5, 3, v5\nv_lshl_add_u32 v5, v3, 14, v5")
            a(f"s_mul_i32 s35, s62, {5*16384}\ns_add_u32 s35, s35, {WS_O}\nv_mov_b32 v6, -1\nv_mov_b32 v7, -1\ns_waitcnt lgkmcnt(0)")
            a("buffer_store_dwordx2 v[6:7], v5, s[12:15], s35 offen sc1")
            a("s_add_u32 s35, s35, 32768\nbuffer_store_dwordx2 v[6:7], v5, s[12:15], s35 offen sc1")
            a("s_add_u32 s35, s35, 32768\ns_mov_b32 exec_hi, 0\nbuffer_store_dwordx2 v[6:7], v5, s[12:15], s35 offen sc1\ns_mov_b64 exec, -1")
        a("s_cmp_ge_u32 s16, 4\ns_cbranch_scc1 L_ln")
        a("s_and_b32 s21, s16, 1\ns_lshr_b32 s22, s16, 1")
        self.stamp(0)
        a("v_and_b32 v2, 31, v1\nv_lshrrev_b32 v3, 5, v1")
        a("s_lshl_b32 s29, s22, 6\nv_add_u32 v4, s29, v2\nv_lshlrev_b32 v4, 7, v4")
        a("v_bfe_u32 v5, v1, 1, 3\nv_xor_b32 v8, v3, v5")
        for s4 in range(4):
            a(f"v_xor_b32 v7, {2*s4}, v8\nv_lshl_add_u32 v{12+s4}, v7, 4, v4")
        a("v_bfe_u32 v5, v1, 2, 2")
        a("v_lshl_add_u32 v8, v3, 3, v5\nv_lshlrev_b32 v8, 8, v8")
        a("v_bfe_u32 v9, v1, 4, 1\nv_lshlrev_b32 v9, 5, v9\nv_and_b32 v10, 3, v1\nv_lshlrev_b32 v10, 3, v10\nv_add3_u32 v8, v8, v9, v10")
        a("s_lshl_b32 s29, s21, 1")
        for ntl in range(2):
            a(f"s_add_u32 s30, s29, {ntl}\nv_xor_b32 v7, s30, v5\nv_lshl_add_u32 v7, v7, 6, v8\nv_add_u32 v{16+ntl}, 0x10000, v7")
        self.stamp(4)
        a("s_barrier")
        self.stamp(1)
        self.a_reads(0); self.a_reads(1)
        N = 40
        ACC = lambda ntl, stl: 72 + 32 * ntl + 16 * stl
        for n in range(N):
            m, i4 = n >> 2, n & 3
            fs = 24 + 16 * (n % 3)
            CL = self.stamps and "lloop" in self.opts and m in (4, 5) and i4 == 2
            if CL: self.stamp(5 + 2 * (m - 4))
            if i4 == 2 and m + 1 < 10: a("s_barrier")
            if CL: self.stamp(6 + 2 * (m - 4))
            if self.stamps and "bst" in self.opts and i4 == 2 and m < 9: a(f"s_memrealtime s[{72+2*(m+1)}:{73+2*(m+1)}]")
            a(f"s_waitcnt lgkmcnt({6 if n + 1 < N else 0})")
            rl = self.a_read_list(n + 2) if n + 2 < N else []
            nomf = "nomfma" in self.opts and n > 0
            k = 0
            for ntl in range(2):
                for stl in range(2):
                    A = ACC(ntl, stl)
                    c = "0" if n == 0 else f"v[{A}:{A+15}]"
                    if not nomf: a(f"v_mfma_f32_32x32x16_bf16 v[{A}:{A+15}], v[{fs+8+4*ntl}:{fs+11+4*ntl}], v[{fs+4*stl}:{fs+4*stl+3}], {c}")
                    for l in rl[2*k:2*k+2]: a(l)
                    k += 1
        self.stamp(2)
        a("L_a_bE1:")
        a("s_barrier")
        if "est" in self.opts: self.stamp(5)
        a("s_cmp_ge_u32 s16, 4\ns_cbranch_scc1 L_a_e2")
        a(f"s_lshl_b32 s29, s22, 9\ns_add_u32 s29, s29, {L_STAT}")
        a("v_lshl_add_u32 v4, v2, 3, s29")
        a("ds_read_b64 v[20:21], v4\nds_read_b64 v[22:23], v4 offset:256")
        a(f"s_lshl_b32 s29, s21, 8\ns_add_u32 s29, s29, {L_CSW}\nv_lshl_add_u32 v4, v2, 2, s29")
        for p in range(4):
            a(f"ds_read_b32 v{44+2*p}, v4 offset:{512*p}\nds_read_b32 v{45+2*p}, v4 offset:{512*p+128}")
        a(f"v_mov_b32 v5, {L_FLG}\nds_read_b32 v6, v5")
        a("s_lshl_b32 s33, s19, 7\ns_lshl_b32 s34, s22, 6\ns_add_u32 s33, s33, s34")
        a("v_add_u32 v4, s33, v2\nv_lshlrev_b32 v4, 4, v4\nv_lshl_add_u32 v4, v3, 15, v4")
        for r in (29, 30, 31, 33, 34, 35, 37, 38, 39, 41, 42, 43): a(f"v_mov_b32 v{r}, 0")
        a("v_cmp_gt_u32 vcc, 32, v1\nv_mov_b32 v7, 0")
        a("s_waitcnt lgkmcnt(0)")
        a("v_readfirstlane_b32 s41, v6")
        a("v_add_f32 v24, v44, v46\nv_add_f32 v25, v45, v47\nv_add_f32 v48, v48, v50\nv_add_f32 v49, v49, v51\nv_add_f32 v24, v24, v48\nv_add_f32 v25, v25, v49")
        for ntl in range(2):
            c = 24 + ntl; d = 28 + 4 * ntl
            a(f"v_cvt_pk_bf16_f32 v8, v{c}, v{c}\nv_lshlrev_b32 v8, 16, v8\nv_sub_f32 v8, v{c}, v8\nv_cvt_pk_bf16_f32 v8, v{c}, v8\nv_cndmask_b32 v{d}, v7, v8, vcc")
        for stl in range(2):
            mm = 20 + 2 * stl; d = 36 + 4 * stl
            a(f"v_sub_f32 v8, 0, v{mm}\nv_cvt_pk_bf16_f32 v8, v8, v8\nv_cndmask_b32 v{d}, v7, v8, vcc")
        for ntl in range(2):
            for stl in range(2):
                A = ACC(ntl, stl)
                a(f"v_mfma_f32_32x32x16_bf16 v[{A}:{A+15}], v[{28+4*ntl}:{31+4*ntl}], v[{36+4*stl}:{39+4*stl}], v[{A}:{A+15}]")
        for ntl in range(2):
            Ls = a.label("askip")
            a(f"s_lshl_b32 s29, s20, 2\ns_lshl_b32 s30, s21, 1\ns_add_u32 s29, s29, s30\ns_add_u32 s29, s29, {ntl}")
            a(f"s_cmp_eq_u32 s29, 15\ns_cbranch_scc1 {Ls}")
            self.col_oct("s29", "s31", "s32")
            a(f"s_lshl_b32 s31, s31, 15\ns_add_u32 s31, s31, {WS_QKV}")
            a(f"s_cmp_lt_u32 s29, 5\ns_cselect_b32 s40, {f32hex(QSCALE)}, 1.0")
            a("v_mul_f32 v56, s40, v21\nv_mul_f32 v58, s40, v23\nv_mov_b32 v57, v56\nv_mov_b32 v59, v58")
            for stl in range(2):
                A = ACC(ntl, stl); rr = 56 + 2 * stl
                for p in range(8): a(f"v_pk_mul_f32 v[{A+2*p}:{A+2*p+1}], v[{A+2*p}:{A+2*p+1}], v[{rr}:{rr+1}]")
                d = 136 + 16 * ntl + 8 * stl
                for p in range(8): a(f"v_cvt_pk_bf16_f32 v{d+p}, v{A+2*p}, v{A+2*p+1}")
                for pr in range(2):
                    b0 = d + 4 * pr
                    a(f"v_permlane32_swap_b32 v{b0}, v{b0+2}\nv_permlane32_swap_b32 v{b0+1}, v{b0+3}")
            Lf = a.label("afast"); Ld = a.label("adone")
            a(f"s_cmp_eq_u32 s41, 1\ns_cbranch_scc1 {Lf}")
            for fast in (0, 1):
                if fast: a(f"{Lf}:")
                for pr in range(2):
                    a(f"s_add_u32 s32, s31, {pr*65536}")
                    for stl in range(2):
                        b0 = 136 + 16 * ntl + 8 * stl + 4 * pr
                        a(f"buffer_store_dwordx4 v[{b0}:{b0+3}], v4, s[12:15], s32 offen offset:{512*stl}" + ("" if fast else " sc1"))
                if not fast: a(f"s_branch {Ld}")
            a(f"{Ld}:\n{Ls}:")
        if "est" in self.opts: self.stamp(6)
        a("s_waitcnt vmcnt(0)")
        if "est" in self.opts: self.stamp(7)
        a(f"v_mov_b32 v5, {L_FLG}\nv_mov_b32 v6, 1\ns_mov_b64 exec, 1\nds_add_rtn_u32 v7, v5, v6 offset:44\nds_read_b32 v8, v5 offset:4\ns_waitcnt lgkmcnt(0)")
        a("v_readfirstlane_b32 s35, v7\ns_cmp_lg_u32 s35, 3\ns_cbranch_scc1 L_a_nf")
        a(f"s_lshl_b32 s29, s46, 6\ns_lshl_b32 s30, s19, 2\ns_add_u32 s29, s29, s30\ns_add_u32 s29, s29, s20\ns_lshl_b32 s29, s29, 6\ns_add_u32 s29, s29, {WS_F1}\nv_mov_b32 v6, s29")
        a("s_cmp_eq_u32 s41, 1\ns_cbranch_scc1 L_a_f1f")
        a("buffer_store_dword v8, v6, s[12:15], 0 offen sc1\ns_branch L_a_nf")
        a("L_a_f1f:\nbuffer_store_dword v8, v6, s[12:15], 0 offen")
        a("L_a_nf:\ns_mov_b64 exec, -1")
        a("L_a_e2:")
        self.stamp(3)
        if self.stop_after == "a":
            self.fin_stamps(10 if "bst" in self.opts else (9 if "lloop" in self.opts else (8 if "est" in self.opts else 5)), wave=self.swave)
            a("s_branch L_end")
            self.ln_wave()
            return
        self.phase_b()
        if self.stop_after == "b":
            self.fin_stamps(8, wave=self.swave)
            a("s_branch L_end")
            self.ln_wave()
            return
        self.phase_c()
        self.fin_stamps(10, wave=self.swave)
        a("s_branch L_end")
        self.ln_wave()

    def lg_reset(self): self.lg_seq = []
    def lg_issue(self, tag, n): self.lg_seq += [tag] * n
    def lg_wait(self, tag):
        last = max(i for i, t in enumerate(self.lg_seq) if t == tag)
        self.a(f"s_waitcnt lgkmcnt({min(15, len(self.lg_seq) - 1 - last)})")

    def loader(self):
        a = self.a
        a("L_loader:")
        LS = self.stamps and "lstamp" in self.opts
        if LS: self.stamp(0)
        a("s_setprio 2")
        a("s_sub_u32 s21, s16, 8")
        a("v_lshrrev_b32 v3, 4, v1")
        self.post_srd = []
        self.srd(52, 16, 819200)
        a("s_lshl_b32 s29, s21, 4\ns_add_u32 s29, s29, 40\ns_load_dwordx2 s[56:57], s[0:1], s29\ns_load_dwordx2 s[92:93], s[0:1], 48")
        a("s_mov_b32 s58, 1966080\ns_mov_b32 s59, 0x20000\ns_mov_b32 s94, 1966080\ns_mov_b32 s95, 0x20000")
        a("s_cmp_eq_u32 s21, 1\ns_cbranch_scc1 L_l_w")
        a("v_lshrrev_b32 v2, 3, v1\nv_and_b32 v8, 7, v1\nv_xor_b32 v8, v8, v3")
        a("s_lshl_b32 s23, s19, 7\nv_add_u32 v9, s23, v2\nv_mul_u32_u24 v9, 1280, v9\nv_lshl_add_u32 v10, v8, 4, v9")
        a("v_xor_b32 v8, 4, v8\nv_lshl_add_u32 v11, v8, 4, v9")
        a("s_mov_b64 s[24:25], -1\ns_mov_b32 s26, 0\ns_movk_i32 s27, 10240\ns_movk_i32 s31, 128\ns_mov_b32 s32, 0")
        a("s_branch L_l_go")
        a("L_l_w:")
        a("v_and_b32 v8, 15, v1\nv_lshlrev_b32 v17, 2, v3\nv_xor_b32 v17, v8, v17")
        a("s_lshl_b32 s29, s20, 2\ns_mul_i32 s31, s46, 20")
        a("v_lshrrev_b32 v19, 2, v17\nv_add_u32 v19, s29, v19\nv_cmp_ne_u32 s[24:25], 15, v19")
        a("v_mul_u32_u24 v18, 13, v19\nv_lshrrev_b32 v18, 6, v18\nv_mul_u32_u24 v18, 60, v18")
        a("v_lshl_add_u32 v18, v19, 2, v18\nv_and_b32 v19, 3, v17\nv_add3_u32 v18, v18, v19, s31\nv_lshlrev_b32 v18, 4, v18")
        a("v_mul_u32_u24 v19, 3840, v3\nv_add_u32 v10, v18, v19\nv_mov_b32 v11, v10")
        a("s_mov_b32 s26, 65536\ns_movk_i32 s27, 15360\ns_mov_b32 s31, 245760\ns_mov_b32 s32, 0")
        a("L_l_go:")
        a("s_waitcnt lgkmcnt(0)")
        self.srd_fin()
        def granule(role, m):
            srd = "s[4:7]" if role == 0 else "s[8:11]"
            base = ((m & 3) * 16384) if role == 0 else (65536 + ((2 * m) & 7) * 8192)
            gs = 128 if role == 0 else 245760
            step = 10240 if role == 0 else 15360
            for i in range(16):
                a(f"s_mov_b32 m0, {base + 1024*i}\ns_add_u32 s30, s40, {step*i}")
                a(f"buffer_load_dwordx4 v{10 + (i & 1)}, {srd}, s30 offen lds")
            a(f"s_add_u32 s40, s40, {gs}\ns_cmp_eq_u32 s40, {10*gs}\ns_cselect_b32 s40, 0, s40")
        rh_, rr_ = 0, 0
        for o in self.opts:
            if o.startswith("roth="): rh_ = int(o[5:])
            if o.startswith("rotr="): rr_ = int(o[5:])
        rc, rb = 3, 1
        for o in self.opts:
            if o.startswith("rotc="): rc = int(o[5:])
            if o.startswith("rotb="): rb = int(o[5:])
        rbm = 7
        for o in self.opts:
            if o.startswith("rotbm="): rbm = int(o[6:])
        rcm = 3
        for o in self.opts:
            if o.startswith("rotcm="): rcm = int(o[6:])
        if "norot" not in self.opts:
            a(f"s_and_b32 s41, s20, {rcm}\ns_mul_i32 s40, s41, {rc}\ns_and_b32 s41, s48, {rbm}\ns_mul_i32 s41, s41, {rb}\ns_add_u32 s40, s40, s41")
            a(f"s_mul_i32 s41, s46, {rh_}\ns_add_u32 s40, s40, s41\ns_mul_i32 s41, s47, {rr_}\ns_add_u32 s40, s40, s41")
            a("s_mul_i32 s41, s40, 205\ns_lshr_b32 s41, s41, 11\ns_mul_i32 s41, s41, 10\ns_sub_u32 s40, s40, s41")
        else:
            a("s_mov_b32 s40, 0")
        a("s_movk_i32 s42, 128\ns_cmp_eq_u32 s21, 0\ns_cselect_b32 s41, s42, 245760\ns_mul_i32 s40, s40, s41")
        for role in range(2):
            a(f"L_l_r{role}:") if role == 1 else a("s_cmp_eq_u32 s21, 1\ns_cbranch_scc1 L_l_r1")
            a("s_mov_b64 exec, s[24:25]")
            if "k0late" in self.opts:
                for m in range(3): granule(role, m)
                a("s_waitcnt vmcnt(32)\ns_barrier")
            else:
                if LS: self.stamp(1)
                granule(role, 0)
                if LS: self.stamp(2)
                granule(role, 1)
                if LS: self.stamp(3)
                a("s_waitcnt vmcnt(16)")
                if LS: self.stamp(4)
                a("s_barrier")
                granule(role, 2)
                if LS: self.stamp(5)
            npf = 0
            for m in range(9):
                extra = npf if m >= 7 else 0
                LL = self.stamps and "lloop" in self.opts
                if LL and m in (4, 5): self.stamp(0 + 4 * (m - 4) + 0)
                a(f"s_waitcnt vmcnt({(16 if m < 8 else 0) + extra})")
                if LL and m in (4, 5): self.stamp(0 + 4 * (m - 4) + 1)
                a("s_barrier")
                if LL and m in (4, 5): self.stamp(0 + 4 * (m - 4) + 2)
                if m + 3 < 10: granule(role, m + 3)
                if LL and m in (4, 5): self.stamp(0 + 4 * (m - 4) + 3)
                if m == 6 and npf:
                    a("s_mov_b64 exec, -1")
                    self.l2pf(role)
            a("s_mov_b64 exec, -1")
            if self.stop_after is None and "nomoe" not in self.opts and "moelate" not in self.opts: self.moe_dma(role)
            if self.stop_after is None and "wopf" in self.opts:
                a(f"s_mul_i32 s29, s18, 25600\nv_lshlrev_b32 v26, 7, v1\nv_add_u32 v26, s29, v26\ns_mov_b32 s30, {16384*role}\nbuffer_load_dword v27, v26, s[52:55], s30 offen")
                a(f"s_mov_b32 s30, {16384*role + 8192}\n" + ("s_mov_b64 exec, 0xff\n" if role == 1 else "") + "buffer_load_dword v27, v26, s[52:55], s30 offen\ns_mov_b64 exec, -1")
            if role == 0: a("s_branch L_l_j")
        a("L_l_j:")
        if LS:
            self.stamp(6); self.stamp(7)
            self.fin_stamps(8, wave=8, slot=1)
        if self.stamps and "lloop" in self.opts:
            self.fin_stamps(8, wave=8 + ("lw1" in self.opts), slot=1)
        a("s_barrier")
        if self.stop_after == "a":
            a("s_endpgm"); return
        a("s_and_b32 s62, s18, 7\ns_lshl_b32 s29, s46, 3\ns_add_u32 s62, s62, s29")
        a("s_lshr_b32 s63, s18, 3\ns_lshl_b32 s29, s47, 2\ns_add_u32 s63, s63, s29")
        a("s_and_b32 s64, s62, 1\ns_mul_i32 s65, s62, 5\ns_lshr_b32 s65, s65, 1")
        a(f"s_sub_u32 s36, 1, s21\ns_mul_i32 s32, s36, 80\ns_add_u32 s32, s32, 80\ns_add_u32 s32, s32, s65\ns_lshl_b32 s32, s32, 15\ns_add_u32 s32, s32, {WS_QKV}")
        a(f"s_mul_i32 s33, s36, {LB_V}")
        a("s_lshl_b32 s31, s63, 8\ns_sub_u32 s31, s31, 256\ns_lshl_b32 s31, s31, 4\ns_add_u32 s32, s32, s31")
        a("v_lshlrev_b32 v4, 4, v1\nv_add_u32 v7, s33, v4")
        a(f"s_sub_u32 s35, 1, s64\ns_mul_i32 s35, s35, {2*PLS+8}\nv_add_u32 v8, s35, v7")
        a("v_mov_b32 v20, 0x3f803f80\ns_cmp_eq_u32 s36, 0\ns_cselect_b32 s35, 0, 0x3f803f80\nv_mov_b32 v21, s35")
        a("v_mov_b32 v22, 0x3f803f80\ns_mov_b32 s34, 0x3f803f80\ns_cselect_b32 s35, 0xf149, s34\nv_mov_b32 v23, s35")
        a("v_mov_b32 v24, 0\nv_mov_b32 v25, 0\nv_mov_b32 v26, 0\nv_mov_b32 v27, 0")
        a(f"v_mov_b32 v5, {L_FLG}")
        a("s_cmp_eq_u32 s21, 0\ns_cbranch_scc1 L_l_b0")
        a(f"s_lshl_b32 s29, s46, 6\ns_lshl_b32 s30, s63, 3\ns_add_u32 s29, s29, s30\ns_sub_u32 s29, s29, 8\ns_lshl_b32 s29, s29, 6\ns_add_u32 s29, s29, {WS_F1}")
        a("v_and_b32 v6, 15, v1\ns_cmp_eq_u32 s63, 0\ns_cselect_b32 s30, 8, 0\nv_max_u32 v6, s30, v6\nv_lshlrev_b32 v6, 6, v6\nds_read_b32 v9, v5 offset:4\ns_waitcnt lgkmcnt(0)")
        a("L_x_p1:\nbuffer_load_dword v10, v6, s[12:15], s29 offen sc1\ns_waitcnt vmcnt(0)")
        a("v_cmp_ne_u32 vcc, v9, v10\ns_cbranch_vccz L_x_p1_o\ns_add_u32 s100, s100, 1\ns_bitcmp1_b32 s100, 21\ns_cbranch_scc0 L_x_p1\nL_x_p1_o:")
        a("v_mov_b32 v6, 1\ns_mov_b64 exec, 1\nds_write_b32 v5, v6 offset:48")
        if "nomoe" not in self.opts and "moelate" not in self.opts and self.stop_after is None: a("ds_add_u32 v5, v6 offset:36")
        a("s_mov_b64 exec, -1")
        a("s_branch L_l_kv")
        a("L_l_b0:")
        if "nomoe" not in self.opts and "moelate" not in self.opts and self.stop_after is None:
            a("s_waitcnt vmcnt(0)\nv_mov_b32 v6, 1\ns_mov_b64 exec, 1\nds_add_u32 v5, v6 offset:36\ns_mov_b64 exec, -1")
        self.lds_spin("v5", "v6", "s35", "ge", 1, off=48)
        a("L_l_kv:")
        a("s_cmp_eq_u32 s63, 0\ns_cbranch_scc1 L_l_c0")
        for blk in range(4):
            for p in range(3):
                a(f"s_add_u32 m0, s33, {p*PLS + blk*1024}\ns_add_u32 s30, s32, {p*32768 + blk*1024}\nbuffer_load_dwordx4 v4, s[12:15], s30 offen sc1 lds")
        a("s_branch L_l_c1")
        a("L_l_c0:")
        for blk in range(4):
            for p in range(3): a(f"ds_write_b128 v7, v[24:27] offset:{p*PLS + blk*1024}")
        a("L_l_c1:")
        for blk in range(4, 8):
            for p in range(3):
                a(f"s_add_u32 m0, s33, {p*PLS + blk*1024}\ns_add_u32 s30, s32, {p*32768 + blk*1024}\nbuffer_load_dwordx4 v4, s[12:15], s30 offen sc1 lds")
        a("s_cmp_eq_u32 s21, 0\ns_cbranch_scc1 L_l_noq")
        a(f"s_lshl_b32 s35, s65, 15\ns_lshl_b32 s34, s63, 12\ns_add_u32 s35, s35, s34\ns_add_u32 s35, s35, {WS_QKV}")
        for p in range(3):
            for blk in range(4):
                a(f"s_mov_b32 m0, {LQ + p*4096 + blk*1024}\ns_add_u32 s30, s35, {p*32768 + blk*1024}\nbuffer_load_dwordx4 v4, s[12:15], s30 offen sc1 lds")
        a("s_branch L_l_w0")
        a("L_l_noq:")
        a("L_l_w0:")
        a("s_waitcnt vmcnt(0) lgkmcnt(0)")
        a("s_cmp_eq_u32 s63, 0\ns_cbranch_scc1 L_l_p0")
        for blk in range(4): a(f"ds_write_b64 v8, v[20:21] offset:{blk*1024}")
        a("s_branch L_l_p1")
        a("L_l_p0:")
        for blk in range(4): a(f"ds_write_b64 v8, v[22:23] offset:{blk*1024}")
        a("L_l_p1:")
        for blk in range(4, 8): a(f"ds_write_b64 v8, v[20:21] offset:{blk*1024}")
        a("v_mov_b32 v6, 1\ns_waitcnt lgkmcnt(0)\ns_mov_b64 exec, 1\nds_add_u32 v5, v6 offset:8\ns_mov_b64 exec, -1")
        if self.stop_after == "b":
            a("s_endpgm"); return
        if "nomoe" not in self.opts and "moelate" in self.opts:
            a("s_cmp_eq_u32 s21, 0\ns_cbranch_scc0 L_l_mr1")
            self.moe_dma(0)
            a("s_branch L_l_mrd\nL_l_mr1:")
            self.moe_dma(1)
            a("L_l_mrd:")
            a("s_waitcnt vmcnt(0)\nv_mov_b32 v6, 1\ns_mov_b64 exec, 1\nds_add_u32 v5, v6 offset:36\ns_mov_b64 exec, -1")
        self.wo_setup()
        a("s_lshl_b32 s34, s21, 10\ns_mul_i32 s35, s21, 10240")
        for q in range(28):
            a(f"s_add_u32 m0, s34, {LA1 + q*2048}\ns_add_u32 s30, s35, {q*20480}\nbuffer_load_dwordx4 v152, s[52:55], s30 offen lds")
        self.lds_spin("v5", "v6", "s35", "ge", 8, off=40)
        a("s_mul_i32 s35, s21, 40960")
        for q in range(10):
            a(f"s_add_u32 m0, s34, {LBB + q*2048}\ns_add_u32 s30, s35, {q*81920}\nbuffer_load_dwordx4 v153, s[52:55], s30 offen lds")
        a("s_cmp_eq_u32 s21, 1\ns_cbranch_scc1 L_l_poll")
        self.lds_spin("v5", "v6", "s35", "ge", 8, off=12)
        for q in range(12):
            for par in range(2):
                i = 56 + 2 * q + par
                a(f"s_mov_b32 m0, {LA2 + (i-56)*1024}\ns_mov_b32 s30, {i*10240}\nbuffer_load_dwordx4 v{152 if par == 0 else 154}, s[52:55], s30 offen lds")
        a("s_waitcnt vmcnt(0)\nv_mov_b32 v6, 1\ns_mov_b64 exec, 1\nds_add_u32 v5, v6 offset:32\ns_mov_b64 exec, -1\ns_endpgm")
        a("L_l_poll:")
        a("s_waitcnt vmcnt(0)\nv_mov_b32 v6, 1\ns_mov_b64 exec, 1\nds_add_u32 v5, v6 offset:32\ns_mov_b64 exec, -1")
        self.lds_spin("v5", "v6", "s35", "ge", 8, off=12)
        a(f"s_lshl_b32 s29, s17, 14\ns_lshr_b32 s30, s18, 3\ns_lshl_b32 s30, s30, 7\ns_add_u32 s29, s29, s30\ns_add_u32 s29, s29, {WS_F2}")
        a("v_lshrrev_b32 v26, 1, v1\nv_lshlrev_b32 v26, 9, v26\nv_and_b32 v27, 1, v1\nv_lshl_add_u32 v26, v27, 6, v26\nds_read_b32 v6, v5 offset:4\ns_waitcnt lgkmcnt(0)")
        a("L_c_poll:\nbuffer_load_dword v27, v26, s[12:15], s29 offen sc1\ns_waitcnt vmcnt(0)")
        a("v_cmp_ne_u32 vcc, v6, v27\ns_cbranch_vccz L_c_poll_o\ns_add_u32 s100, s100, 1\ns_bitcmp1_b32 s100, 21\ns_cbranch_scc0 L_c_poll\nL_c_poll_o:")
        a("v_mov_b32 v6, 1\ns_mov_b64 exec, 1\nds_write_b32 v5, v6 offset:16\ns_mov_b64 exec, -1")
        a("s_endpgm")

    def moe_dma(self, role):
        a = self.a
        Lx = a.label("mx")
        a(f"s_cmp_ge_u32 s2, 240\ns_cbranch_scc1 {Lx}")
        a("v_bfe_u32 v12, v1, 4, 1\nv_lshlrev_b32 v12, 1, v12\nv_and_b32 v13, 7, v1\nv_xor_b32 v12, v12, v13\nv_lshlrev_b32 v12, 4, v12\nv_xor_b32 v13, 64, v12\nv_lshrrev_b32 v14, 3, v1")
        if role == 0:
            a("s_mul_i32 s29, s2, 171\ns_lshr_b32 s29, s29, 12\ns_mul_i32 s30, s29, 24\ns_sub_u32 s30, s2, s30")
            a(f"s_mul_i32 s29, s29, {64*3072}\ns_lshl_b32 s30, s30, 7\ns_add_u32 s29, s29, s30")
            a("v_mul_u32_u24 v14, 3072, v14\nv_add_u32 v12, v12, v14\nv_add_u32 v13, v13, v14")
            for mat, srd in ((0, "s[56:59]"), (1, "s[92:95]")):
                for i in range(8):
                    a(f"s_mov_b32 m0, {L_AUX + mat*8192 + 1024*i}\ns_add_u32 s30, s29, {i*8*3072}\nbuffer_load_dwordx4 v{12 + (i & 1)}, {srd}, s30 offen lds")
        else:
            a("s_mul_i32 s29, s2, 205\ns_lshr_b32 s29, s29, 11\ns_mul_i32 s30, s29, 10\ns_sub_u32 s30, s2, s30")
            a(f"s_mul_i32 s29, s29, {64*1280}\ns_lshl_b32 s30, s30, 7\ns_add_u32 s29, s29, s30")
            a("v_mul_u32_u24 v14, 1280, v14\nv_add_u32 v12, v12, v14\nv_add_u32 v13, v13, v14")
            for i in range(8):
                a(f"s_mov_b32 m0, {L_AUX + 16384 + 1024*i}\ns_add_u32 s30, s29, {i*8*1280}\nbuffer_load_dwordx4 v{12 + (i & 1)}, s[56:59], s30 offen lds")
        a(f"{Lx}:")

    def wo_setup(self):
        a = self.a
        a("s_and_b32 s67, s18, 7\ns_mul_i32 s69, s67, 160")
        for dst, par in (("v152", "s21"), ("v154", "1")):
            a(f"v_bfe_u32 v19, v1, 4, 1\ns_lshl_b32 s29, {par}, 1\nv_or_b32 v19, s29, v19\nv_lshlrev_b32 v19, 1, v19")
            a(f"v_and_b32 {dst}, 7, v1\nv_xor_b32 {dst}, {dst}, v19\nv_lshlrev_b32 {dst}, 4, {dst}")
            a(f"v_lshrrev_b32 v19, 3, v1\nv_mul_u32_u24 v19, 1280, v19\nv_add3_u32 {dst}, {dst}, v19, s69")
        a("v_lshrrev_b32 v19, 1, v1\nv_bfe_u32 v153, v19, 3, 1\nv_lshlrev_b32 v153, 2, v153\nv_xor_b32 v19, v19, v153\nv_mul_u32_u24 v19, 1280, v19")
        a("v_and_b32 v153, 1, v1\nv_lshlrev_b32 v153, 4, v153\nv_add3_u32 v153, v153, v19, s69\nv_add_u32 v153, 128, v153")

    def phase_b(self):
        a = self.a
        a("; ---- phase B ----")
        a("s_waitcnt vmcnt(0)")
        a("s_and_b32 s62, s18, 7\ns_lshl_b32 s29, s46, 3\ns_add_u32 s62, s62, s29")
        a("s_lshr_b32 s63, s18, 3\ns_lshl_b32 s29, s47, 2\ns_add_u32 s63, s63, s29")
        a("s_and_b32 s64, s62, 1\ns_mul_i32 s65, s62, 5\ns_lshr_b32 s65, s65, 1")
        a("v_and_b32 v2, 31, v1\nv_lshrrev_b32 v3, 5, v1")
        a(f"v_lshlrev_b32 v5, 2, v3\nv_sub_u32 v5, v2, v5\nv_mov_b32 v6, {NEGF}\nv_mov_b32 v7, 0")
        for r in range(16):
            cr = 8 * (r >> 2) + (r & 3)
            a(f"v_cmp_le_i32 vcc, {cr}, v5")
            a(f"v_cndmask_b32 v{108+r}, v6, v7, vcc\nv_cndmask_b32 v{124+r}, v7, v6, vcc")
        a("s_lshl_b32 s29, s16, 9")
        a(f"v_add_u32 v5, s64, v3\nv_mul_u32_u24 v5, {PLS}, v5\nv_lshl_add_u32 v16, v2, 4, v5\nv_add_u32 v16, s29, v16")
        a(f"s_sub_u32 s30, 1, s64\ns_mul_i32 s30, s30, {2*PLS}\ns_add_u32 s30, s30, s29\nv_lshl_add_u32 v17, v2, 4, s30")
        a("v_bfe_u32 v5, v1, 4, 1\nv_and_b32 v6, 3, v1\nv_lshl_add_u32 v5, v5, 2, v6")
        a("v_add_u32 v6, s64, v5")
        a("s_mul_i32 s30, s64, 6\nv_subrev_u32 v7, s30, v6\nv_cmp_eq_u32 vcc, 5, v5\nv_cndmask_b32 v6, v6, v7, vcc")
        a(f"v_lshrrev_b32 v7, 1, v6\nv_mul_u32_u24 v7, {PLS}, v7\nv_and_b32 v6, 1, v6\nv_lshl_add_u32 v7, v6, 3, v7")
        a("v_and_b32 v6, 1, v5\nv_lshlrev_b32 v6, 3, v6\nv_add_u32 v6, 192, v6")
        a("v_cmp_lt_u32 vcc, 5, v5\nv_cndmask_b32 v7, v7, v6, vcc")
        a("v_bfe_u32 v6, v1, 2, 2\nv_lshl_add_u32 v6, v3, 2, v6\nv_lshl_add_u32 v7, v6, 4, v7")
        a(f"s_add_u32 s30, s29, {LB_V}\nv_add_u32 v18, s30, v7")
        a("s_and_b32 s67, s18, 7\ns_lshr_b32 s68, s18, 3\ns_mul_i32 s69, s67, 160")
        a("s_and_b32 s29, s16, 3\ns_lshl_b32 s29, s29, 4\ns_lshl_b32 s30, s17, 8\ns_add_u32 s29, s29, s30\ns_lshl_b32 s30, s68, 6\ns_add_u32 s29, s29, s30")
        a("v_and_b32 v19, 15, v1\nv_add_u32 v163, s29, v19\nv_mul_u32_u24 v162, 1280, v163\nv_lshrrev_b32 v19, 4, v1\nv_lshl_add_u32 v162, v19, 3, v162")
        a("s_lshr_b32 s29, s16, 2\ns_mul_i32 s29, s29, 96\ns_add_u32 s29, s29, s69\nv_add_u32 v162, s29, v162")
        for i in range(3):
            a(f"buffer_load_dwordx2 v[{154+2*i}:{155+2*i}], v162, s[4:7], 0 offen offset:{32*i}")
        a("v_lshlrev_b32 v19, 4, v163\nbuffer_load_dwordx2 v[160:161], v19, s[12:15], 0 offen sc1")
        a("s_lshl_b32 s34, s63, 8\ns_lshl_b32 s35, s16, 5\ns_add_u32 s34, s34, s35")
        a(f"s_lshl_b32 s29, s16, 9\ns_add_u32 s29, s29, {LQ}\nv_add_u32 v5, s64, v3\nv_lshlrev_b32 v5, 12, v5\nv_lshl_add_u32 v5, v2, 4, v5\nv_add_u32 v6, s29, v5")
        a("s_sub_u32 s30, 1, s64\ns_lshl_b32 s30, s30, 13\ns_add_u32 s30, s30, s29\nv_lshl_add_u32 v7, v2, 4, s30")
        a(f"v_mov_b32 v5, {L_FLG}")
        self.stamp(5)
        self.lds_spin("v5", "v19", "s35", "ge", 2, off=8)
        self.stamp(6)
        a("ds_read_b128 v[8:11], v6\nds_read_b128 v[12:15], v7\ns_waitcnt lgkmcnt(0)")
        a("v_mov_b32 v6, 1\ns_mov_b64 exec, 1\nds_add_u32 v5, v6 offset:40\ns_mov_b64 exec, -1")
        a("v_cmp_gt_u32 vcc, 32, v1\nv_mov_b32 v5, 0\nv_mov_b32 v6, 0x3f80")
        a("s_cmp_eq_u32 s64, 1\ns_cbranch_scc1 L_b_qodd")
        a("v_cndmask_b32 v12, v5, v12, vcc\nv_cndmask_b32 v13, v5, v13, vcc\nv_mov_b32 v14, 0\nv_cndmask_b32 v15, v5, v6, vcc")
        a("s_branch L_b_qd")
        a("L_b_qodd:")
        a("v_mov_b32 v12, 0\nv_cndmask_b32 v13, v5, v6, vcc\nv_cndmask_b32 v14, v5, v14, vcc\nv_cndmask_b32 v15, v5, v15, vcc")
        a("L_b_qd:")
        KS = lambda kt: 20 + 8 * (kt & 1)
        VS = lambda kt: 36 + 8 * (kt & 1)
        SB = lambda kt: 52 + 16 * (kt & 1)
        def rdK(ps, kt):
            a(f"ds_read_b128 v[{KS(kt)}:{KS(kt)+3}], v16 offset:{512*kt}\nds_read_b128 v[{KS(kt)+4}:{KS(kt)+7}], v17 offset:{512*kt}")
            self.lg_issue(("K", ps, kt), 2)
        def rdV(kt):
            b = VS(kt)
            for j2 in range(2):
                for jj in range(2):
                    a(f"ds_read_b64_tr_b16 v[{b+4*j2+2*jj}:{b+4*j2+2*jj+1}], v18 offset:{512*kt+256*j2+128*jj}")
            self.lg_issue(("V", kt), 4)
        def cop(kt): return "v[124:139]" if kt == 0 else ("v[108:123]" if kt == 8 else "0")
        def qk1(kt): a(f"v_mfma_f32_32x32x16_bf16 v[{SB(kt)}:{SB(kt)+15}], v[{KS(kt)}:{KS(kt)+3}], v[8:11], {cop(kt)}")
        def qk2(kt): a(f"v_mfma_f32_32x32x16_bf16 v[{SB(kt)}:{SB(kt)+15}], v[{KS(kt)+4}:{KS(kt)+7}], v[12:15], v[{SB(kt)}:{SB(kt)+15}]")
        def maxes(kt):
            b = SB(kt)
            for i in range(8):
                acc = 140 + (i & 1)
                if kt == 0 and i < 2: a(f"v_max_f32 v{acc}, v{b+2*i}, v{b+2*i+1}")
                else: a(f"v_max3_f32 v{acc}, v{b+2*i}, v{b+2*i+1}, v{acc}")
        def ex(kt, r0, r1):
            for r in range(r0, r1): a(f"v_exp_f32 v{SB(kt)+r}, v{SB(kt)+r}")
        def cv(kt, i0, i1):
            for i in range(i0, i1): a(f"v_cvt_pk_bf16_f32 v{84+i}, v{SB(kt)+2*i}, v{SB(kt)+2*i+1}")
        self.lg_reset()
        rdK(1, 0); rdK(1, 1)
        for kt in range(9):
            self.lg_wait(("K", 1, kt))
            qk1(kt); qk2(kt)
            if kt + 2 <= 8: rdK(1, kt + 2)
            if kt == 7: rdK(2, 1)
            if kt == 8: rdK(2, 0); rdV(0); rdV(1)
            if kt >= 1: maxes(kt - 1)
        maxes(8)
        a("v_max_f32 v140, v140, v141\nv_mov_b32 v141, v140\nv_permlane32_swap_b32 v140, v141\nv_max_f32 v140, v140, v141")
        a("v_sub_f32 v140, 0, v140")
        a("v_cvt_pk_bf16_f32 v141, v140, v140\nv_lshlrev_b32 v141, 16, v141\nv_sub_f32 v141, v140, v141")
        a("v_cvt_pk_bf16_f32 v141, v140, v141")
        a("v_cmp_gt_u32 vcc, 32, v1\nv_mov_b32 v142, 0\nv_cndmask_b32 v141, v142, v141, vcc")
        a("s_cmp_eq_u32 s64, 1\ns_cbranch_scc1 L_b_mo\nv_mov_b32 v14, v141\ns_branch L_b_md\nL_b_mo:\nv_mov_b32 v12, v141\nL_b_md:")
        a("s_nop 1")
        self.lg_wait(("K", 2, 0))
        qk1(0); qk2(0)
        rdK(2, 2)
        for kt in range(9):
            if kt < 8:
                self.lg_wait(("K", 2, kt + 1)); qk1(kt + 1)
            ex(kt, 0, 4)
            if kt < 8:
                qk2(kt + 1)
                if kt + 3 <= 8: rdK(2, kt + 3)
            ex(kt, 4, 8); cv(kt, 0, 4); ex(kt, 8, 10)
            self.lg_wait(("V", kt))
            a(f"v_mfma_f32_32x32x16_bf16 v[92:107], v[{VS(kt)}:{VS(kt)+3}], v[84:87], {'0' if kt == 0 else 'v[92:107]'}")
            ex(kt, 10, 16); cv(kt, 4, 8)
            a(f"v_mfma_f32_32x32x16_bf16 v[92:107], v[{VS(kt)+4}:{VS(kt)+7}], v[88:91], v[92:107]")
            if kt + 2 <= 8: rdV(kt + 2)
        self.stamp(7)
        a("v_mov_b32 v140, v100\nv_mov_b32 v141, v100\nv_permlane32_swap_b32 v140, v141")
        a("v_rcp_f32 v141, v141")
        for r in range(12): a(f"v_mul_f32 v{92+r}, v{92+r}, v141")
        for i in range(6): a(f"v_cvt_pk_bf16_f32 v{84+i}, v{92+2*i}, v{92+2*i+1}")
        a("v_add_u32 v5, s34, v2\nv_lshlrev_b32 v5, 3, v5\nv_lshl_add_u32 v5, v3, 14, v5")
        a(f"s_mul_i32 s35, s62, {5*16384}\ns_add_u32 s35, s35, {WS_O}")
        a("buffer_store_dwordx2 v[84:85], v5, s[12:15], s35 offen sc1")
        a("s_add_u32 s35, s35, 32768\nbuffer_store_dwordx2 v[86:87], v5, s[12:15], s35 offen sc1")
        a("s_add_u32 s35, s35, 32768\ns_mov_b32 exec_hi, 0\nbuffer_store_dwordx2 v[88:89], v5, s[12:15], s35 offen sc1\ns_mov_b64 exec, -1")
        a(f"v_mov_b32 v5, {L_FLG}\nds_read_b32 v7, v5 offset:4")
        a(f"s_lshl_b32 s35, s63, 5\ns_add_u32 s35, s35, s62\ns_lshl_b32 s35, s35, 3\ns_add_u32 s35, s35, s16\ns_lshl_b32 s35, s35, 6\ns_add_u32 s35, s35, {WS_F2}\nv_mov_b32 v6, s35")
        a("s_waitcnt lgkmcnt(0)\ns_mov_b64 exec, 1\nbuffer_store_dword v7, v6, s[12:15], 0 offen sc1")
        a("v_mov_b32 v6, 1\nds_add_u32 v5, v6 offset:12\ns_mov_b64 exec, -1")
        a("L_b_nf:")
        self.stamp(8)

    def phase_c(self):
        a = self.a
        a("; ---- phase C ----")
        self.post_srd = []
        self.srd(56, 64, 2621440)
        a("s_and_b32 s21, s16, 3\ns_lshr_b32 s22, s16, 2")
        a("v_and_b32 v2, 15, v1\nv_lshrrev_b32 v3, 4, v1\nv_mov_b32 v8, v163\nv_mov_b32 v10, v162")
        a(f"v_mov_b32 v5, {L_FLG}")
        a(f"s_mul_i32 s30, s22, {80*16384}\ns_add_u32 s30, s30, {WS_O}\nv_lshlrev_b32 v20, 3, v8\nv_lshl_add_u32 v20, v3, 15, v20")
        a("v_bfe_u32 v21, v1, 2, 2")
        a("v_lshrrev_b32 v22, 1, v21\nv_and_b32 v23, 1, v3\nv_lshl_or_b32 v22, v23, 1, v22")
        a("v_lshl_add_u32 v23, v3, 3, v21")
        a("v_and_b32 v24, 3, v1\nv_lshlrev_b32 v24, 3, v24")
        a("v_lshlrev_b32 v25, 7, v23\nv_lshl_add_u32 v25, v22, 5, v25\nv_add_u32 v25, v25, v24")
        a(f"s_mul_i32 s31, s22, {320*128}\ns_add_u32 s31, s31, {LA1}")
        a(f"s_cmp_eq_u32 s22, 0\ns_cselect_b32 s32, {LA1 + 128*128}, {LA2}")
        for nt in range(4):
            a(f"v_xor_b32 v26, {nt << 5}, v25\nv_add_u32 v{28+nt}, s31, v26\nv_add_u32 v{32+nt}, s32, v26")
        a("v_and_b32 v26, 1, v3\nv_lshlrev_b32 v26, 2, v26")
        a(f"s_mul_i32 s31, s22, {320*32}\ns_add_u32 s31, s31, {LBB}")
        for jj in range(2):
            a(f"v_xor_b32 v27, {4*jj}, v26\nv_add_u32 v27, v27, v23\nv_lshl_add_u32 v27, v27, 5, v24\nv_add_u32 v{36+jj}, s31, v27")
        a("s_waitcnt lgkmcnt(0)")
        self.srd_fin()
        a("ds_read_b32 v6, v5 offset:4\nv_lshlrev_b32 v11, 4, v8\ns_waitcnt lgkmcnt(0)")
        a("L_c_st:\nv_cmp_ne_u32 vcc, v6, v161\ns_cbranch_vccz L_c_stok")
        a("buffer_load_dwordx2 v[160:161], v11, s[12:15], 0 offen sc1\ns_waitcnt vmcnt(0)\ns_add_u32 s100, s100, 1\ns_bitcmp1_b32 s100, 21\ns_cbranch_scc0 L_c_st\nL_c_stok:")
        a("v_lshlrev_b32 v22, 16, v160\nv_and_b32 v23, 0xffff0000, v160\nv_rcp_f32 v23, v23")
        for i in range(3):
            for d in range(2):
                a(f"v_lshlrev_b32 v{40+4*i+2*d}, 16, v{154+2*i+d}\nv_and_b32 v{41+4*i+2*d}, 0xffff0000, v{154+2*i+d}")
            for d in range(2):
                e = 40 + 4 * i + 2 * d; o = 52 + 4 * i + 2 * d
                a(f"v_sub_f32 v{o}, v{e}, v22\nv_sub_f32 v{o+1}, v{e+1}, v22")
                a(f"v_cvt_pk_bf16_f32 v26, v{o}, v{o+1}\nv_lshlrev_b32 v{o}, 16, v26\nv_and_b32 v{o+1}, 0xffff0000, v26")
                a(f"v_mul_f32 v{o}, v{o}, v23\nv_mul_f32 v{o+1}, v{o+1}, v23")
                a(f"v_cvt_pk_bf16_f32 v26, v{o}, v{o+1}\nv_lshlrev_b32 v{o}, 16, v26\nv_and_b32 v{o+1}, 0xffff0000, v26")
        self.lds_spin("v5", "v6", "s35", "ge", 1, off=16)
        self.stamp(9)
        a("L_c_retry:\nv_mov_b32 v38, 0")
        for sl in range(10):
            a(f"s_add_u32 s31, s30, {sl*8*16384}\nbuffer_load_dwordx2 v[{64+4*sl}:{65+4*sl}], v20, s[12:15], s31 offen sc1")
            a(f"s_add_u32 s31, s31, 16384\nbuffer_load_dwordx2 v[{66+4*sl}:{67+4*sl}], v20, s[12:15], s31 offen sc1")
        self.lds_spin("v5", "v6", "s35", "ge", 2, off=32)
        self.lg_reset()
        def rdW(sl):
            b = 104 + 20 * (sl & 1)
            for nt in range(4):
                ar = (28 if sl < 4 else 32) + nt
                off = (sl if sl < 4 else sl - 4) * 4096
                a(f"ds_read_b64_tr_b16 v[{b+4*nt}:{b+4*nt+1}], v{ar} offset:{off}\nds_read_b64_tr_b16 v[{b+4*nt+2}:{b+4*nt+3}], v{ar} offset:{off+512}")
            a(f"ds_read_b64_tr_b16 v[{b+16}:{b+17}], v36 offset:{1024*sl}\nds_read_b64_tr_b16 v[{b+18}:{b+19}], v37 offset:{1024*sl}")
            self.lg_issue(("W", sl), 10)
        rdW(0)
        for sl in range(10):
            if sl + 1 < 10: rdW(sl + 1)
            self.lg_wait(("W", sl))
            a(f"s_waitcnt vmcnt({2 * (9 - sl)})")
            b = 104 + 20 * (sl & 1)
            for nt in range(5):
                c = "0" if sl == 0 else f"v[{144+4*nt}:{147+4*nt}]"
                a(f"v_mfma_f32_16x16x32_bf16 v[{144+4*nt}:{147+4*nt}], v[{b+4*nt}:{b+4*nt+3}], v[{64+4*sl}:{67+4*sl}], {c}")
            a(f"v_max3_u32 v38, v{64+4*sl}, v{65+4*sl}, v38\nv_max3_u32 v38, v{66+4*sl}, v{67+4*sl}, v38")
        a("v_cmp_eq_u32 vcc, -1, v38")
        self.guard_br("L_c_retry")
        a(f"s_mul_i32 s29, s16, 3072\ns_add_u32 s29, s29, {L_EX}\nv_lshlrev_b32 v26, 4, v1\nv_add_u32 v26, s29, v26")
        a("s_cmp_eq_u32 s22, 0\ns_cbranch_scc0 L_c_x1")
        a("ds_write_b128 v26, v[156:159]\nds_write_b128 v26, v[160:163] offset:1024")
        a("s_branch L_c_x2")
        a("L_c_x1:")
        a("ds_write_b128 v26, v[144:147]\nds_write_b128 v26, v[148:151] offset:1024\nds_write_b128 v26, v[152:155] offset:2048")
        for k in range(8): a(f"v_mov_b32 v{144+k}, v{156+k}")
        a("L_c_x2:")
        a(f"s_lshl_b32 s29, s16, 2\ns_add_u32 s29, s29, {L_FLG+64}\nv_mov_b32 v27, s29\nv_mov_b32 v6, 1\ns_waitcnt lgkmcnt(0)")
        a("s_mov_b64 exec, 1\nds_write_b32 v27, v6\ns_mov_b64 exec, -1")
        a(f"s_xor_b32 s31, s16, 4\ns_lshl_b32 s29, s31, 2\ns_add_u32 s29, s29, {L_FLG+64}\nv_mov_b32 v27, s29")
        self.lds_spin("v27", "v6", "s35", "ge", 1)
        a(f"s_mul_i32 s29, s31, 3072\ns_add_u32 s29, s29, {L_EX}\nv_lshlrev_b32 v26, 4, v1\nv_add_u32 v26, s29, v26")
        a("ds_read_b128 v[104:107], v26\nds_read_b128 v[108:111], v26 offset:1024\nds_read_b128 v[112:115], v26 offset:2048")
        a("s_waitcnt lgkmcnt(0)")
        for k in range(12): a(f"v_add_f32 v{144+k}, v{144+k}, v{104+k}")
        self.moe_hook()
        for i in range(3):
            if i == 2: a("s_cmp_eq_u32 s22, 1\ns_cbranch_scc1 L_c_done")
            for d in range(2):
                ac = 144 + 4 * i + 2 * d; e = 40 + 4 * i + 2 * d; o = 52 + 4 * i + 2 * d
                a(f"v_cvt_pk_bf16_f32 v26, v{ac}, v{ac+1}\nv_lshlrev_b32 v{ac}, 16, v26\nv_and_b32 v{ac+1}, 0xffff0000, v26")
                a(f"v_add_f32 v{ac}, v{ac}, v{e}\nv_add_f32 v{ac+1}, v{ac+1}, v{e+1}")
                a(f"v_cvt_pk_bf16_f32 v26, v{ac}, v{ac+1}\nv_lshlrev_b32 v{ac}, 16, v26\nv_and_b32 v{ac+1}, 0xffff0000, v26")
                a(f"v_add_f32 v{ac}, v{ac}, v{o}\nv_add_f32 v{ac+1}, v{ac+1}, v{o+1}")
                a(f"v_cvt_pk_bf16_f32 v{104+2*i+d}, v{ac}, v{ac+1}")
            a(f"buffer_store_dwordx2 v[{104+2*i}:{105+2*i}], v10, s[56:59], 0 offen offset:{32*i}")
        a("L_c_done:")

    def moe_hook(self):
        a = self.a
        if "nomoe" in self.opts: return
        self.lds_spin("v5", "v6", "s35", "ge", 1, off=20)
        a("ds_read_b64 v[26:27], v5 offset:24\nds_read_b32 v6, v5 offset:4\ns_waitcnt lgkmcnt(0)")
        a("v_cmp_eq_u32 s[30:31], v26, v8\nv_cmp_eq_u32 s[32:33], v27, v8\ns_or_b64 s[34:35], s[30:31], s[32:33]")
        a("s_cmp_eq_u64 s[34:35], 0\ns_cbranch_scc1 L_c_nomoe")
        a(f"s_lshl_b32 s29, s69, 2\ns_mul_i32 s36, s22, 384\ns_add_u32 s29, s29, s36\ns_add_u32 s29, s29, {WS_UPD}\nv_lshlrev_b32 v7, 5, v3")
        a("L_c_upd:")
        for i in range(3):
            a(f"buffer_load_dwordx4 v[{104+8*i}:{107+8*i}], v7, s[12:15], s29 offen offset:{128*i} sc1")
            a(f"buffer_load_dwordx4 v[{108+8*i}:{111+8*i}], v7, s[12:15], s29 offen offset:{128*i+16} sc1")
        a("s_waitcnt vmcnt(0)")
        a("v_cmp_ne_u32 vcc, v6, v105")
        regs = [105 + 2 * k for k in range(1, 8)]
        for r in regs: a(f"v_cmp_ne_u32 s[36:37], v6, v{r}\ns_or_b64 vcc, vcc, s[36:37]")
        L = a.label("u3")
        a(f"s_cmp_eq_u32 s22, 1\ns_cbranch_scc1 {L}")
        for r in [121, 123, 125, 127]: a(f"v_cmp_ne_u32 s[36:37], v6, v{r}\ns_or_b64 vcc, vcc, s[36:37]")
        a(f"{L}:")
        a("s_and_b64 vcc, vcc, s[34:35]\ns_cbranch_vccz L_c_upd_o\ns_add_u32 s100, s100, 1\ns_bitcmp1_b32 s100, 21\ns_cbranch_scc0 L_c_upd\nL_c_upd_o:")
        for i in range(3):
            for e in range(4):
                g = 104 + 8 * i + 2 * e; o = 52 + 4 * i + e
                a(f"v_lshlrev_b32 v26, 16, v{g}\nv_and_b32 v27, 0xffff0000, v{g}\nv_cndmask_b32 v26, v27, v26, s[30:31]")
                a(f"v_add_f32 v26, v{o}, v26\nv_cvt_pk_bf16_f32 v26, v26, v26\nv_lshlrev_b32 v26, 16, v26\nv_cndmask_b32 v{o}, v{o}, v26, s[34:35]")
        a("L_c_nomoe:")

    def guard_br(self, L):
        Lo = self.a.label("ok")
        self.a(f"s_cbranch_vccz {Lo}\ns_sleep {self.BACK}\ns_add_u32 s100, s100, 1\ns_bitcmp1_b32 s100, 21\ns_cbranch_scc0 {L}\n{Lo}:")

    def moe_tile_gemm(self, img, nmat, lds_a):
        a = self.a
        a(f"v_and_b32 v30, 1, v1\nv_lshlrev_b32 v30, 7, v30\nv_lshrrev_b32 v31, 4, v1\nv_lshl_add_u32 v30, v31, 4, v30\nv_add_u32 v30, {lds_a}, v30")
        a("v_bfe_u32 v32, v1, 2, 2\nv_lshrrev_b32 v33, 1, v32\nv_and_b32 v34, 1, v31\nv_lshl_or_b32 v33, v34, 1, v33")
        a("v_lshl_add_u32 v32, v31, 3, v32\nv_lshlrev_b32 v32, 7, v32\nv_lshl_add_u32 v32, v33, 5, v32\nv_and_b32 v33, 3, v1\nv_lshl_add_u32 v32, v33, 3, v32")
        a(f"v_add_u32 v32, {img}, v32")
        for nt in range(4): a(f"v_xor_b32 v{36+nt}, {nt << 5}, v32")
        a("ds_read_b128 v[40:43], v30\nds_read_b128 v[44:47], v30 offset:64")
        T = nmat * 4
        for t in range(T):
            mat, nt = t >> 2, t & 3
            b = 96 + 8 * t
            for s_ in range(2):
                for jj in range(2):
                    a(f"ds_read_b64_tr_b16 v[{b+4*s_+2*jj}:{b+4*s_+2*jj+1}], v{36+nt} offset:{mat*8192 + s_*4096 + jj*512}")
            if t == 2: a("s_waitcnt lgkmcnt(8)") if False else None
        a("s_waitcnt lgkmcnt(0)")
        for t in range(T):
            b = 96 + 8 * t; d = 64 + 4 * t
            a(f"v_mfma_f32_16x16x32_bf16 v[{d}:{d+3}], v[40:43], v[{b}:{b+3}], 0")
        for t in range(T):
            b = 96 + 8 * t; d = 64 + 4 * t
            a(f"v_mfma_f32_16x16x32_bf16 v[{d}:{d+3}], v[44:47], v[{b+4}:{b+7}], v[{d}:{d+3}]")
        for t in range(T):
            d = 64 + 4 * t
            a(f"v_mov_b32 v{d+2}, s61\nv_mov_b32 v{d+3}, s61")

    def moe_aux(self):
        a = self.a
        a(f"v_lshlrev_b32 v6, 4, v1\nv_add_u32 v6, {WS_FR}, v6")
        a("L_m_fr:")
        for i in range(4): a(f"buffer_load_dwordx4 v[{16+4*i}:{19+4*i}], v6, s[12:15], 0 offen offset:{1024*i} sc1")
        a("s_waitcnt vmcnt(0)")
        a("v_cmp_ne_u32 vcc, s61, v17")
        for r in (19, 21, 23, 25, 27, 29, 31): a(f"v_cmp_ne_u32 s[62:63], s61, v{r}\ns_or_b64 vcc, vcc, s[62:63]")
        self.guard_br("L_m_fr")
        a("v_mov_b32 v8, v16\nv_mov_b32 v10, v18")
        for i in range(1, 4): self.top2_merge("v8", "v10", f"v{16+4*i}", f"v{18+4*i}", "v14")
        self.top2_wave("v8", "v10", "v12", "v13", "v14")
        a("v_readfirstlane_b32 s64, v8\nv_readfirstlane_b32 s65, v10")
        a("s_and_b32 s66, s64, 0x7ff\ns_sub_u32 s66, 2047, s66\ns_and_b32 s67, s65, 0x7ff\ns_sub_u32 s67, 2047, s67")
        a(f"v_mov_b32 v6, {L_FLG}\nv_mov_b32 v12, s66\nv_mov_b32 v13, s67\nv_mov_b32 v14, 1\nds_write_b64 v6, v[12:13] offset:24\ns_waitcnt lgkmcnt(0)\nds_write_b32 v6, v14 offset:20")
        for k, d in (("s64", "s68"), ("s65", "s69")):
            a(f"s_lshr_b32 s29, {k}, 16\ns_and_b32 s30, s29, 0x7fff\ns_xor_b32 s31, s29, 0xffff\ns_bitcmp1_b32 s29, 15\ns_cselect_b32 {d}, s30, s31\ns_lshl_b32 {d}, {d}, 16")
        self.stamp(5)
        a("s_cmp_ge_u32 s2, 240\ns_cbranch_scc1 L_m_s4")
        a("s_mul_i32 s29, s2, 171\ns_lshr_b32 s29, s29, 12\ns_mul_i32 s30, s29, 24\ns_sub_u32 s30, s2, s30")
        a("v_bfe_u32 v6, v1, 4, 1\nv_cmp_eq_u32 vcc, 1, v6\nv_mov_b32 v7, s66\nv_mov_b32 v8, s67\nv_cndmask_b32 v7, v7, v8, vcc")
        a("v_and_b32 v9, 15, v1\nv_mul_u32_u24 v10, 1280, v7\nv_lshl_add_u32 v10, v9, 3, v10\ns_lshl_b32 s31, s29, 7\nv_add_u32 v10, s31, v10\nv_lshlrev_b32 v11, 4, v7")
        a("buffer_load_dwordx2 v[16:17], v10, s[4:7], 0 offen")
        a("L_m_st:\nbuffer_load_dwordx2 v[14:15], v11, s[12:15], 0 offen sc1\ns_waitcnt vmcnt(0)")
        a("v_cmp_ne_u32 vcc, s61, v15")
        self.guard_br("L_m_st")
        a("v_lshlrev_b32 v12, 16, v14\nv_and_b32 v13, s28, v14\nv_rcp_f32 v13, v13")
        for r in (16, 17):
            a(f"v_lshlrev_b32 v30, 16, v{r}\nv_and_b32 v31, s28, v{r}\nv_sub_f32 v30, v30, v12\nv_sub_f32 v31, v31, v12")
            a("v_cvt_pk_bf16_f32 v32, v30, v31\nv_lshlrev_b32 v30, 16, v32\nv_and_b32 v31, s28, v32")
            a(f"v_mul_f32 v30, v30, v13\nv_mul_f32 v31, v31, v13\nv_cvt_pk_bf16_f32 v{r}, v30, v31")
        a(f"v_lshlrev_b32 v6, 7, v6\nv_lshl_add_u32 v6, v9, 3, v6\nv_add_u32 v6, {L_XS}, v6\nds_write_b64 v6, v[16:17]")
        a(f"v_mov_b32 v6, {L_FLG}\ns_waitcnt lgkmcnt(0)")
        self.lds_spin("v6", "v7", "s35", "ge", 2, off=36)
        self.moe_tile_gemm(L_AUX, 2, L_XS)
        a(f"s_lshl_b32 s29, s2, 11\ns_add_u32 s29, s29, {WS_P1}\nv_lshlrev_b32 v6, 4, v1\ns_mov_b64 exec, 0xffff")
        for t in range(8): a(f"buffer_store_dwordx4 v[{64+4*t}:{67+4*t}], v6, s[12:15], s29 offen offset:{256*t} sc1")
        a("s_mov_b64 exec, -1")
        self.stamp(6)
        a("s_mul_i32 s57, s2, 205\ns_lshr_b32 s57, s57, 11")
        a(f"s_lshl_b32 s29, s57, 11\ns_add_u32 s29, s29, {WS_P1}\nv_lshlrev_b32 v6, 4, v1")
        a("L_m_p1:")
        for kc in range(10):
            a(f"s_add_u32 s30, s29, {kc*24*2048}\nbuffer_load_dwordx4 v[{64+8*kc}:{67+8*kc}], v6, s[12:15], s30 offen sc1\nbuffer_load_dwordx4 v[{68+8*kc}:{71+8*kc}], v6, s[12:15], s30 offen offset:1024 sc1")
        a("s_waitcnt vmcnt(0)")
        a("v_cmp_ne_u32 vcc, s61, v66")
        for k in range(1, 20): a(f"v_cmp_ne_u32 s[62:63], s61, v{66+4*k}\ns_or_b64 vcc, vcc, s[62:63]")
        self.guard_br("L_m_p1")
        for kc in range(1, 10):
            for o in (0, 1, 4, 5): a(f"v_add_f32 v{64+o}, v{64+o}, v{64+8*kc+o}")
        for c in range(2):
            g_, u_ = 64 + c, 68 + c
            a(f"v_cvt_pk_bf16_f32 v{g_}, v{g_}, v{g_}\nv_lshlrev_b32 v{g_}, 16, v{g_}\nv_cvt_pk_bf16_f32 v{u_}, v{u_}, v{u_}\nv_lshlrev_b32 v{u_}, 16, v{u_}")
            a(f"v_mul_f32 v46, {f32hex(-1.4426950408889634)}, v{g_}\nv_exp_f32 v46, v46\nv_add_f32 v46, 1.0, v46\nv_rcp_f32 v46, v46\nv_mul_f32 v46, v{g_}, v46")
            a(f"v_cvt_pk_bf16_f32 v46, v46, v46\nv_lshlrev_b32 v46, 16, v46\nv_mul_f32 v{g_}, v46, v{u_}")
        a("v_cvt_pk_bf16_f32 v16, v64, v65")
        a(f"v_lshlrev_b32 v6, 1, v1\nv_add_u32 v6, {L_HS}, v6\nds_write_b16 v6, v16\nds_write_b16_d16_hi v6, v16 offset:128")
        a(f"v_mov_b32 v6, {L_FLG}\ns_waitcnt lgkmcnt(0)")
        self.lds_spin("v6", "v7", "s35", "ge", 2, off=36)
        self.moe_tile_gemm(L_AUX + 16384, 1, L_HS)
        a(f"s_lshl_b32 s29, s2, 10\ns_add_u32 s29, s29, {WS_P3}\nv_lshlrev_b32 v6, 4, v1\ns_mov_b64 exec, 0xffff")
        for t in range(4): a(f"buffer_store_dwordx4 v[{64+4*t}:{67+4*t}], v6, s[12:15], s29 offen offset:{256*t} sc1")
        a("s_mov_b64 exec, -1")
        self.stamp(7)
        a("s_branch L_m_end")
        a("L_m_s4:")
        a("s_cmp_ge_u32 s2, 250\ns_cbranch_scc1 L_m_end")
        a(f"s_sub_u32 s57, s2, 240\ns_lshl_b32 s29, s57, 10\ns_add_u32 s29, s29, {WS_P3}\nv_lshlrev_b32 v6, 4, v1")
        a("L_m_p3:")
        for kc in range(24):
            a(f"s_add_u32 s30, s29, {kc*10*1024}\nbuffer_load_dwordx4 v[{64+4*kc}:{67+4*kc}], v6, s[12:15], s30 offen sc1")
        a("s_waitcnt vmcnt(0)")
        a("v_cmp_ne_u32 vcc, s61, v66")
        for k in range(1, 24): a(f"v_cmp_ne_u32 s[62:63], s61, v{66+4*k}\ns_or_b64 vcc, vcc, s[62:63]")
        self.guard_br("L_m_p3")
        for kc in range(1, 24): a(f"v_add_f32 v64, v64, v{64+4*kc}\nv_add_f32 v65, v65, v{65+4*kc}")
        for c in range(2):
            a(f"v_cvt_pk_bf16_f32 v{64+c}, v{64+c}, v{64+c}\nv_lshlrev_b32 v{64+c}, 16, v{64+c}")
            sr = "s68" if c == 0 else "s69"
            a(f"v_mov_b32 v46, {sr}\nv_mul_f32 v46, {f32hex(-1.4426950408889634)}, v46\nv_exp_f32 v46, v46\nv_add_f32 v46, 1.0, v46\nv_rcp_f32 v46, v46")
            a(f"v_cvt_pk_bf16_f32 v46, v46, v46\nv_lshlrev_b32 v46, 16, v46\nv_mul_f32 v{64+c}, v{64+c}, v46")
        a("v_cvt_pk_bf16_f32 v48, v64, v65\nv_mov_b32 v49, s61")
        a(f"s_lshl_b32 s29, s57, 9\ns_add_u32 s29, s29, {WS_UPD}\nv_lshlrev_b32 v6, 3, v1\nbuffer_store_dwordx2 v[48:49], v6, s[12:15], s29 offen sc1")
        self.stamp(7)
        a("L_m_end:")

    def small_gemm(self, nk, astride, jjoff, bstride):
        a = self.a
        self.lg_reset()
        def rd(s_):
            b = 50 + 8 * (s_ % 3)
            a(f"ds_read_b128 v[{b}:{b+3}], v30 offset:{astride*s_}")
            a(f"ds_read_b64_tr_b16 v[{b+4}:{b+5}], v32 offset:{bstride*s_}\nds_read_b64_tr_b16 v[{b+6}:{b+7}], v32 offset:{bstride*s_+jjoff}")
            self.lg_issue(("G", s_), 3)
        rd(0); rd(1)
        for s_ in range(nk):
            if s_ + 2 < nk: rd(s_ + 2)
            self.lg_wait(("G", s_))
            b = 50 + 8 * (s_ % 3)
            a(f"v_mfma_f32_16x16x32_bf16 v[40:43], v[{b}:{b+3}], v[{b+4}:{b+7}], {'0' if s_ == 0 else 'v[40:43]'}")

    def aux(self):
        a = self.a
        a("L_aux:")
        self.post_srd = []
        self.srd(40, 72, 256)
        a("v_mov_b32 v2, 0")
        a(f"v_lshlrev_b32 v6, 2, v1\nv_add_u32 v6, {L_FLG}, v6\ns_mov_b32 exec_hi, 0\nds_write_b32 v6, v2\ns_mov_b64 exec, -1")
        a("s_memrealtime s[54:55]")
        a("s_lshl_b32 s23, s46, 2\ns_add_u32 s23, s23, s20")
        a("s_waitcnt lgkmcnt(0)")
        self.srd_fin()
        self.stamp(0)
        a("v_mov_b32 v9, 0")
        a("s_cmp_lg_u32 s2, 0\ns_cbranch_scc1 L_x_non")
        a("s_or_b32 s54, s54, 1\nv_mov_b32 v10, s54\ns_mov_b64 exec, 1\nbuffer_store_dword v10, v9, s[40:43], 0 offen sc1\ns_mov_b64 exec, -1")
        a("L_x_non:")
        a("s_getreg_b32 s52, hwreg(HW_REG_XCC_ID, 0, 4)")
        a("s_and_b32 s52, s52, 7\ns_or_b32 s52, s52, 16\ns_mov_b32 s28, 0xffff0000")
        a("s_barrier")
        a("buffer_load_dword v10, v9, s[40:43], 0 offen sc1")
        def get_nonce():
            a("s_waitcnt vmcnt(0)")
            a("L_x_wn:\nv_cmp_ne_u32 vcc, 0, v10\ns_cbranch_vccnz L_x_gotn")
            a("buffer_load_dword v10, v9, s[40:43], 0 offen sc1\ns_waitcnt vmcnt(0)\ns_add_u32 s100, s100, 1\ns_bitcmp1_b32 s100, 21\ns_cbranch_scc0 L_x_wn")
            a("L_x_gotn:")
            a("v_readfirstlane_b32 s61, v10")
            a(f"v_mov_b32 v6, {L_FLG}\nds_write_b32 v6, v10 offset:4")
            a(f"s_lshl_b32 s31, s17, 5\ns_add_u32 s31, s31, s18\ns_lshl_b32 s31, s31, 4\ns_add_u32 s31, s31, {WS_XF}")
            a("v_mov_b32 v14, s52\nv_mov_b32 v15, v10\ns_mov_b64 exec, 1\nbuffer_store_dwordx2 v[14:15], v9, s[12:15], s31 offen sc1\ns_mov_b64 exec, -1")
            self.stamp(1)
        def pub_st():
            a(f"v_and_b32 v12, 7, v1\nv_lshlrev_b32 v13, 3, v12\nv_add_u32 v13, {L_OWN}, v13\nds_read_b64 v[18:19], v13")
            a("s_lshl_b32 s29, s23, 3\ns_lshl_b32 s30, s19, 7\ns_add_u32 s29, s29, s30\ns_lshl_b32 s29, s29, 4")
            a("v_lshlrev_b32 v12, 4, v1\nv_mov_b32 v21, s61\nv_mov_b32 v23, s61")
            a("s_waitcnt lgkmcnt(0)\nv_mov_b32 v20, v18\nv_mov_b32 v22, v19")
            a("s_mov_b64 exec, 0xff\nbuffer_store_dwordx4 v[20:23], v12, s[12:15], s29 offen sc1\ns_mov_b64 exec, -1")
            a("v_cmp_gt_u32 vcc, 8, v1\nv_mov_b32 v30, 0\nv_cndmask_b32 v30, v30, v19, vcc\nv_mov_b32 v32, 0")
            for ctrl in ("quad_perm:[1,0,3,2]", "quad_perm:[2,3,0,1]", "row_half_mirror"):
                a(f"v_mov_b32_dpp v34, v30 {ctrl} row_mask:0xf bank_mask:0xf\nv_mov_b32_dpp v35, v32 {ctrl} row_mask:0xf bank_mask:0xf")
                self.top2_merge("v30", "v32", "v34", "v35", "v36")
            a(f"s_lshl_b32 s29, s2, 4\ns_add_u32 s29, s29, {WS_FR}\nv_mov_b32 v28, s29\nv_mov_b32 v31, s61\nv_mov_b32 v33, s61")
            a("s_mov_b64 exec, 1\nbuffer_store_dwordx4 v[30:33], v28, s[12:15], 0 offen sc1\ns_mov_b64 exec, -1")
        def gather_issue():
            a(f"s_lshl_b32 s29, s19, 11\ns_add_u32 s29, s29, {WS_ST}\nv_lshlrev_b32 v9, 5, v1")
            a("buffer_load_dwordx4 v[40:43], v9, s[12:15], s29 offen sc1")
            a("buffer_load_dwordx4 v[44:47], v9, s[12:15], s29 offen offset:16 sc1")
            a(f"s_lshl_b32 s31, s17, 9\ns_add_u32 s31, s31, {WS_XF}\nv_and_b32 v16, 31, v1\nv_lshlrev_b32 v16, 4, v16")
            a("buffer_load_dwordx2 v[18:19], v16, s[12:15], s31 offen sc1")
        def gather_check(Lok):
            a("s_waitcnt vmcnt(0)")
            a("v_cmp_ne_u32 vcc, s61, v41\nv_cmp_ne_u32 s[62:63], s61, v45\ns_or_b64 vcc, vcc, s[62:63]")
            if "nocheck" in self.opts: a(f"s_branch {Lok}")
            a(f"s_cbranch_vccz {Lok}")
        tst = self.b_stats
        for t in range(9):
            a("s_barrier")
            if t == 1: get_nonce()
            if t == tst: pub_st()
            if t == max(self.TG, tst + 2): gather_issue()
        gather_check("L_x_gdone")
        a("L_x_gretry:")
        gather_issue()
        gather_check("L_x_gdone")
        self.guard("L_x_gretry")
        a("L_x_gdone:")
        a("v_lshlrev_b32 v24, 16, v40\nv_and_b32 v25, 0xffff0000, v40\nv_lshlrev_b32 v26, 16, v44\nv_and_b32 v27, 0xffff0000, v44")
        a("v_rcp_f32 v25, v25\nv_rcp_f32 v27, v27")
        a(f"v_lshlrev_b32 v28, 4, v1\nv_add_u32 v28, {L_STAT}, v28")
        a("ds_write_b128 v28, v[24:27]")
        a("s_waitcnt vmcnt(0)")
        a("v_cmp_ne_u32 vcc, s52, v18\nv_cmp_ne_u32 s[62:63], s61, v19\ns_or_b64 vcc, vcc, s[62:63]")
        a("s_cmp_eq_u64 vcc, 0\ns_cselect_b32 s56, 1, 0")
        a("s_and_b32 s57, s19, 14\ns_cmp_eq_u32 s57, 6\ns_cselect_b32 s56, 0, s56")
        if "slow" in self.opts: a("s_mov_b32 s56, 0")
        a(f"v_mov_b32 v28, {L_FLG}\nv_mov_b32 v29, s56\nds_write_b32 v28, v29\ns_waitcnt lgkmcnt(0)")
        self.stamp(2)
        a("s_barrier")
        self.stamp(3); self.stamp(4)
        if self.stop_after is None:
            a("s_mov_b32 s28, 0xffff0000\ns_setprio 3")
            if self.stamps:
                for k in (5, 6, 7): a(f"s_mov_b64 s[{72+2*k}:{73+2*k}], 0")
            if "nomoe" not in self.opts: self.moe_aux()
        if "lstamp" not in self.opts and "lloop" not in self.opts: self.fin_stamps(8 if self.stop_after is None else 5, wave=10, slot=1)
        a("s_endpgm")

if __name__ == "__main__":
    import argparse
    ap = argparse.ArgumentParser()
    ap.add_argument("-o", default="k.s")
    ap.add_argument("--stamps", action="store_true")
    ap.add_argument("--opt", action="append", default=[])
    args = ap.parse_args()
    g = Gen(stamps=args.stamps, opts=args.opt)
    open(args.o, "w").write(g.build())
    print("wrote", args.o)
```

```python
import sys, struct
from asmlib import Asm

KNAME = "parallel_sum__sliding_block__moe_arch_mod__prompt_kernel"

WS_ST = 0
WS_CSP = 0x8000
WS_F1 = 0x48000
WS_F2 = 0xBC0000
WS_FR = 0x57000
WS_XF = 0x50400
WS_XH = 0x52000
WS_UPD = 0x55000
WS_P1 = 0x60000
WS_P3 = 0xB80000
WS_QKV = 0x100000
WS_O = 0x900000
WS_DBG = 0xC00000
WS_SIZE = 0xD00000
L_MISC = 131072
L_STAT = L_MISC
L_CS = L_MISC + 1024
L_CSW = L_MISC + 2176
L_OWN = L_MISC + 2048
L_FLG = L_MISC + 6400
L_XS = L_MISC + 6656
L_HS = L_MISC + 6912
L_AUX = 138240
LB_K = 0
LB_V = 24768
PLS = 8256
LA1 = 49664
LBB = 107008
LA2 = 0
L_EX = 24832
LQ = 107008
NEGF = "0xf149f2ca"
LDS_BYTES = 163840
QSCALE = 0.22360679774997896 * 1.4426950408889634

def f32hex(x):
    return "0x%08x" % struct.unpack("<I", struct.pack("<f", x))[0]

class Gen:
    def __init__(self, stop_after=None, stamps=False, opts=()):
        self.a = Asm()
        self.opts = set(opts)
        self.stop_after = stop_after
        self.stamps = stamps
        self.in_main = False
        self.swave = 0; self.quota = 24; self.TG = 6; self.TP = 1; self.SIDE0 = 1; self.Q0 = 50; self.Q1 = 100; self.LM0 = 1; self.BACK = 8; self.PRE = 3
        for o in self.opts:
            if o.startswith("swave="): self.swave = int(o[6:])
            if o.startswith("quota="): self.quota = int(o[6:])
            if o.startswith("pre="): self.PRE = int(o[4:])
            if o.startswith("tg="): self.TG = int(o[3:])
            if o.startswith("side0="): self.SIDE0 = int(o[6:])
            if o.startswith("tp="): self.TP = int(o[3:])
            if o.startswith("q0="): self.Q0 = int(o[3:])
            if o.startswith("q1="): self.Q1 = int(o[3:])
            if o.startswith("lm0="): self.LM0 = int(o[4:])
            if o.startswith("back="): self.BACK = int(o[5:])
            if o.startswith("stop="): self.stop_after = o[5:]

    def srd(self, base, kofs, size):
        self.a(f"s_load_dwordx2 s[{base}:{base+1}], s[0:1], {kofs}")
        self.post_srd.append((base, size))
    def srd_fin(self):
        for base, size in self.post_srd:
            self.a(f"s_mov_b32 s{base+2}, {size}\ns_mov_b32 s{base+3}, 0x20000")
        self.post_srd = []
    def stamp(self, idx):
        if self.stamps and self.in_main and "bst" in self.opts and idx != 0: return
        if self.stamps:
            self.a(f"s_memrealtime s[{72+2*idx}:{73+2*idx}]")
            if idx == 0: self.a("s_memtime s[96:97]")
    def fin_stamps(self, n, wave=0, slot=0):
        if not self.stamps: return
        a = self.a
        L = a.label("nostamp")
        a("s_memtime s[98:99]")
        a("s_waitcnt lgkmcnt(0)")
        a(f"s_cmp_lg_u32 s16, {wave}\ns_cbranch_scc1 {L}")
        a(f"s_lshl_b32 s29, s2, 8\ns_add_u32 s29, s29, {WS_DBG + 128*slot}\nv_mov_b32 v4, s29\ns_mov_b64 exec, 1")
        for i in range(n):
            a(f"v_mov_b32 v6, s{72+2*i}\nv_mov_b32 v7, s{73+2*i}\nbuffer_store_dwordx2 v[6:7], v4, s[12:15], 0 offen offset:{8*i}")
        a("s_sub_u32 s98, s98, s96\nv_mov_b32 v6, s98\nv_mov_b32 v7, 0\nbuffer_store_dwordx2 v[6:7], v4, s[12:15], 0 offen offset:120")
        a(f"s_mov_b64 exec, -1\n{L}:")

    def top2_merge(self, a1, a2, b1, b2, mn):
        a = self.a
        a(f"v_min_u32 {mn}, {a1}, {b1}")
        a(f"v_max_u32 {a1}, {a1}, {b1}")
        a(f"v_max3_u32 {a2}, {a2}, {b2}, {mn}")
    def top2_wave(self, a1, a2, b1, b2, mn):
        a = self.a
        for ctrl in ("quad_perm:[1,0,3,2]", "quad_perm:[2,3,0,1]", "row_half_mirror", "row_mirror"):
            a(f"v_mov_b32_dpp {b1}, {a1} {ctrl} row_mask:0xf bank_mask:0xf")
            a(f"v_mov_b32_dpp {b2}, {a2} {ctrl} row_mask:0xf bank_mask:0xf")
            self.top2_merge(a1, a2, b1, b2, mn)
        for sw in ("v_permlane16_swap_b32", "v_permlane32_swap_b32"):
            a(f"v_mov_b32 {b1}, {a1}\nv_mov_b32 {b2}, {a2}")
            a(f"{sw} {a1}, {b1}\n{sw} {a2}, {b2}")
            self.top2_merge(a1, a2, b1, b2, mn)
    def sum_wave_lines(self, regs, tmps):
        out = []
        for ctrl in ("quad_perm:[1,0,3,2]", "quad_perm:[2,3,0,1]", "row_half_mirror", "row_mirror"):
            for r in regs: out.append(f"v_add_f32_dpp {r}, {r}, {r} {ctrl} row_mask:0xf bank_mask:0xf")
        for sw in ("v_permlane16_swap_b32", "v_permlane32_swap_b32"):
            for r, t in zip(regs, tmps): out.append(f"v_mov_b32 {t}, {r}")
            for r, t in zip(regs, tmps): out.append(f"{sw} {r}, {t}")
            for r, t in zip(regs, tmps): out.append(f"v_add_f32 {r}, {r}, {t}")
        return out
    @staticmethod
    def bf16r(dst, src):
        return [f"v_cvt_pk_bf16_f32 {dst}, {src}, {src}", f"v_lshlrev_b32 {dst}, 16, {dst}"]
    @staticmethod
    def key_lines(rf, row, dst, t1, t2):
        return [f"v_cvt_pk_bf16_f32 {dst}, {rf}, {rf}", f"v_and_b32 {dst}, 0xffff, {dst}",
                f"v_or_b32 {t1}, 0x8000, {dst}", f"v_xor_b32 {t2}, 0xffff, {dst}",
                f"v_cmp_lt_u32 vcc, 0x7fff, {dst}\nv_cndmask_b32 {dst}, {t1}, {t2}, vcc",
                f"v_mov_b32 {t1}, 0",
                f"v_cmp_u_f32 vcc, {rf}, {rf}\nv_cndmask_b32 {dst}, {dst}, {t1}, vcc",
                f"v_sub_u32 {t1}, 0xfff, {row}", f"v_lshl_or_b32 {dst}, {dst}, 16, {t1}"]
    def guard(self, L):
        self.a(f"s_add_u32 s100, s100, 1\ns_bitcmp1_b32 s100, 21\ns_cbranch_scc0 {L}")
    def lds_spin(self, vaddr, vtmp, stmp, cmp_, val, off=0):
        a = self.a
        L = a.label("spin")
        a(f"{L}:\nds_read_b32 {vtmp}, {vaddr} offset:{off}\ns_waitcnt lgkmcnt(0)")
        Lo = a.label("spino")
        a(f"v_readfirstlane_b32 {stmp}, {vtmp}\ns_cmp_{cmp_}_u32 {stmp}, {val}\ns_cbranch_scc1 {Lo}")
        self.guard(L)
        a(f"{Lo}:")

    def build(self):
        a = self.a
        a.raw(f"; @launch grid=(256,1,1) block=(704,1,1) lds={LDS_BYTES}")
        a.raw('.amdgcn_target "amdgcn-amd-amdhsa--gfx950"')
        a.raw(".text")
        a.raw(f".globl {KNAME}")
        a.raw(".p2align 8")
        a.raw(f".type {KNAME},@function")
        a.raw(f"{KNAME}:")
        self.post_srd = []
        a("s_cmp_ge_u32 s2, 256\ns_cbranch_scc1 L_end")
        self.srd(4, 0, 2621440)
        self.srd(8, 8, 2457600)
        self.srd(12, 80, WS_SIZE)
        self.srd(36, 32, 1280)
        a("v_and_b32 v1, 63, v0\nv_lshrrev_b32 v2, 6, v0\ns_mov_b32 s100, 0")
        a("s_and_b32 s17, s2, 7\ns_lshr_b32 s18, s2, 3")
        a("v_readfirstlane_b32 s16, v2")
        a("s_and_b32 s46, s17, 1\ns_lshr_b32 s47, s17, 1\ns_lshr_b32 s48, s18, 3\ns_and_b32 s20, s18, 7")
        a("s_lshl_b32 s19, s47, 2\ns_add_u32 s19, s19, s48")
        self.srd_fin()
        a("s_cmp_eq_u32 s16, 10\ns_cbranch_scc1 L_aux")
        a("s_cmp_ge_u32 s16, 8\ns_cbranch_scc1 L_loader")
        self.in_main = True
        self.phase_a()
        self.in_main = False
        a("L_end:\ns_endpgm")
        self.loader()
        self.aux()
        a.raw(".section .rodata,\"a\"\n.p2align 6")
        a.raw(f".amdhsa_kernel {KNAME}")
        a.raw("  .amdhsa_next_free_vgpr 168\n  .amdhsa_next_free_sgpr 102\n  .amdhsa_accum_offset 168")
        a.raw("  .amdhsa_group_segment_fixed_size 0\n  .amdhsa_kernarg_size 88\n  .amdhsa_user_sgpr_count 2")
        a.raw("  .amdhsa_user_sgpr_kernarg_segment_ptr 1\n  .amdhsa_system_sgpr_workgroup_id_x 1")
        a.raw("  .amdhsa_float_denorm_mode_32 3\n  .amdhsa_float_denorm_mode_16_64 3")
        a.raw(".end_amdhsa_kernel")
        return a.finalize()

    NST = 20
    def dma_x(self, m, half):
        self.a(f"s_add_u32 m0, s26, {(m & 3) * 16384 + 1024 * half}\ns_nop 0")
        self.a(f"buffer_load_dwordx4 v{10 if half == 0 else 9}, s[4:7], s58 offen lds")
        if half == 1: self.a("s_add_u32 s58, s58, 128\ns_cmp_eq_u32 s58, 1280\ns_cselect_b32 s58, 0, s58")
        self.vm_seq.append(("X", m))
    def dma_w(self, t):
        self.a(f"s_add_u32 m0, s27, {(t & 7) * 8192}\ns_mov_b64 exec, s[24:25]")
        self.a("buffer_load_dwordx4 v11, s[8:11], s59 offen lds\ns_mov_b64 exec, -1")
        self.a(f"s_add_u32 s59, s59, 122880\ns_cmp_eq_u32 s59, {20*122880}\ns_cselect_b32 s59, 0, s59")
        self.vm_seq.append(("W", t))
    def vm_need(self, needs):
        if not any(op in needs for op in self.vm_seq): return 0
        last = max(i for i, op in enumerate(self.vm_seq) if op in needs)
        return len(self.vm_seq) - 1 - last
    def a_read_list(self, n):
        if "noreads" in self.opts: return []
        t, s = n >> 1, n & 1
        m, s4 = n >> 2, n & 3
        xo = (m & 3) * 16384
        wo = (t & 7) * 8192 + 4096 * s
        fs = 24 + 16 * (n % 3)
        return [f"ds_read_b128 v[{fs}:{fs+3}], v{12+s4} offset:{xo}",
                f"ds_read_b64_tr_b16 v[{fs+8}:{fs+9}], v16 offset:{wo}",
                f"ds_read_b64_tr_b16 v[{fs+10}:{fs+11}], v16 offset:{wo+1024}",
                f"ds_read_b128 v[{fs+4}:{fs+7}], v{12+s4} offset:{xo+4096}",
                f"ds_read_b64_tr_b16 v[{fs+12}:{fs+13}], v17 offset:{wo}",
                f"ds_read_b64_tr_b16 v[{fs+14}:{fs+15}], v17 offset:{wo+1024}"]
    def a_reads(self, n):
        for l in self.a_read_list(n): self.a(l)
    def col_oct(self, gam, dst, t):
        a = self.a
        a(f"s_mul_i32 {t}, {gam}, 26\ns_lshr_b32 {t}, {t}, 8\ns_add_u32 {t}, {t}, s46\ns_mul_i32 {t}, {t}, 40")
        a(f"s_lshl_b32 {dst}, {gam}, 2\ns_add_u32 {dst}, {dst}, {t}")

    def ln_stats_tasks(self):
        pk = "lnpk" in self.opts
        g = []
        X, Wr = 104, 114
        g.append(("wait",))
        g.append("v_lshlrev_b32 v124, 16, v104\nv_readlane_b32 s51, v124, 0\nv_readlane_b32 s52, v124, 32")
        g.append("v_mov_b32 v138, s52\nv_mov_b32 v139, s51\nv_cmp_gt_u32 vcc, 32, v1\nv_cndmask_b32 v138, v138, v139, vcc")
        for i in range(10):
            g += [f"v_lshlrev_b32 v132, 16, v{X+i}", f"v_and_b32 v133, s28, v{X+i}",
                  f"v_lshlrev_b32 v134, 16, v{Wr+i}", f"v_and_b32 v135, s28, v{Wr+i}",
                  "v_sub_f32 v136, v132, v138", "v_sub_f32 v137, v133, v138"]
            if i == 0:
                g += ["v_mul_f32 v128, v132, v134", "v_add_f32 v124, v136, v137", "v_mul_f32 v126, v136, v136", "v_add_f32 v130, v134, v135",
                      "v_fmac_f32 v128, v133, v135", "v_fmac_f32 v126, v137, v137"]
            else:
                g += ["v_fmac_f32 v128, v132, v134", "v_add_f32 v124, v124, v136", "v_fmac_f32 v126, v136, v136", "v_add_f32 v130, v130, v134",
                      "v_fmac_f32 v128, v133, v135", "v_add_f32 v124, v124, v137", "v_fmac_f32 v126, v137, v137", "v_add_f32 v130, v130, v135"]
        regs = ["v124", "v126", "v128", "v130"]; tm = ["v125", "v127", "v129", "v131"]
        for ctrl in ("quad_perm:[1,0,3,2]", "quad_perm:[2,3,0,1]", "row_half_mirror", "row_mirror"):
            for r in regs: g.append(f"v_add_f32_dpp {r}, {r}, {r} {ctrl} row_mask:0xf bank_mask:0xf")
        for r, t in zip(regs, tm): g.append(f"v_mov_b32 {t}, {r}")
        for r, t in zip(regs, tm): g.append(f"v_permlane16_swap_b32 {r}, {t}")
        for r, t in zip(regs, tm): g.append(f"v_add_f32 {r}, {r}, {t}")
        g += ["v_mul_f32 v124, s44, v124", "v_mul_f32 v132, v124, v124", "v_fma_f32 v126, v126, s44, -v132", "v_max_f32 v126, 0, v126",
              "v_add_f32 v124, v138, v124"]
        g += self.bf16r("v124", "v124") + self.bf16r("v126", "v126") + ["v_add_f32 v126, s45, v126"] + self.bf16r("v126", "v126")
        g += ["v_sqrt_f32 v126, v126"] + self.bf16r("v126", "v126") + ["v_rcp_f32 v132, v126"]
        g += ["v_fma_f32 v128, -v124, v130, v128", "v_mul_f32 v128, v128, v132"]
        g += self.key_lines("v128", "v20", "v141", "v134", "v135")
        g += ["v_lshrrev_b32 v140, 16, v124", "v_or_b32 v140, v140, v126"]
        g.append("s_mov_b32 exec_lo, 1\ns_mov_b32 exec_hi, 1\nds_write_b64 v21, v[140:141]\ns_mov_b64 exec, -1\ns_waitcnt lgkmcnt(0)")
        g.append(("mark",))
        return g

    def ln_wave(self):
        a = self.a
        a("L_ln:")
        a("s_sub_u32 s21, s16, 4")
        a("v_and_b32 v2, 31, v1\nv_lshrrev_b32 v3, 5, v1")
        a("s_lshl_b32 s23, s46, 3\ns_add_u32 s23, s23, s20\ns_lshl_b32 s23, s23, 3\ns_lshl_b32 s29, s21, 1\ns_add_u32 s23, s23, s29")
        a("s_lshl_b32 s29, s19, 7\ns_add_u32 s23, s23, s29\nv_add_u32 v20, s23, v3")
        a("v_mul_u32_u24 v4, 1280, v20\nv_lshl_add_u32 v4, v2, 3, v4\nv_lshlrev_b32 v5, 3, v2")
        a(f"s_lshl_b32 s29, s21, 4\ns_add_u32 s29, s29, {L_OWN}\nv_lshl_add_u32 v21, v3, 3, s29")
        a("s_lshr_b32 s29, s21, 1\ns_lshl_b32 s29, s29, 13\ns_and_b32 s30, s21, 1\ns_lshl_b32 s30, s30, 12\ns_add_u32 s29, s29, s30\ns_add_u32 s29, s29, 65536")
        a("v_lshrrev_b32 v8, 4, v1\nv_lshlrev_b32 v9, 2, v8\nv_and_b32 v10, 15, v1\nv_xor_b32 v9, v9, v10\nv_lshlrev_b32 v9, 4, v9")
        a("v_lshl_add_u32 v9, v8, 8, v9\nv_add_u32 v16, s29, v9")
        a(f"s_mov_b32 s28, 0xffff0000\ns_mov_b32 s44, {f32hex(1.0/640.0)}\ns_mov_b32 s45, {f32hex(1e-5)}\ns_waitcnt lgkmcnt(0)")
        tasks = self.ln_stats_tasks()
        a("s_barrier")
        for i in range(5): a(f"buffer_load_dwordx2 v[{104+2*i}:{105+2*i}], v4, s[4:7], 0 offen offset:{256*i}")
        for i in range(5): a(f"buffer_load_dwordx2 v[{114+2*i}:{115+2*i}], v5, s[36:39], 0 offen offset:{256*i}")
        pk = "lnpk" in self.opts
        for m in range(10):
            if m >= 1: a("s_barrier")
            if "noside" in self.opts:
                self.b_stats = 1; continue
            wo = ((2 * m) & 7) * 8192
            for i in range(4): a(f"ds_read_b128 v[{48+4*i}:{51+4*i}], v16 offset:{wo + 1024*i}")
            for i in range(4):
                a(f"s_waitcnt lgkmcnt({3-i})")
                for d in range(4):
                    src = 48 + 4 * i + d; acc = 72 + 2 * d; t = 64 + 2 * (d & 1)
                    if m == 0 and i == 0:
                        a(f"v_lshlrev_b32 v{acc}, 16, v{src}\nv_and_b32 v{acc+1}, s28, v{src}")
                    elif pk:
                        a(f"v_lshlrev_b32 v{t}, 16, v{src}\nv_and_b32 v{t+1}, s28, v{src}\nv_pk_add_f32 v[{acc}:{acc+1}], v[{acc}:{acc+1}], v[{t}:{t+1}]")
                    else:
                        a(f"v_lshlrev_b32 v{t}, 16, v{src}\nv_and_b32 v{t+1}, s28, v{src}\nv_add_f32 v{acc}, v{acc}, v{t}\nv_add_f32 v{acc+1}, v{acc+1}, v{t+1}")
            q = self.Q1 if m >= self.LM0 else 0
            while tasks and q > 0:
                it = tasks.pop(0)
                if isinstance(it, tuple):
                    if it[0] == "mark": self.b_stats = m
                    else: a("s_waitcnt vmcnt(0)")
                else: a(it); q -= it.count("\n") + 1
        if "noside" not in self.opts:
            assert not tasks
            for p in range(4): a(f"v_permlane32_swap_b32 v{72+2*p}, v{73+2*p}")
            for p in range(4): a(f"v_add_f32 v{72+2*p}, v{72+2*p}, v{73+2*p}")
            a("v_permlane16_swap_b32 v72, v74\nv_permlane16_swap_b32 v76, v78")
            a("v_add_f32 v72, v72, v74\nv_add_f32 v76, v76, v78")
            self.cs_tail()
        a("s_waitcnt lgkmcnt(0)")
        a("s_branch L_a_bE1")

    def cs_tail(self):
        a = self.a
        a("v_and_b32 v7, 15, v1\nv_lshlrev_b32 v7, 3, v7\nv_bfe_u32 v8, v1, 4, 1\nv_lshl_add_u32 v7, v8, 1, v7\nv_add_u32 v7, v7, v3")
        a(f"s_lshl_b32 s29, s21, 9\ns_add_u32 s29, s29, {L_CSW}\nv_lshl_add_u32 v7, v7, 2, s29")
        a("ds_write_b32 v7, v72\nds_write_b32 v7, v76 offset:16")

    def phase_a(self):
        a = self.a
        a("; ---- phase A ----")
        if self.stop_after is None:
            a("s_and_b32 s62, s18, 15\ns_lshl_b32 s29, s46, 4\ns_add_u32 s62, s62, s29\ns_lshr_b32 s63, s18, 4\ns_lshl_b32 s29, s47, 1\ns_add_u32 s63, s63, s29")
            a("s_lshl_b32 s34, s63, 8\ns_lshl_b32 s35, s16, 5\ns_add_u32 s34, s34, s35")
            a("v_and_b32 v2, 31, v1\nv_lshrrev_b32 v3, 5, v1\nv_add_u32 v5, s34, v2\nv_lshlrev_b32 v5, 3, v5\nv_lshl_add_u32 v5, v3, 14, v5")
            a(f"s_mul_i32 s35, s62, {5*16384}\ns_add_u32 s35, s35, {WS_O}\nv_mov_b32 v6, -1\nv_mov_b32 v7, -1\ns_waitcnt lgkmcnt(0)")
            a("buffer_store_dwordx2 v[6:7], v5, s[12:15], s35 offen sc1")
            a("s_add_u32 s35, s35, 32768\nbuffer_store_dwordx2 v[6:7], v5, s[12:15], s35 offen sc1")
            a("s_add_u32 s35, s35, 32768\ns_mov_b32 exec_hi, 0\nbuffer_store_dwordx2 v[6:7], v5, s[12:15], s35 offen sc1\ns_mov_b64 exec, -1")
        a("s_cmp_ge_u32 s16, 4\ns_cbranch_scc1 L_ln")
        a("s_and_b32 s21, s16, 1\ns_lshr_b32 s22, s16, 1")
        self.stamp(0)
        a("v_and_b32 v2, 31, v1\nv_lshrrev_b32 v3, 5, v1")
        a("s_lshl_b32 s29, s22, 6\nv_add_u32 v4, s29, v2\nv_lshlrev_b32 v4, 7, v4")
        a("v_bfe_u32 v5, v1, 1, 3\nv_xor_b32 v8, v3, v5")
        for s4 in range(4):
            a(f"v_xor_b32 v7, {2*s4}, v8\nv_lshl_add_u32 v{12+s4}, v7, 4, v4")
        a("v_bfe_u32 v5, v1, 2, 2")
        a("v_lshl_add_u32 v8, v3, 3, v5\nv_lshlrev_b32 v8, 8, v8")
        a("v_bfe_u32 v9, v1, 4, 1\nv_lshlrev_b32 v9, 5, v9\nv_and_b32 v10, 3, v1\nv_lshlrev_b32 v10, 3, v10\nv_add3_u32 v8, v8, v9, v10")
        a("s_lshl_b32 s29, s21, 1")
        for ntl in range(2):
            a(f"s_add_u32 s30, s29, {ntl}\nv_xor_b32 v7, s30, v5\nv_lshl_add_u32 v7, v7, 6, v8\nv_add_u32 v{16+ntl}, 0x10000, v7")
        self.stamp(4)
        a("s_barrier")
        self.stamp(1)
        self.a_reads(0); self.a_reads(1)
        N = 40
        ACC = lambda ntl, stl: 72 + 32 * ntl + 16 * stl
        for n in range(N):
            m, i4 = n >> 2, n & 3
            fs = 24 + 16 * (n % 3)
            CL = self.stamps and "lloop" in self.opts and m in (4, 5) and i4 == 2
            if CL: self.stamp(5 + 2 * (m - 4))
            if i4 == 2 and m + 1 < 10: a("s_barrier")
            if CL: self.stamp(6 + 2 * (m - 4))
            if self.stamps and "bst" in self.opts and i4 == 2 and m < 9: a(f"s_memrealtime s[{72+2*(m+1)}:{73+2*(m+1)}]")
            a(f"s_waitcnt lgkmcnt({6 if n + 1 < N else 0})")
            rl = self.a_read_list(n + 2) if n + 2 < N else []
            nomf = "nomfma" in self.opts and n > 0
            k = 0
            for ntl in range(2):
                for stl in range(2):
                    A = ACC(ntl, stl)
                    c = "0" if n == 0 else f"v[{A}:{A+15}]"
                    if not nomf: a(f"v_mfma_f32_32x32x16_bf16 v[{A}:{A+15}], v[{fs+8+4*ntl}:{fs+11+4*ntl}], v[{fs+4*stl}:{fs+4*stl+3}], {c}")
                    for l in rl[2*k:2*k+2]: a(l)
                    k += 1
        self.stamp(2)
        a("L_a_bE1:")
        a("s_barrier")
        if "est" in self.opts: self.stamp(5)
        a("s_cmp_ge_u32 s16, 4\ns_cbranch_scc1 L_a_e2")
        a(f"s_lshl_b32 s29, s22, 9\ns_add_u32 s29, s29, {L_STAT}")
        a("v_lshl_add_u32 v4, v2, 3, s29")
        a("ds_read_b64 v[20:21], v4\nds_read_b64 v[22:23], v4 offset:256")
        a(f"s_lshl_b32 s29, s21, 8\ns_add_u32 s29, s29, {L_CSW}\nv_lshl_add_u32 v4, v2, 2, s29")
        for p in range(4):
            a(f"ds_read_b32 v{44+2*p}, v4 offset:{512*p}\nds_read_b32 v{45+2*p}, v4 offset:{512*p+128}")
        a(f"v_mov_b32 v5, {L_FLG}\nds_read_b32 v6, v5")
        a("s_lshl_b32 s33, s19, 7\ns_lshl_b32 s34, s22, 6\ns_add_u32 s33, s33, s34")
        a("v_add_u32 v4, s33, v2\nv_lshlrev_b32 v4, 4, v4\nv_lshl_add_u32 v4, v3, 15, v4")
        for r in (29, 30, 31, 33, 34, 35, 37, 38, 39, 41, 42, 43): a(f"v_mov_b32 v{r}, 0")
        a("v_cmp_gt_u32 vcc, 32, v1\nv_mov_b32 v7, 0")
        a("s_waitcnt lgkmcnt(0)")
        a("v_readfirstlane_b32 s41, v6")
        a("v_add_f32 v24, v44, v46\nv_add_f32 v25, v45, v47\nv_add_f32 v48, v48, v50\nv_add_f32 v49, v49, v51\nv_add_f32 v24, v24, v48\nv_add_f32 v25, v25, v49")
        for ntl in range(2):
            c = 24 + ntl; d = 28 + 4 * ntl
            a(f"v_cvt_pk_bf16_f32 v8, v{c}, v{c}\nv_lshlrev_b32 v8, 16, v8\nv_sub_f32 v8, v{c}, v8\nv_cvt_pk_bf16_f32 v8, v{c}, v8\nv_cndmask_b32 v{d}, v7, v8, vcc")
        for stl in range(2):
            mm = 20 + 2 * stl; d = 36 + 4 * stl
            a(f"v_sub_f32 v8, 0, v{mm}\nv_cvt_pk_bf16_f32 v8, v8, v8\nv_cndmask_b32 v{d}, v7, v8, vcc")
        for ntl in range(2):
            for stl in range(2):
                A = ACC(ntl, stl)
                a(f"v_mfma_f32_32x32x16_bf16 v[{A}:{A+15}], v[{28+4*ntl}:{31+4*ntl}], v[{36+4*stl}:{39+4*stl}], v[{A}:{A+15}]")
        for ntl in range(2):
            Ls = a.label("askip")
            a(f"s_lshl_b32 s29, s20, 2\ns_lshl_b32 s30, s21, 1\ns_add_u32 s29, s29, s30\ns_add_u32 s29, s29, {ntl}")
            a(f"s_cmp_ge_u32 s29, 30\ns_cbranch_scc1 {Ls}")
            self.col_oct("s29", "s31", "s32")
            a(f"s_lshl_b32 s31, s31, 15\ns_add_u32 s31, s31, {WS_QKV}")
            a(f"s_cmp_lt_u32 s29, 10\ns_cselect_b32 s40, {f32hex(QSCALE)}, 1.0")
            a("v_mul_f32 v56, s40, v21\nv_mul_f32 v58, s40, v23\nv_mov_b32 v57, v56\nv_mov_b32 v59, v58")
            for stl in range(2):
                A = ACC(ntl, stl); rr = 56 + 2 * stl
                for p in range(8): a(f"v_pk_mul_f32 v[{A+2*p}:{A+2*p+1}], v[{A+2*p}:{A+2*p+1}], v[{rr}:{rr+1}]")
                d = 136 + 16 * ntl + 8 * stl
                for p in range(8): a(f"v_cvt_pk_bf16_f32 v{d+p}, v{A+2*p}, v{A+2*p+1}")
                for pr in range(2):
                    b0 = d + 4 * pr
                    a(f"v_permlane32_swap_b32 v{b0}, v{b0+2}\nv_permlane32_swap_b32 v{b0+1}, v{b0+3}")
            Lf = a.label("afast"); Ld = a.label("adone")
            a(f"s_cmp_eq_u32 s41, 1\ns_cbranch_scc1 {Lf}")
            for fast in (0, 1):
                if fast: a(f"{Lf}:")
                for pr in range(2):
                    a(f"s_add_u32 s32, s31, {pr*65536}")
                    for stl in range(2):
                        b0 = 136 + 16 * ntl + 8 * stl + 4 * pr
                        a(f"buffer_store_dwordx4 v[{b0}:{b0+3}], v4, s[12:15], s32 offen offset:{512*stl}" + ("" if fast else " sc1"))
                if not fast: a(f"s_branch {Ld}")
            a(f"{Ld}:\n{Ls}:")
        if "est" in self.opts: self.stamp(6)
        a("s_waitcnt vmcnt(0)")
        if "est" in self.opts: self.stamp(7)
        a(f"v_mov_b32 v5, {L_FLG}\nv_mov_b32 v6, 1\ns_mov_b64 exec, 1\nds_add_rtn_u32 v7, v5, v6 offset:44\nds_read_b32 v8, v5 offset:4\ns_waitcnt lgkmcnt(0)")
        a("v_readfirstlane_b32 s35, v7\ns_cmp_lg_u32 s35, 3\ns_cbranch_scc1 L_a_nf")
        a(f"s_lshl_b32 s29, s46, 7\ns_lshl_b32 s30, s19, 3\ns_add_u32 s29, s29, s30\ns_add_u32 s29, s29, s20\ns_lshl_b32 s29, s29, 6\ns_add_u32 s29, s29, {WS_F1}\nv_mov_b32 v6, s29")
        a("s_cmp_eq_u32 s41, 1\ns_cbranch_scc1 L_a_f1f")
        a("buffer_store_dword v8, v6, s[12:15], 0 offen sc1\ns_branch L_a_nf")
        a("L_a_f1f:\nbuffer_store_dword v8, v6, s[12:15], 0 offen")
        a("L_a_nf:\ns_mov_b64 exec, -1")
        a("L_a_e2:")
        self.stamp(3)
        if self.stop_after == "a":
            self.fin_stamps(10 if "bst" in self.opts else (9 if "lloop" in self.opts else (8 if "est" in self.opts else 5)), wave=self.swave)
            a("s_branch L_end")
            self.ln_wave()
            return
        self.phase_b()
        if self.stop_after == "b":
            self.fin_stamps(8, wave=self.swave)
            a("s_branch L_end")
            self.ln_wave()
            return
        self.phase_c()
        self.fin_stamps(10, wave=self.swave)
        a("s_branch L_end")
        self.ln_wave()

    def lg_reset(self): self.lg_seq = []
    def lg_issue(self, tag, n): self.lg_seq += [tag] * n
    def lg_wait(self, tag):
        last = max(i for i, t in enumerate(self.lg_seq) if t == tag)
        self.a(f"s_waitcnt lgkmcnt({min(15, len(self.lg_seq) - 1 - last)})")

    def loader(self):
        a = self.a
        a("L_loader:")
        LS = self.stamps and "lstamp" in self.opts
        if LS: self.stamp(0)
        a("s_setprio 2")
        a("s_sub_u32 s21, s16, 8")
        a("v_lshrrev_b32 v3, 4, v1")
        self.post_srd = []
        self.srd(52, 16, 819200)
        a("s_lshl_b32 s29, s21, 4\ns_add_u32 s29, s29, 40\ns_load_dwordx2 s[56:57], s[0:1], s29\ns_load_dwordx2 s[92:93], s[0:1], 48")
        a("s_mov_b32 s58, 1966080\ns_mov_b32 s59, 0x20000\ns_mov_b32 s94, 1966080\ns_mov_b32 s95, 0x20000")
        a("s_cmp_eq_u32 s21, 1\ns_cbranch_scc1 L_l_w")
        a("v_lshrrev_b32 v2, 3, v1\nv_and_b32 v8, 7, v1\nv_xor_b32 v8, v8, v3")
        a("s_lshl_b32 s23, s19, 7\nv_add_u32 v9, s23, v2\nv_mul_u32_u24 v9, 1280, v9\nv_lshl_add_u32 v10, v8, 4, v9")
        a("v_xor_b32 v8, 4, v8\nv_lshl_add_u32 v11, v8, 4, v9")
        a("s_mov_b64 s[24:25], -1\ns_mov_b32 s26, 0\ns_movk_i32 s27, 10240\ns_movk_i32 s31, 128\ns_mov_b32 s32, 0")
        a("s_branch L_l_go")
        a("L_l_w:")
        a("v_and_b32 v8, 15, v1\nv_lshlrev_b32 v17, 2, v3\nv_xor_b32 v17, v8, v17")
        a("s_lshl_b32 s29, s20, 2\ns_mul_i32 s31, s46, 40")
        a("v_lshrrev_b32 v19, 2, v17\nv_add_u32 v19, s29, v19\nv_cmp_gt_u32 s[24:25], 30, v19")
        a("v_mul_u32_u24 v18, 26, v19\nv_lshrrev_b32 v18, 8, v18\nv_mul_u32_u24 v18, 40, v18")
        a("v_lshl_add_u32 v18, v19, 2, v18\nv_and_b32 v19, 3, v17\nv_add3_u32 v18, v18, v19, s31\nv_lshlrev_b32 v18, 4, v18")
        a("v_mul_u32_u24 v19, 3840, v3\nv_add_u32 v10, v18, v19\nv_mov_b32 v11, v10")
        a("s_mov_b32 s26, 65536\ns_movk_i32 s27, 15360\ns_mov_b32 s31, 245760\ns_mov_b32 s32, 0")
        a("L_l_go:")
        a("s_waitcnt lgkmcnt(0)")
        self.srd_fin()
        def granule(role, m):
            srd = "s[4:7]" if role == 0 else "s[8:11]"
            base = ((m & 3) * 16384) if role == 0 else (65536 + ((2 * m) & 7) * 8192)
            gs = 128 if role == 0 else 245760
            step = 10240 if role == 0 else 15360
            for i in range(16):
                a(f"s_mov_b32 m0, {base + 1024*i}\ns_add_u32 s30, s40, {step*i}")
                a(f"buffer_load_dwordx4 v{10 + (i & 1)}, {srd}, s30 offen lds")
            a(f"s_add_u32 s40, s40, {gs}\ns_cmp_eq_u32 s40, {10*gs}\ns_cselect_b32 s40, 0, s40")
        rh_, rr_ = 0, 0
        for o in self.opts:
            if o.startswith("roth="): rh_ = int(o[5:])
            if o.startswith("rotr="): rr_ = int(o[5:])
        rc, rb = 1, 3
        for o in self.opts:
            if o.startswith("rotc="): rc = int(o[5:])
            if o.startswith("rotb="): rb = int(o[5:])
        rbm = 3
        for o in self.opts:
            if o.startswith("rotbm="): rbm = int(o[6:])
        rcm = 7
        for o in self.opts:
            if o.startswith("rotcm="): rcm = int(o[6:])
        if "norot" not in self.opts:
            a(f"s_and_b32 s41, s20, {rcm}\ns_mul_i32 s40, s41, {rc}\ns_and_b32 s41, s48, {rbm}\ns_mul_i32 s41, s41, {rb}\ns_add_u32 s40, s40, s41")
            a(f"s_mul_i32 s41, s46, {rh_}\ns_add_u32 s40, s40, s41\ns_mul_i32 s41, s47, {rr_}\ns_add_u32 s40, s40, s41")
            a("s_mul_i32 s41, s40, 205\ns_lshr_b32 s41, s41, 11\ns_mul_i32 s41, s41, 10\ns_sub_u32 s40, s40, s41")
        else:
            a("s_mov_b32 s40, 0")
        a("s_movk_i32 s42, 128\ns_cmp_eq_u32 s21, 0\ns_cselect_b32 s41, s42, 245760\ns_mul_i32 s40, s40, s41")
        for role in range(2):
            a(f"L_l_r{role}:") if role == 1 else a("s_cmp_eq_u32 s21, 1\ns_cbranch_scc1 L_l_r1")
            a("s_mov_b64 exec, s[24:25]")
            if "k0late" in self.opts:
                for m in range(3): granule(role, m)
                a("s_waitcnt vmcnt(32)\ns_barrier")
            else:
                if LS: self.stamp(1)
                granule(role, 0)
                if LS: self.stamp(2)
                granule(role, 1)
                if LS: self.stamp(3)
                a("s_waitcnt vmcnt(16)")
                if LS: self.stamp(4)
                a("s_barrier")
                granule(role, 2)
                if LS: self.stamp(5)
            npf = 0
            for m in range(9):
                extra = npf if m >= 7 else 0
                LL = self.stamps and "lloop" in self.opts
                if LL and m in (4, 5): self.stamp(0 + 4 * (m - 4) + 0)
                a(f"s_waitcnt vmcnt({(16 if m < 8 else 0) + extra})")
                if LL and m in (4, 5): self.stamp(0 + 4 * (m - 4) + 1)
                a("s_barrier")
                if LL and m in (4, 5): self.stamp(0 + 4 * (m - 4) + 2)
                if m + 3 < 10: granule(role, m + 3)
                if LL and m in (4, 5): self.stamp(0 + 4 * (m - 4) + 3)
                if m == 6 and npf:
                    a("s_mov_b64 exec, -1")
                    self.l2pf(role)
            a("s_mov_b64 exec, -1")
            if self.stop_after is None and "nomoe" not in self.opts and "moelate" not in self.opts: self.moe_dma(role)
            if self.stop_after is None and "wopf" in self.opts:
                a(f"s_mul_i32 s29, s18, 25600\nv_lshlrev_b32 v26, 7, v1\nv_add_u32 v26, s29, v26\ns_mov_b32 s30, {16384*role}\nbuffer_load_dword v27, v26, s[52:55], s30 offen")
                a(f"s_mov_b32 s30, {16384*role + 8192}\n" + ("s_mov_b64 exec, 0xff\n" if role == 1 else "") + "buffer_load_dword v27, v26, s[52:55], s30 offen\ns_mov_b64 exec, -1")
            if role == 0: a("s_branch L_l_j")
        a("L_l_j:")
        if LS:
            self.stamp(6); self.stamp(7)
            self.fin_stamps(8, wave=8, slot=1)
        if self.stamps and "lloop" in self.opts:
            self.fin_stamps(8, wave=8 + ("lw1" in self.opts), slot=1)
        a("s_barrier")
        if self.stop_after == "a":
            a("s_endpgm"); return
        a("s_and_b32 s62, s18, 15\ns_lshl_b32 s29, s46, 4\ns_add_u32 s62, s62, s29")
        a("s_lshr_b32 s63, s18, 4\ns_lshl_b32 s29, s47, 1\ns_add_u32 s63, s63, s29")
        a("s_and_b32 s64, s62, 1\ns_mul_i32 s65, s62, 5\ns_lshr_b32 s65, s65, 1")
        a(f"s_sub_u32 s36, 1, s21\ns_mul_i32 s32, s36, 80\ns_add_u32 s32, s32, 80\ns_add_u32 s32, s32, s65\ns_lshl_b32 s32, s32, 15\ns_add_u32 s32, s32, {WS_QKV}")
        a(f"s_mul_i32 s33, s36, {LB_V}")
        a("s_lshl_b32 s31, s63, 8\ns_sub_u32 s31, s31, 256\ns_lshl_b32 s31, s31, 4\ns_add_u32 s32, s32, s31")
        a("v_lshlrev_b32 v4, 4, v1\nv_add_u32 v7, s33, v4")
        a(f"s_sub_u32 s35, 1, s64\ns_mul_i32 s35, s35, {2*PLS+8}\nv_add_u32 v8, s35, v7")
        a("v_mov_b32 v20, 0x3f803f80\ns_cmp_eq_u32 s36, 0\ns_cselect_b32 s35, 0, 0x3f803f80\nv_mov_b32 v21, s35")
        a("v_mov_b32 v22, 0x3f803f80\ns_mov_b32 s34, 0x3f803f80\ns_cselect_b32 s35, 0xf149, s34\nv_mov_b32 v23, s35")
        a("v_mov_b32 v24, 0\nv_mov_b32 v25, 0\nv_mov_b32 v26, 0\nv_mov_b32 v27, 0")
        a(f"v_mov_b32 v5, {L_FLG}")
        a("s_cmp_eq_u32 s21, 0\ns_cbranch_scc1 L_l_b0")
        a(f"s_lshl_b32 s29, s46, 7\ns_lshl_b32 s30, s63, 4\ns_add_u32 s29, s29, s30\ns_sub_u32 s29, s29, 16\ns_lshl_b32 s29, s29, 6\ns_add_u32 s29, s29, {WS_F1}")
        a("v_and_b32 v6, 31, v1\ns_cmp_eq_u32 s63, 0\ns_cselect_b32 s30, 16, 0\nv_max_u32 v6, s30, v6\nv_lshlrev_b32 v6, 6, v6\nds_read_b32 v9, v5 offset:4\ns_waitcnt lgkmcnt(0)")
        a("L_x_p1:\nbuffer_load_dword v10, v6, s[12:15], s29 offen sc1\ns_waitcnt vmcnt(0)")
        a("v_cmp_ne_u32 vcc, v9, v10\ns_cbranch_vccz L_x_p1_o\ns_add_u32 s100, s100, 1\ns_bitcmp1_b32 s100, 21\ns_cbranch_scc0 L_x_p1\nL_x_p1_o:")
        a("v_mov_b32 v6, 1\ns_mov_b64 exec, 1\nds_write_b32 v5, v6 offset:48")
        if "nomoe" not in self.opts and "moelate" not in self.opts and self.stop_after is None: a("ds_add_u32 v5, v6 offset:36")
        a("s_mov_b64 exec, -1")
        a("s_branch L_l_kv")
        a("L_l_b0:")
        if "nomoe" not in self.opts and "moelate" not in self.opts and self.stop_after is None:
            a("s_waitcnt vmcnt(0)\nv_mov_b32 v6, 1\ns_mov_b64 exec, 1\nds_add_u32 v5, v6 offset:36\ns_mov_b64 exec, -1")
        self.lds_spin("v5", "v6", "s35", "ge", 1, off=48)
        a("L_l_kv:")
        a("s_cmp_eq_u32 s63, 0\ns_cbranch_scc1 L_l_c0")
        for blk in range(4):
            for p in range(3):
                a(f"s_add_u32 m0, s33, {p*PLS + blk*1024}\ns_add_u32 s30, s32, {p*32768 + blk*1024}\nbuffer_load_dwordx4 v4, s[12:15], s30 offen sc1 lds")
        a("s_branch L_l_c1")
        a("L_l_c0:")
        for blk in range(4):
            for p in range(3): a(f"ds_write_b128 v7, v[24:27] offset:{p*PLS + blk*1024}")
        a("L_l_c1:")
        for blk in range(4, 8):
            for p in range(3):
                a(f"s_add_u32 m0, s33, {p*PLS + blk*1024}\ns_add_u32 s30, s32, {p*32768 + blk*1024}\nbuffer_load_dwordx4 v4, s[12:15], s30 offen sc1 lds")
        a("s_cmp_eq_u32 s21, 0\ns_cbranch_scc1 L_l_noq")
        a(f"s_lshl_b32 s35, s65, 15\ns_lshl_b32 s34, s63, 12\ns_add_u32 s35, s35, s34\ns_add_u32 s35, s35, {WS_QKV}")
        for p in range(3):
            for blk in range(4):
                a(f"s_mov_b32 m0, {LQ + p*4096 + blk*1024}\ns_add_u32 s30, s35, {p*32768 + blk*1024}\nbuffer_load_dwordx4 v4, s[12:15], s30 offen sc1 lds")
        a("s_branch L_l_w0")
        a("L_l_noq:")
        a("L_l_w0:")
        a("s_waitcnt vmcnt(0) lgkmcnt(0)")
        a("s_cmp_eq_u32 s63, 0\ns_cbranch_scc1 L_l_p0")
        for blk in range(4): a(f"ds_write_b64 v8, v[20:21] offset:{blk*1024}")
        a("s_branch L_l_p1")
        a("L_l_p0:")
        for blk in range(4): a(f"ds_write_b64 v8, v[22:23] offset:{blk*1024}")
        a("L_l_p1:")
        for blk in range(4, 8): a(f"ds_write_b64 v8, v[20:21] offset:{blk*1024}")
        a("v_mov_b32 v6, 1\ns_waitcnt lgkmcnt(0)\ns_mov_b64 exec, 1\nds_add_u32 v5, v6 offset:8\ns_mov_b64 exec, -1")
        if self.stop_after == "b":
            a("s_endpgm"); return
        if "nomoe" not in self.opts and "moelate" in self.opts:
            a("s_cmp_eq_u32 s21, 0\ns_cbranch_scc0 L_l_mr1")
            self.moe_dma(0)
            a("s_branch L_l_mrd\nL_l_mr1:")
            self.moe_dma(1)
            a("L_l_mrd:")
            a("s_waitcnt vmcnt(0)\nv_mov_b32 v6, 1\ns_mov_b64 exec, 1\nds_add_u32 v5, v6 offset:36\ns_mov_b64 exec, -1")
        self.wo_setup()
        a("s_lshl_b32 s34, s21, 10\ns_mul_i32 s35, s21, 10240")
        for q in range(28):
            a(f"s_add_u32 m0, s34, {LA1 + q*2048}\ns_add_u32 s30, s35, {q*20480}\nbuffer_load_dwordx4 v152, s[52:55], s30 offen lds")
        self.lds_spin("v5", "v6", "s35", "ge", 8, off=40)
        a("s_mul_i32 s35, s21, 40960")
        for q in range(10):
            a(f"s_add_u32 m0, s34, {LBB + q*2048}\ns_add_u32 s30, s35, {q*81920}\nbuffer_load_dwordx4 v153, s[52:55], s30 offen lds")
        a("s_cmp_eq_u32 s21, 1\ns_cbranch_scc1 L_l_poll")
        self.lds_spin("v5", "v6", "s35", "ge", 8, off=12)
        for q in range(12):
            for par in range(2):
                i = 56 + 2 * q + par
                a(f"s_mov_b32 m0, {LA2 + (i-56)*1024}\ns_mov_b32 s30, {i*10240}\nbuffer_load_dwordx4 v{152 if par == 0 else 154}, s[52:55], s30 offen lds")
        a("s_waitcnt vmcnt(0)\nv_mov_b32 v6, 1\ns_mov_b64 exec, 1\nds_add_u32 v5, v6 offset:32\ns_mov_b64 exec, -1\ns_endpgm")
        a("L_l_poll:")
        a("s_waitcnt vmcnt(0)\nv_mov_b32 v6, 1\ns_mov_b64 exec, 1\nds_add_u32 v5, v6 offset:32\ns_mov_b64 exec, -1")
        self.lds_spin("v5", "v6", "s35", "ge", 8, off=12)
        a(f"s_lshl_b32 s29, s17, 14\ns_lshr_b32 s30, s18, 3\ns_lshl_b32 s30, s30, 7\ns_add_u32 s29, s29, s30\ns_add_u32 s29, s29, {WS_F2}")
        a("v_lshrrev_b32 v26, 1, v1\nv_lshlrev_b32 v26, 9, v26\nv_and_b32 v27, 1, v1\nv_lshl_add_u32 v26, v27, 6, v26\nds_read_b32 v6, v5 offset:4\ns_waitcnt lgkmcnt(0)")
        a("L_c_poll:\nbuffer_load_dword v27, v26, s[12:15], s29 offen sc1\ns_waitcnt vmcnt(0)")
        a("v_cmp_ne_u32 vcc, v6, v27\ns_cbranch_vccz L_c_poll_o\ns_add_u32 s100, s100, 1\ns_bitcmp1_b32 s100, 21\ns_cbranch_scc0 L_c_poll\nL_c_poll_o:")
        a("v_mov_b32 v6, 1\ns_mov_b64 exec, 1\nds_write_b32 v5, v6 offset:16\ns_mov_b64 exec, -1")
        a("s_endpgm")

    def moe_dma(self, role):
        a = self.a
        Lx = a.label("mx")
        a(f"s_cmp_ge_u32 s2, 240\ns_cbranch_scc1 {Lx}")
        a("v_bfe_u32 v12, v1, 4, 1\nv_lshlrev_b32 v12, 1, v12\nv_and_b32 v13, 7, v1\nv_xor_b32 v12, v12, v13\nv_lshlrev_b32 v12, 4, v12\nv_xor_b32 v13, 64, v12\nv_lshrrev_b32 v14, 3, v1")
        if role == 0:
            a("s_mul_i32 s29, s2, 171\ns_lshr_b32 s29, s29, 12\ns_mul_i32 s30, s29, 24\ns_sub_u32 s30, s2, s30")
            a(f"s_mul_i32 s29, s29, {64*3072}\ns_lshl_b32 s30, s30, 7\ns_add_u32 s29, s29, s30")
            a("v_mul_u32_u24 v14, 3072, v14\nv_add_u32 v12, v12, v14\nv_add_u32 v13, v13, v14")
            for mat, srd in ((0, "s[56:59]"), (1, "s[92:95]")):
                for i in range(8):
                    a(f"s_mov_b32 m0, {L_AUX + mat*8192 + 1024*i}\ns_add_u32 s30, s29, {i*8*3072}\nbuffer_load_dwordx4 v{12 + (i & 1)}, {srd}, s30 offen lds")
        else:
            a("s_mul_i32 s29, s2, 205\ns_lshr_b32 s29, s29, 11\ns_mul_i32 s30, s29, 10\ns_sub_u32 s30, s2, s30")
            a(f"s_mul_i32 s29, s29, {64*1280}\ns_lshl_b32 s30, s30, 7\ns_add_u32 s29, s29, s30")
            a("v_mul_u32_u24 v14, 1280, v14\nv_add_u32 v12, v12, v14\nv_add_u32 v13, v13, v14")
            for i in range(8):
                a(f"s_mov_b32 m0, {L_AUX + 16384 + 1024*i}\ns_add_u32 s30, s29, {i*8*1280}\nbuffer_load_dwordx4 v{12 + (i & 1)}, s[56:59], s30 offen lds")
        a(f"{Lx}:")

    def wo_setup(self):
        a = self.a
        a("s_and_b32 s67, s18, 7\ns_mul_i32 s69, s67, 160")
        for dst, par in (("v152", "s21"), ("v154", "1")):
            a(f"v_bfe_u32 v19, v1, 4, 1\ns_lshl_b32 s29, {par}, 1\nv_or_b32 v19, s29, v19\nv_lshlrev_b32 v19, 1, v19")
            a(f"v_and_b32 {dst}, 7, v1\nv_xor_b32 {dst}, {dst}, v19\nv_lshlrev_b32 {dst}, 4, {dst}")
            a(f"v_lshrrev_b32 v19, 3, v1\nv_mul_u32_u24 v19, 1280, v19\nv_add3_u32 {dst}, {dst}, v19, s69")
        a("v_lshrrev_b32 v19, 1, v1\nv_bfe_u32 v153, v19, 3, 1\nv_lshlrev_b32 v153, 2, v153\nv_xor_b32 v19, v19, v153\nv_mul_u32_u24 v19, 1280, v19")
        a("v_and_b32 v153, 1, v1\nv_lshlrev_b32 v153, 4, v153\nv_add3_u32 v153, v153, v19, s69\nv_add_u32 v153, 128, v153")

    def phase_b(self):
        a = self.a
        a("; ---- phase B ----")
        a("s_waitcnt vmcnt(0)")
        a("s_and_b32 s62, s18, 15\ns_lshl_b32 s29, s46, 4\ns_add_u32 s62, s62, s29")
        a("s_lshr_b32 s63, s18, 4\ns_lshl_b32 s29, s47, 1\ns_add_u32 s63, s63, s29")
        a("s_and_b32 s64, s62, 1\ns_mul_i32 s65, s62, 5\ns_lshr_b32 s65, s65, 1")
        a("v_and_b32 v2, 31, v1\nv_lshrrev_b32 v3, 5, v1")
        a(f"v_lshlrev_b32 v5, 2, v3\nv_sub_u32 v5, v2, v5\nv_mov_b32 v6, {NEGF}\nv_mov_b32 v7, 0")
        for r in range(16):
            cr = 8 * (r >> 2) + (r & 3)
            a(f"v_cmp_le_i32 vcc, {cr}, v5")
            a(f"v_cndmask_b32 v{108+r}, v6, v7, vcc\nv_cndmask_b32 v{124+r}, v7, v6, vcc")
        a("s_lshl_b32 s29, s16, 9")
        a(f"v_add_u32 v5, s64, v3\nv_mul_u32_u24 v5, {PLS}, v5\nv_lshl_add_u32 v16, v2, 4, v5\nv_add_u32 v16, s29, v16")
        a(f"s_sub_u32 s30, 1, s64\ns_mul_i32 s30, s30, {2*PLS}\ns_add_u32 s30, s30, s29\nv_lshl_add_u32 v17, v2, 4, s30")
        a("v_bfe_u32 v5, v1, 4, 1\nv_and_b32 v6, 3, v1\nv_lshl_add_u32 v5, v5, 2, v6")
        a("v_add_u32 v6, s64, v5")
        a("s_mul_i32 s30, s64, 6\nv_subrev_u32 v7, s30, v6\nv_cmp_eq_u32 vcc, 5, v5\nv_cndmask_b32 v6, v6, v7, vcc")
        a(f"v_lshrrev_b32 v7, 1, v6\nv_mul_u32_u24 v7, {PLS}, v7\nv_and_b32 v6, 1, v6\nv_lshl_add_u32 v7, v6, 3, v7")
        a("v_and_b32 v6, 1, v5\nv_lshlrev_b32 v6, 3, v6\nv_add_u32 v6, 192, v6")
        a("v_cmp_lt_u32 vcc, 5, v5\nv_cndmask_b32 v7, v7, v6, vcc")
        a("v_bfe_u32 v6, v1, 2, 2\nv_lshl_add_u32 v6, v3, 2, v6\nv_lshl_add_u32 v7, v6, 4, v7")
        a(f"s_add_u32 s30, s29, {LB_V}\nv_add_u32 v18, s30, v7")
        a("s_and_b32 s67, s18, 7\ns_lshr_b32 s68, s18, 3\ns_mul_i32 s69, s67, 160")
        a("s_and_b32 s29, s16, 3\ns_lshl_b32 s29, s29, 4\ns_lshl_b32 s30, s17, 8\ns_add_u32 s29, s29, s30\ns_lshl_b32 s30, s68, 6\ns_add_u32 s29, s29, s30")
        a("v_and_b32 v19, 15, v1\nv_add_u32 v163, s29, v19\nv_mul_u32_u24 v162, 1280, v163\nv_lshrrev_b32 v19, 4, v1\nv_lshl_add_u32 v162, v19, 3, v162")
        a("s_lshr_b32 s29, s16, 2\ns_mul_i32 s29, s29, 96\ns_add_u32 s29, s29, s69\nv_add_u32 v162, s29, v162")
        for i in range(3):
            a(f"buffer_load_dwordx2 v[{154+2*i}:{155+2*i}], v162, s[4:7], 0 offen offset:{32*i}")
        a("v_lshlrev_b32 v19, 4, v163\nbuffer_load_dwordx2 v[160:161], v19, s[12:15], 0 offen sc1")
        a("s_lshl_b32 s34, s63, 8\ns_lshl_b32 s35, s16, 5\ns_add_u32 s34, s34, s35")
        a(f"s_lshl_b32 s29, s16, 9\ns_add_u32 s29, s29, {LQ}\nv_add_u32 v5, s64, v3\nv_lshlrev_b32 v5, 12, v5\nv_lshl_add_u32 v5, v2, 4, v5\nv_add_u32 v6, s29, v5")
        a("s_sub_u32 s30, 1, s64\ns_lshl_b32 s30, s30, 13\ns_add_u32 s30, s30, s29\nv_lshl_add_u32 v7, v2, 4, s30")
        a(f"v_mov_b32 v5, {L_FLG}")
        self.stamp(5)
        self.lds_spin("v5", "v19", "s35", "ge", 2, off=8)
        self.stamp(6)
        a("ds_read_b128 v[8:11], v6\nds_read_b128 v[12:15], v7\ns_waitcnt lgkmcnt(0)")
        a("v_mov_b32 v6, 1\ns_mov_b64 exec, 1\nds_add_u32 v5, v6 offset:40\ns_mov_b64 exec, -1")
        a("v_cmp_gt_u32 vcc, 32, v1\nv_mov_b32 v5, 0\nv_mov_b32 v6, 0x3f80")
        a("s_cmp_eq_u32 s64, 1\ns_cbranch_scc1 L_b_qodd")
        a("v_cndmask_b32 v12, v5, v12, vcc\nv_cndmask_b32 v13, v5, v13, vcc\nv_mov_b32 v14, 0\nv_cndmask_b32 v15, v5, v6, vcc")
        a("s_branch L_b_qd")
        a("L_b_qodd:")
        a("v_mov_b32 v12, 0\nv_cndmask_b32 v13, v5, v6, vcc\nv_cndmask_b32 v14, v5, v14, vcc\nv_cndmask_b32 v15, v5, v15, vcc")
        a("L_b_qd:")
        KS = lambda kt: 20 + 8 * (kt & 1)
        VS = lambda kt: 36 + 8 * (kt & 1)
        SB = lambda kt: 52 + 16 * (kt & 1)
        def rdK(ps, kt):
            a(f"ds_read_b128 v[{KS(kt)}:{KS(kt)+3}], v16 offset:{512*kt}\nds_read_b128 v[{KS(kt)+4}:{KS(kt)+7}], v17 offset:{512*kt}")
            self.lg_issue(("K", ps, kt), 2)
        def rdV(kt):
            b = VS(kt)
            for j2 in range(2):
                for jj in range(2):
                    a(f"ds_read_b64_tr_b16 v[{b+4*j2+2*jj}:{b+4*j2+2*jj+1}], v18 offset:{512*kt+256*j2+128*jj}")
            self.lg_issue(("V", kt), 4)
        def cop(kt): return "v[124:139]" if kt == 0 else ("v[108:123]" if kt == 8 else "0")
        def qk1(kt): a(f"v_mfma_f32_32x32x16_bf16 v[{SB(kt)}:{SB(kt)+15}], v[{KS(kt)}:{KS(kt)+3}], v[8:11], {cop(kt)}")
        def qk2(kt): a(f"v_mfma_f32_32x32x16_bf16 v[{SB(kt)}:{SB(kt)+15}], v[{KS(kt)+4}:{KS(kt)+7}], v[12:15], v[{SB(kt)}:{SB(kt)+15}]")
        def maxes(kt):
            b = SB(kt)
            for i in range(8):
                acc = 140 + (i & 1)
                if kt == 0 and i < 2: a(f"v_max_f32 v{acc}, v{b+2*i}, v{b+2*i+1}")
                else: a(f"v_max3_f32 v{acc}, v{b+2*i}, v{b+2*i+1}, v{acc}")
        def ex(kt, r0, r1):
            for r in range(r0, r1): a(f"v_exp_f32 v{SB(kt)+r}, v{SB(kt)+r}")
        def cv(kt, i0, i1):
            for i in range(i0, i1): a(f"v_cvt_pk_bf16_f32 v{84+i}, v{SB(kt)+2*i}, v{SB(kt)+2*i+1}")
        self.lg_reset()
        rdK(1, 0); rdK(1, 1)
        for kt in range(9):
            self.lg_wait(("K", 1, kt))
            qk1(kt); qk2(kt)
            if kt + 2 <= 8: rdK(1, kt + 2)
            if kt == 7: rdK(2, 1)
            if kt == 8: rdK(2, 0); rdV(0); rdV(1)
            if kt >= 1: maxes(kt - 1)
        maxes(8)
        a("v_max_f32 v140, v140, v141\nv_mov_b32 v141, v140\nv_permlane32_swap_b32 v140, v141\nv_max_f32 v140, v140, v141")
        a("v_sub_f32 v140, 0, v140")
        a("v_cvt_pk_bf16_f32 v141, v140, v140\nv_lshlrev_b32 v141, 16, v141\nv_sub_f32 v141, v140, v141")
        a("v_cvt_pk_bf16_f32 v141, v140, v141")
        a("v_cmp_gt_u32 vcc, 32, v1\nv_mov_b32 v142, 0\nv_cndmask_b32 v141, v142, v141, vcc")
        a("s_cmp_eq_u32 s64, 1\ns_cbranch_scc1 L_b_mo\nv_mov_b32 v14, v141\ns_branch L_b_md\nL_b_mo:\nv_mov_b32 v12, v141\nL_b_md:")
        a("s_nop 1")
        self.lg_wait(("K", 2, 0))
        qk1(0); qk2(0)
        rdK(2, 2)
        for kt in range(9):
            if kt < 8:
                self.lg_wait(("K", 2, kt + 1)); qk1(kt + 1)
            ex(kt, 0, 4)
            if kt < 8:
                qk2(kt + 1)
                if kt + 3 <= 8: rdK(2, kt + 3)
            ex(kt, 4, 8); cv(kt, 0, 4); ex(kt, 8, 10)
            self.lg_wait(("V", kt))
            a(f"v_mfma_f32_32x32x16_bf16 v[92:107], v[{VS(kt)}:{VS(kt)+3}], v[84:87], {'0' if kt == 0 else 'v[92:107]'}")
            ex(kt, 10, 16); cv(kt, 4, 8)
            a(f"v_mfma_f32_32x32x16_bf16 v[92:107], v[{VS(kt)+4}:{VS(kt)+7}], v[88:91], v[92:107]")
            if kt + 2 <= 8: rdV(kt + 2)
        self.stamp(7)
        a("v_mov_b32 v140, v100\nv_mov_b32 v141, v100\nv_permlane32_swap_b32 v140, v141")
        a("v_rcp_f32 v141, v141")
        for r in range(12): a(f"v_mul_f32 v{92+r}, v{92+r}, v141")
        for i in range(6): a(f"v_cvt_pk_bf16_f32 v{84+i}, v{92+2*i}, v{92+2*i+1}")
        a("v_add_u32 v5, s34, v2\nv_lshlrev_b32 v5, 3, v5\nv_lshl_add_u32 v5, v3, 14, v5")
        a(f"s_mul_i32 s35, s62, {5*16384}\ns_add_u32 s35, s35, {WS_O}")
        a("buffer_store_dwordx2 v[84:85], v5, s[12:15], s35 offen sc1")
        a("s_add_u32 s35, s35, 32768\nbuffer_store_dwordx2 v[86:87], v5, s[12:15], s35 offen sc1")
        a("s_add_u32 s35, s35, 32768\ns_mov_b32 exec_hi, 0\nbuffer_store_dwordx2 v[88:89], v5, s[12:15], s35 offen sc1\ns_mov_b64 exec, -1")
        a(f"v_mov_b32 v5, {L_FLG}\nds_read_b32 v7, v5 offset:4")
        a(f"s_lshl_b32 s35, s63, 5\ns_add_u32 s35, s35, s62\ns_lshl_b32 s35, s35, 3\ns_add_u32 s35, s35, s16\ns_lshl_b32 s35, s35, 6\ns_add_u32 s35, s35, {WS_F2}\nv_mov_b32 v6, s35")
        a("s_waitcnt lgkmcnt(0)\ns_mov_b64 exec, 1\nbuffer_store_dword v7, v6, s[12:15], 0 offen sc1")
        a("v_mov_b32 v6, 1\nds_add_u32 v5, v6 offset:12\ns_mov_b64 exec, -1")
        a("L_b_nf:")
        self.stamp(8)

    def phase_c(self):
        a = self.a
        a("; ---- phase C ----")
        self.post_srd = []
        self.srd(56, 64, 2621440)
        a("s_and_b32 s21, s16, 3\ns_lshr_b32 s22, s16, 2")
        a("v_and_b32 v2, 15, v1\nv_lshrrev_b32 v3, 4, v1\nv_mov_b32 v8, v163\nv_mov_b32 v10, v162")
        a(f"v_mov_b32 v5, {L_FLG}")
        a(f"s_mul_i32 s30, s22, {80*16384}\ns_add_u32 s30, s30, {WS_O}\nv_lshlrev_b32 v20, 3, v8\nv_lshl_add_u32 v20, v3, 15, v20")
        a("v_bfe_u32 v21, v1, 2, 2")
        a("v_lshrrev_b32 v22, 1, v21\nv_and_b32 v23, 1, v3\nv_lshl_or_b32 v22, v23, 1, v22")
        a("v_lshl_add_u32 v23, v3, 3, v21")
        a("v_and_b32 v24, 3, v1\nv_lshlrev_b32 v24, 3, v24")
        a("v_lshlrev_b32 v25, 7, v23\nv_lshl_add_u32 v25, v22, 5, v25\nv_add_u32 v25, v25, v24")
        a(f"s_mul_i32 s31, s22, {320*128}\ns_add_u32 s31, s31, {LA1}")
        a(f"s_cmp_eq_u32 s22, 0\ns_cselect_b32 s32, {LA1 + 128*128}, {LA2}")
        for nt in range(4):
            a(f"v_xor_b32 v26, {nt << 5}, v25\nv_add_u32 v{28+nt}, s31, v26\nv_add_u32 v{32+nt}, s32, v26")
        a("v_and_b32 v26, 1, v3\nv_lshlrev_b32 v26, 2, v26")
        a(f"s_mul_i32 s31, s22, {320*32}\ns_add_u32 s31, s31, {LBB}")
        for jj in range(2):
            a(f"v_xor_b32 v27, {4*jj}, v26\nv_add_u32 v27, v27, v23\nv_lshl_add_u32 v27, v27, 5, v24\nv_add_u32 v{36+jj}, s31, v27")
        a("s_waitcnt lgkmcnt(0)")
        self.srd_fin()
        a("ds_read_b32 v6, v5 offset:4\nv_lshlrev_b32 v11, 4, v8\ns_waitcnt lgkmcnt(0)")
        a("L_c_st:\nv_cmp_ne_u32 vcc, v6, v161\ns_cbranch_vccz L_c_stok")
        a("buffer_load_dwordx2 v[160:161], v11, s[12:15], 0 offen sc1\ns_waitcnt vmcnt(0)\ns_add_u32 s100, s100, 1\ns_bitcmp1_b32 s100, 21\ns_cbranch_scc0 L_c_st\nL_c_stok:")
        a("v_lshlrev_b32 v22, 16, v160\nv_and_b32 v23, 0xffff0000, v160\nv_rcp_f32 v23, v23")
        for i in range(3):
            for d in range(2):
                a(f"v_lshlrev_b32 v{40+4*i+2*d}, 16, v{154+2*i+d}\nv_and_b32 v{41+4*i+2*d}, 0xffff0000, v{154+2*i+d}")
            for d in range(2):
                e = 40 + 4 * i + 2 * d; o = 52 + 4 * i + 2 * d
                a(f"v_sub_f32 v{o}, v{e}, v22\nv_sub_f32 v{o+1}, v{e+1}, v22")
                a(f"v_cvt_pk_bf16_f32 v26, v{o}, v{o+1}\nv_lshlrev_b32 v{o}, 16, v26\nv_and_b32 v{o+1}, 0xffff0000, v26")
                a(f"v_mul_f32 v{o}, v{o}, v23\nv_mul_f32 v{o+1}, v{o+1}, v23")
                a(f"v_cvt_pk_bf16_f32 v26, v{o}, v{o+1}\nv_lshlrev_b32 v{o}, 16, v26\nv_and_b32 v{o+1}, 0xffff0000, v26")
        self.lds_spin("v5", "v6", "s35", "ge", 1, off=16)
        self.stamp(9)
        a("L_c_retry:\nv_mov_b32 v38, 0")
        for sl in range(10):
            a(f"s_add_u32 s31, s30, {sl*8*16384}\nbuffer_load_dwordx2 v[{64+4*sl}:{65+4*sl}], v20, s[12:15], s31 offen sc1")
            a(f"s_add_u32 s31, s31, 16384\nbuffer_load_dwordx2 v[{66+4*sl}:{67+4*sl}], v20, s[12:15], s31 offen sc1")
        self.lds_spin("v5", "v6", "s35", "ge", 2, off=32)
        self.lg_reset()
        def rdW(sl):
            b = 104 + 20 * (sl & 1)
            for nt in range(4):
                ar = (28 if sl < 4 else 32) + nt
                off = (sl if sl < 4 else sl - 4) * 4096
                a(f"ds_read_b64_tr_b16 v[{b+4*nt}:{b+4*nt+1}], v{ar} offset:{off}\nds_read_b64_tr_b16 v[{b+4*nt+2}:{b+4*nt+3}], v{ar} offset:{off+512}")
            a(f"ds_read_b64_tr_b16 v[{b+16}:{b+17}], v36 offset:{1024*sl}\nds_read_b64_tr_b16 v[{b+18}:{b+19}], v37 offset:{1024*sl}")
            self.lg_issue(("W", sl), 10)
        rdW(0)
        for sl in range(10):
            if sl + 1 < 10: rdW(sl + 1)
            self.lg_wait(("W", sl))
            a(f"s_waitcnt vmcnt({2 * (9 - sl)})")
            b = 104 + 20 * (sl & 1)
            for nt in range(5):
                c = "0" if sl == 0 else f"v[{144+4*nt}:{147+4*nt}]"
                a(f"v_mfma_f32_16x16x32_bf16 v[{144+4*nt}:{147+4*nt}], v[{b+4*nt}:{b+4*nt+3}], v[{64+4*sl}:{67+4*sl}], {c}")
            a(f"v_max3_u32 v38, v{64+4*sl}, v{65+4*sl}, v38\nv_max3_u32 v38, v{66+4*sl}, v{67+4*sl}, v38")
        a("v_cmp_eq_u32 vcc, -1, v38")
        self.guard_br("L_c_retry")
        a(f"s_mul_i32 s29, s16, 3072\ns_add_u32 s29, s29, {L_EX}\nv_lshlrev_b32 v26, 4, v1\nv_add_u32 v26, s29, v26")
        a("s_cmp_eq_u32 s22, 0\ns_cbranch_scc0 L_c_x1")
        a("ds_write_b128 v26, v[156:159]\nds_write_b128 v26, v[160:163] offset:1024")
        a("s_branch L_c_x2")
        a("L_c_x1:")
        a("ds_write_b128 v26, v[144:147]\nds_write_b128 v26, v[148:151] offset:1024\nds_write_b128 v26, v[152:155] offset:2048")
        for k in range(8): a(f"v_mov_b32 v{144+k}, v{156+k}")
        a("L_c_x2:")
        a(f"s_lshl_b32 s29, s16, 2\ns_add_u32 s29, s29, {L_FLG+64}\nv_mov_b32 v27, s29\nv_mov_b32 v6, 1\ns_waitcnt lgkmcnt(0)")
        a("s_mov_b64 exec, 1\nds_write_b32 v27, v6\ns_mov_b64 exec, -1")
        a(f"s_xor_b32 s31, s16, 4\ns_lshl_b32 s29, s31, 2\ns_add_u32 s29, s29, {L_FLG+64}\nv_mov_b32 v27, s29")
        self.lds_spin("v27", "v6", "s35", "ge", 1)
        a(f"s_mul_i32 s29, s31, 3072\ns_add_u32 s29, s29, {L_EX}\nv_lshlrev_b32 v26, 4, v1\nv_add_u32 v26, s29, v26")
        a("ds_read_b128 v[104:107], v26\nds_read_b128 v[108:111], v26 offset:1024\nds_read_b128 v[112:115], v26 offset:2048")
        a("s_waitcnt lgkmcnt(0)")
        for k in range(12): a(f"v_add_f32 v{144+k}, v{144+k}, v{104+k}")
        self.moe_hook()
        for i in range(3):
            if i == 2: a("s_cmp_eq_u32 s22, 1\ns_cbranch_scc1 L_c_done")
            for d in range(2):
                ac = 144 + 4 * i + 2 * d; e = 40 + 4 * i + 2 * d; o = 52 + 4 * i + 2 * d
                a(f"v_cvt_pk_bf16_f32 v26, v{ac}, v{ac+1}\nv_lshlrev_b32 v{ac}, 16, v26\nv_and_b32 v{ac+1}, 0xffff0000, v26")
                a(f"v_add_f32 v{ac}, v{ac}, v{e}\nv_add_f32 v{ac+1}, v{ac+1}, v{e+1}")
                a(f"v_cvt_pk_bf16_f32 v26, v{ac}, v{ac+1}\nv_lshlrev_b32 v{ac}, 16, v26\nv_and_b32 v{ac+1}, 0xffff0000, v26")
                a(f"v_add_f32 v{ac}, v{ac}, v{o}\nv_add_f32 v{ac+1}, v{ac+1}, v{o+1}")
                a(f"v_cvt_pk_bf16_f32 v{104+2*i+d}, v{ac}, v{ac+1}")
            a(f"buffer_store_dwordx2 v[{104+2*i}:{105+2*i}], v10, s[56:59], 0 offen offset:{32*i}")
        a("L_c_done:")

    def moe_hook(self):
        a = self.a
        if "nomoe" in self.opts: return
        self.lds_spin("v5", "v6", "s35", "ge", 1, off=20)
        a("ds_read_b64 v[26:27], v5 offset:24\nds_read_b32 v6, v5 offset:4\ns_waitcnt lgkmcnt(0)")
        a("v_cmp_eq_u32 s[30:31], v26, v8\nv_cmp_eq_u32 s[32:33], v27, v8\ns_or_b64 s[34:35], s[30:31], s[32:33]")
        a("s_cmp_eq_u64 s[34:35], 0\ns_cbranch_scc1 L_c_nomoe")
        a(f"s_lshl_b32 s29, s69, 2\ns_mul_i32 s36, s22, 384\ns_add_u32 s29, s29, s36\ns_add_u32 s29, s29, {WS_UPD}\nv_lshlrev_b32 v7, 5, v3")
        a("L_c_upd:")
        for i in range(3):
            a(f"buffer_load_dwordx4 v[{104+8*i}:{107+8*i}], v7, s[12:15], s29 offen offset:{128*i} sc1")
            a(f"buffer_load_dwordx4 v[{108+8*i}:{111+8*i}], v7, s[12:15], s29 offen offset:{128*i+16} sc1")
        a("s_waitcnt vmcnt(0)")
        a("v_cmp_ne_u32 vcc, v6, v105")
        regs = [105 + 2 * k for k in range(1, 8)]
        for r in regs: a(f"v_cmp_ne_u32 s[36:37], v6, v{r}\ns_or_b64 vcc, vcc, s[36:37]")
        L = a.label("u3")
        a(f"s_cmp_eq_u32 s22, 1\ns_cbranch_scc1 {L}")
        for r in [121, 123, 125, 127]: a(f"v_cmp_ne_u32 s[36:37], v6, v{r}\ns_or_b64 vcc, vcc, s[36:37]")
        a(f"{L}:")
        a("s_and_b64 vcc, vcc, s[34:35]\ns_cbranch_vccz L_c_upd_o\ns_add_u32 s100, s100, 1\ns_bitcmp1_b32 s100, 21\ns_cbranch_scc0 L_c_upd\nL_c_upd_o:")
        for i in range(3):
            for e in range(4):
                g = 104 + 8 * i + 2 * e; o = 52 + 4 * i + e
                a(f"v_lshlrev_b32 v26, 16, v{g}\nv_and_b32 v27, 0xffff0000, v{g}\nv_cndmask_b32 v26, v27, v26, s[30:31]")
                a(f"v_add_f32 v26, v{o}, v26\nv_cvt_pk_bf16_f32 v26, v26, v26\nv_lshlrev_b32 v26, 16, v26\nv_cndmask_b32 v{o}, v{o}, v26, s[34:35]")
        a("L_c_nomoe:")

    def guard_br(self, L):
        Lo = self.a.label("ok")
        self.a(f"s_cbranch_vccz {Lo}\ns_sleep {self.BACK}\ns_add_u32 s100, s100, 1\ns_bitcmp1_b32 s100, 21\ns_cbranch_scc0 {L}\n{Lo}:")

    def moe_tile_gemm(self, img, nmat, lds_a):
        a = self.a
        a(f"v_and_b32 v30, 1, v1\nv_lshlrev_b32 v30, 7, v30\nv_lshrrev_b32 v31, 4, v1\nv_lshl_add_u32 v30, v31, 4, v30\nv_add_u32 v30, {lds_a}, v30")
        a("v_bfe_u32 v32, v1, 2, 2\nv_lshrrev_b32 v33, 1, v32\nv_and_b32 v34, 1, v31\nv_lshl_or_b32 v33, v34, 1, v33")
        a("v_lshl_add_u32 v32, v31, 3, v32\nv_lshlrev_b32 v32, 7, v32\nv_lshl_add_u32 v32, v33, 5, v32\nv_and_b32 v33, 3, v1\nv_lshl_add_u32 v32, v33, 3, v32")
        a(f"v_add_u32 v32, {img}, v32")
        for nt in range(4): a(f"v_xor_b32 v{36+nt}, {nt << 5}, v32")
        a("ds_read_b128 v[40:43], v30\nds_read_b128 v[44:47], v30 offset:64")
        T = nmat * 4
        for t in range(T):
            mat, nt = t >> 2, t & 3
            b = 96 + 8 * t
            for s_ in range(2):
                for jj in range(2):
                    a(f"ds_read_b64_tr_b16 v[{b+4*s_+2*jj}:{b+4*s_+2*jj+1}], v{36+nt} offset:{mat*8192 + s_*4096 + jj*512}")
            if t == 2: a("s_waitcnt lgkmcnt(8)") if False else None
        a("s_waitcnt lgkmcnt(0)")
        for t in range(T):
            b = 96 + 8 * t; d = 64 + 4 * t
            a(f"v_mfma_f32_16x16x32_bf16 v[{d}:{d+3}], v[40:43], v[{b}:{b+3}], 0")
        for t in range(T):
            b = 96 + 8 * t; d = 64 + 4 * t
            a(f"v_mfma_f32_16x16x32_bf16 v[{d}:{d+3}], v[44:47], v[{b+4}:{b+7}], v[{d}:{d+3}]")
        for t in range(T):
            d = 64 + 4 * t
            a(f"v_mov_b32 v{d+2}, s61\nv_mov_b32 v{d+3}, s61")

    def moe_aux(self):
        a = self.a
        a(f"v_lshlrev_b32 v6, 4, v1\nv_add_u32 v6, {WS_FR}, v6")
        a("L_m_fr:")
        for i in range(4): a(f"buffer_load_dwordx4 v[{16+4*i}:{19+4*i}], v6, s[12:15], 0 offen offset:{1024*i} sc1")
        a("s_waitcnt vmcnt(0)")
        a("v_cmp_ne_u32 vcc, s61, v17")
        for r in (19, 21, 23, 25, 27, 29, 31): a(f"v_cmp_ne_u32 s[62:63], s61, v{r}\ns_or_b64 vcc, vcc, s[62:63]")
        self.guard_br("L_m_fr")
        a("v_mov_b32 v8, v16\nv_mov_b32 v10, v18")
        for i in range(1, 4): self.top2_merge("v8", "v10", f"v{16+4*i}", f"v{18+4*i}", "v14")
        self.top2_wave("v8", "v10", "v12", "v13", "v14")
        a("v_readfirstlane_b32 s64, v8\nv_readfirstlane_b32 s65, v10")
        a("s_and_b32 s66, s64, 0x7ff\ns_sub_u32 s66, 2047, s66\ns_and_b32 s67, s65, 0x7ff\ns_sub_u32 s67, 2047, s67")
        a(f"v_mov_b32 v6, {L_FLG}\nv_mov_b32 v12, s66\nv_mov_b32 v13, s67\nv_mov_b32 v14, 1\nds_write_b64 v6, v[12:13] offset:24\ns_waitcnt lgkmcnt(0)\nds_write_b32 v6, v14 offset:20")
        for k, d in (("s64", "s68"), ("s65", "s69")):
            a(f"s_lshr_b32 s29, {k}, 16\ns_and_b32 s30, s29, 0x7fff\ns_xor_b32 s31, s29, 0xffff\ns_bitcmp1_b32 s29, 15\ns_cselect_b32 {d}, s30, s31\ns_lshl_b32 {d}, {d}, 16")
        self.stamp(5)
        a("s_cmp_ge_u32 s2, 240\ns_cbranch_scc1 L_m_s4")
        a("s_mul_i32 s29, s2, 171\ns_lshr_b32 s29, s29, 12\ns_mul_i32 s30, s29, 24\ns_sub_u32 s30, s2, s30")
        a("v_bfe_u32 v6, v1, 4, 1\nv_cmp_eq_u32 vcc, 1, v6\nv_mov_b32 v7, s66\nv_mov_b32 v8, s67\nv_cndmask_b32 v7, v7, v8, vcc")
        a("v_and_b32 v9, 15, v1\nv_mul_u32_u24 v10, 1280, v7\nv_lshl_add_u32 v10, v9, 3, v10\ns_lshl_b32 s31, s29, 7\nv_add_u32 v10, s31, v10\nv_lshlrev_b32 v11, 4, v7")
        a("buffer_load_dwordx2 v[16:17], v10, s[4:7], 0 offen")
        a("L_m_st:\nbuffer_load_dwordx2 v[14:15], v11, s[12:15], 0 offen sc1\ns_waitcnt vmcnt(0)")
        a("v_cmp_ne_u32 vcc, s61, v15")
        self.guard_br("L_m_st")
        a("v_lshlrev_b32 v12, 16, v14\nv_and_b32 v13, s28, v14\nv_rcp_f32 v13, v13")
        for r in (16, 17):
            a(f"v_lshlrev_b32 v30, 16, v{r}\nv_and_b32 v31, s28, v{r}\nv_sub_f32 v30, v30, v12\nv_sub_f32 v31, v31, v12")
            a("v_cvt_pk_bf16_f32 v32, v30, v31\nv_lshlrev_b32 v30, 16, v32\nv_and_b32 v31, s28, v32")
            a(f"v_mul_f32 v30, v30, v13\nv_mul_f32 v31, v31, v13\nv_cvt_pk_bf16_f32 v{r}, v30, v31")
        a(f"v_lshlrev_b32 v6, 7, v6\nv_lshl_add_u32 v6, v9, 3, v6\nv_add_u32 v6, {L_XS}, v6\nds_write_b64 v6, v[16:17]")
        a(f"v_mov_b32 v6, {L_FLG}\ns_waitcnt lgkmcnt(0)")
        self.lds_spin("v6", "v7", "s35", "ge", 2, off=36)
        self.moe_tile_gemm(L_AUX, 2, L_XS)
        a(f"s_lshl_b32 s29, s2, 11\ns_add_u32 s29, s29, {WS_P1}\nv_lshlrev_b32 v6, 4, v1\ns_mov_b64 exec, 0xffff")
        for t in range(8): a(f"buffer_store_dwordx4 v[{64+4*t}:{67+4*t}], v6, s[12:15], s29 offen offset:{256*t} sc1")
        a("s_mov_b64 exec, -1")
        self.stamp(6)
        a("s_mul_i32 s57, s2, 205\ns_lshr_b32 s57, s57, 11")
        a(f"s_lshl_b32 s29, s57, 11\ns_add_u32 s29, s29, {WS_P1}\nv_lshlrev_b32 v6, 4, v1")
        a("L_m_p1:")
        for kc in range(10):
            a(f"s_add_u32 s30, s29, {kc*24*2048}\nbuffer_load_dwordx4 v[{64+8*kc}:{67+8*kc}], v6, s[12:15], s30 offen sc1\nbuffer_load_dwordx4 v[{68+8*kc}:{71+8*kc}], v6, s[12:15], s30 offen offset:1024 sc1")
        a("s_waitcnt vmcnt(0)")
        a("v_cmp_ne_u32 vcc, s61, v66")
        for k in range(1, 20): a(f"v_cmp_ne_u32 s[62:63], s61, v{66+4*k}\ns_or_b64 vcc, vcc, s[62:63]")
        self.guard_br("L_m_p1")
        for kc in range(1, 10):
            for o in (0, 1, 4, 5): a(f"v_add_f32 v{64+o}, v{64+o}, v{64+8*kc+o}")
        for c in range(2):
            g_, u_ = 64 + c, 68 + c
            a(f"v_cvt_pk_bf16_f32 v{g_}, v{g_}, v{g_}\nv_lshlrev_b32 v{g_}, 16, v{g_}\nv_cvt_pk_bf16_f32 v{u_}, v{u_}, v{u_}\nv_lshlrev_b32 v{u_}, 16, v{u_}")
            a(f"v_mul_f32 v46, {f32hex(-1.4426950408889634)}, v{g_}\nv_exp_f32 v46, v46\nv_add_f32 v46, 1.0, v46\nv_rcp_f32 v46, v46\nv_mul_f32 v46, v{g_}, v46")
            a(f"v_cvt_pk_bf16_f32 v46, v46, v46\nv_lshlrev_b32 v46, 16, v46\nv_mul_f32 v{g_}, v46, v{u_}")
        a("v_cvt_pk_bf16_f32 v16, v64, v65")
        a(f"v_lshlrev_b32 v6, 1, v1\nv_add_u32 v6, {L_HS}, v6\nds_write_b16 v6, v16\nds_write_b16_d16_hi v6, v16 offset:128")
        a(f"v_mov_b32 v6, {L_FLG}\ns_waitcnt lgkmcnt(0)")
        self.lds_spin("v6", "v7", "s35", "ge", 2, off=36)
        self.moe_tile_gemm(L_AUX + 16384, 1, L_HS)
        a(f"s_lshl_b32 s29, s2, 10\ns_add_u32 s29, s29, {WS_P3}\nv_lshlrev_b32 v6, 4, v1\ns_mov_b64 exec, 0xffff")
        for t in range(4): a(f"buffer_store_dwordx4 v[{64+4*t}:{67+4*t}], v6, s[12:15], s29 offen offset:{256*t} sc1")
        a("s_mov_b64 exec, -1")
        self.stamp(7)
        a("s_branch L_m_end")
        a("L_m_s4:")
        a("s_cmp_ge_u32 s2, 250\ns_cbranch_scc1 L_m_end")
        a(f"s_sub_u32 s57, s2, 240\ns_lshl_b32 s29, s57, 10\ns_add_u32 s29, s29, {WS_P3}\nv_lshlrev_b32 v6, 4, v1")
        a("L_m_p3:")
        for kc in range(24):
            a(f"s_add_u32 s30, s29, {kc*10*1024}\nbuffer_load_dwordx4 v[{64+4*kc}:{67+4*kc}], v6, s[12:15], s30 offen sc1")
        a("s_waitcnt vmcnt(0)")
        a("v_cmp_ne_u32 vcc, s61, v66")
        for k in range(1, 24): a(f"v_cmp_ne_u32 s[62:63], s61, v{66+4*k}\ns_or_b64 vcc, vcc, s[62:63]")
        self.guard_br("L_m_p3")
        for kc in range(1, 24): a(f"v_add_f32 v64, v64, v{64+4*kc}\nv_add_f32 v65, v65, v{65+4*kc}")
        for c in range(2):
            a(f"v_cvt_pk_bf16_f32 v{64+c}, v{64+c}, v{64+c}\nv_lshlrev_b32 v{64+c}, 16, v{64+c}")
            sr = "s68" if c == 0 else "s69"
            a(f"v_mov_b32 v46, {sr}\nv_mul_f32 v46, {f32hex(-1.4426950408889634)}, v46\nv_exp_f32 v46, v46\nv_add_f32 v46, 1.0, v46\nv_rcp_f32 v46, v46")
            a(f"v_cvt_pk_bf16_f32 v46, v46, v46\nv_lshlrev_b32 v46, 16, v46\nv_mul_f32 v{64+c}, v{64+c}, v46")
        a("v_cvt_pk_bf16_f32 v48, v64, v65\nv_mov_b32 v49, s61")
        a(f"s_lshl_b32 s29, s57, 9\ns_add_u32 s29, s29, {WS_UPD}\nv_lshlrev_b32 v6, 3, v1\nbuffer_store_dwordx2 v[48:49], v6, s[12:15], s29 offen sc1")
        self.stamp(7)
        a("L_m_end:")

    def small_gemm(self, nk, astride, jjoff, bstride):
        a = self.a
        self.lg_reset()
        def rd(s_):
            b = 50 + 8 * (s_ % 3)
            a(f"ds_read_b128 v[{b}:{b+3}], v30 offset:{astride*s_}")
            a(f"ds_read_b64_tr_b16 v[{b+4}:{b+5}], v32 offset:{bstride*s_}\nds_read_b64_tr_b16 v[{b+6}:{b+7}], v32 offset:{bstride*s_+jjoff}")
            self.lg_issue(("G", s_), 3)
        rd(0); rd(1)
        for s_ in range(nk):
            if s_ + 2 < nk: rd(s_ + 2)
            self.lg_wait(("G", s_))
            b = 50 + 8 * (s_ % 3)
            a(f"v_mfma_f32_16x16x32_bf16 v[40:43], v[{b}:{b+3}], v[{b+4}:{b+7}], {'0' if s_ == 0 else 'v[40:43]'}")

    def aux(self):
        a = self.a
        a("L_aux:")
        self.post_srd = []
        self.srd(40, 72, 256)
        a("v_mov_b32 v2, 0")
        a(f"v_lshlrev_b32 v6, 2, v1\nv_add_u32 v6, {L_FLG}, v6\ns_mov_b32 exec_hi, 0\nds_write_b32 v6, v2\ns_mov_b64 exec, -1")
        a("s_memrealtime s[54:55]")
        a("s_lshl_b32 s23, s46, 3\ns_add_u32 s23, s23, s20")
        a("s_waitcnt lgkmcnt(0)")
        self.srd_fin()
        self.stamp(0)
        a("v_mov_b32 v9, 0")
        a("s_cmp_lg_u32 s2, 0\ns_cbranch_scc1 L_x_non")
        a("s_or_b32 s54, s54, 1\nv_mov_b32 v10, s54\ns_mov_b64 exec, 1\nbuffer_store_dword v10, v9, s[40:43], 0 offen sc1\ns_mov_b64 exec, -1")
        a("L_x_non:")
        a("s_getreg_b32 s52, hwreg(HW_REG_XCC_ID, 0, 4)")
        a("s_and_b32 s52, s52, 7\ns_or_b32 s52, s52, 16\ns_mov_b32 s28, 0xffff0000")
        a("s_barrier")
        a("buffer_load_dword v10, v9, s[40:43], 0 offen sc1")
        def get_nonce():
            a("s_waitcnt vmcnt(0)")
            a("L_x_wn:\nv_cmp_ne_u32 vcc, 0, v10\ns_cbranch_vccnz L_x_gotn")
            a("buffer_load_dword v10, v9, s[40:43], 0 offen sc1\ns_waitcnt vmcnt(0)\ns_add_u32 s100, s100, 1\ns_bitcmp1_b32 s100, 21\ns_cbranch_scc0 L_x_wn")
            a("L_x_gotn:")
            a("v_readfirstlane_b32 s61, v10")
            a(f"v_mov_b32 v6, {L_FLG}\nds_write_b32 v6, v10 offset:4")
            a(f"s_lshl_b32 s31, s17, 5\ns_add_u32 s31, s31, s18\ns_lshl_b32 s31, s31, 4\ns_add_u32 s31, s31, {WS_XF}")
            a("v_mov_b32 v14, s52\nv_mov_b32 v15, v10\ns_mov_b64 exec, 1\nbuffer_store_dwordx2 v[14:15], v9, s[12:15], s31 offen sc1\ns_mov_b64 exec, -1")
            self.stamp(1)
        def pub_st():
            a(f"v_and_b32 v12, 7, v1\nv_lshlrev_b32 v13, 3, v12\nv_add_u32 v13, {L_OWN}, v13\nds_read_b64 v[18:19], v13")
            a("s_lshl_b32 s29, s23, 3\ns_lshl_b32 s30, s19, 7\ns_add_u32 s29, s29, s30\ns_lshl_b32 s29, s29, 4")
            a("v_lshlrev_b32 v12, 4, v1\nv_mov_b32 v21, s61\nv_mov_b32 v23, s61")
            a("s_waitcnt lgkmcnt(0)\nv_mov_b32 v20, v18\nv_mov_b32 v22, v19")
            a("s_mov_b64 exec, 0xff\nbuffer_store_dwordx4 v[20:23], v12, s[12:15], s29 offen sc1\ns_mov_b64 exec, -1")
            a("v_cmp_gt_u32 vcc, 8, v1\nv_mov_b32 v30, 0\nv_cndmask_b32 v30, v30, v19, vcc\nv_mov_b32 v32, 0")
            for ctrl in ("quad_perm:[1,0,3,2]", "quad_perm:[2,3,0,1]", "row_half_mirror"):
                a(f"v_mov_b32_dpp v34, v30 {ctrl} row_mask:0xf bank_mask:0xf\nv_mov_b32_dpp v35, v32 {ctrl} row_mask:0xf bank_mask:0xf")
                self.top2_merge("v30", "v32", "v34", "v35", "v36")
            a(f"s_lshl_b32 s29, s2, 4\ns_add_u32 s29, s29, {WS_FR}\nv_mov_b32 v28, s29\nv_mov_b32 v31, s61\nv_mov_b32 v33, s61")
            a("s_mov_b64 exec, 1\nbuffer_store_dwordx4 v[30:33], v28, s[12:15], 0 offen sc1\ns_mov_b64 exec, -1")
        def gather_issue():
            a(f"s_lshl_b32 s29, s19, 11\ns_add_u32 s29, s29, {WS_ST}\nv_lshlrev_b32 v9, 5, v1")
            a("buffer_load_dwordx4 v[40:43], v9, s[12:15], s29 offen sc1")
            a("buffer_load_dwordx4 v[44:47], v9, s[12:15], s29 offen offset:16 sc1")
            a(f"s_lshl_b32 s31, s17, 9\ns_add_u32 s31, s31, {WS_XF}\nv_and_b32 v16, 31, v1\nv_lshlrev_b32 v16, 4, v16")
            a("buffer_load_dwordx2 v[18:19], v16, s[12:15], s31 offen sc1")
        def gather_check(Lok):
            a("s_waitcnt vmcnt(0)")
            a("v_cmp_ne_u32 vcc, s61, v41\nv_cmp_ne_u32 s[62:63], s61, v45\ns_or_b64 vcc, vcc, s[62:63]")
            if "nocheck" in self.opts: a(f"s_branch {Lok}")
            a(f"s_cbranch_vccz {Lok}")
        tst = self.b_stats
        for t in range(9):
            a("s_barrier")
            if t == 1: get_nonce()
            if t == tst: pub_st()
            if t == max(self.TG, tst + 2): gather_issue()
        gather_check("L_x_gdone")
        a("L_x_gretry:")
        gather_issue()
        gather_check("L_x_gdone")
        self.guard("L_x_gretry")
        a("L_x_gdone:")
        a("v_lshlrev_b32 v24, 16, v40\nv_and_b32 v25, 0xffff0000, v40\nv_lshlrev_b32 v26, 16, v44\nv_and_b32 v27, 0xffff0000, v44")
        a("v_rcp_f32 v25, v25\nv_rcp_f32 v27, v27")
        a(f"v_lshlrev_b32 v28, 4, v1\nv_add_u32 v28, {L_STAT}, v28")
        a("ds_write_b128 v28, v[24:27]")
        a("s_waitcnt vmcnt(0)")
        a("v_cmp_ne_u32 vcc, s52, v18\nv_cmp_ne_u32 s[62:63], s61, v19\ns_or_b64 vcc, vcc, s[62:63]")
        a("s_cmp_eq_u64 vcc, 0\ns_cselect_b32 s56, 1, 0")
        a("s_and_b32 s57, s19, 2\ns_cmp_lt_u32 s19, 12\ns_cselect_b32 s57, s57, 0\ns_cmp_lg_u32 s57, 0\ns_cselect_b32 s56, 0, s56")
        if "slow" in self.opts: a("s_mov_b32 s56, 0")
        a(f"v_mov_b32 v28, {L_FLG}\nv_mov_b32 v29, s56\nds_write_b32 v28, v29\ns_waitcnt lgkmcnt(0)")
        self.stamp(2)
        a("s_barrier")
        self.stamp(3); self.stamp(4)
        if self.stop_after is None:
            a("s_mov_b32 s28, 0xffff0000\ns_setprio 3")
            if self.stamps:
                for k in (5, 6, 7): a(f"s_mov_b64 s[{72+2*k}:{73+2*k}], 0")
            if "nomoe" not in self.opts: self.moe_aux()
        if "lstamp" not in self.opts and "lloop" not in self.opts: self.fin_stamps(8 if self.stop_after is None else 5, wave=10, slot=1)
        a("s_endpgm")

if __name__ == "__main__":
    import argparse
    ap = argparse.ArgumentParser()
    ap.add_argument("-o", default="k.s")
    ap.add_argument("--stamps", action="store_true")
    ap.add_argument("--opt", action="append", default=[])
    args = ap.parse_args()
    g = Gen(stamps=args.stamps, opts=args.opt)
    open(args.o, "w").write(g.build())
    print("wrote", args.o)
```

```python
import sys, struct
from asmlib import Asm

KNAME = "parallel_sum__sliding_block__moe_arch_mod__prompt_kernel"

WS_ST = 0
WS_CSP = 0x8000
WS_F1 = 0x48000
WS_F2 = 0xBC0000
WS_FR = 0x57000
WS_XF = 0x50400
WS_XH = 0x52000
WS_UPD = 0x55000
WS_P1 = 0x60000
WS_P3 = 0xB80000
WS_QKV = 0x100000
WS_O = 0x900000
WS_DBG = 0xC00000
WS_HB = 0xD00000
WS_F1H = 0x4C000
WS_SIZE = 0xF00000
L_MISC = 131072
L_STAT = L_MISC
L_CS = L_MISC + 1024
L_CSW = L_MISC + 2176
L_OWN = L_MISC + 2048
L_FLG = L_MISC + 6400
L_XS = L_MISC + 6656
L_HS = L_MISC + 6912
L_AUX = 138240
LB_K = 0
LB_V = 24768
PLS = 8256
LA1 = 49664
LBB = 107008
LA2 = 0
L_EX = 24832
LQ = 107008
NEGF = "0xf149f2ca"
LDS_BYTES = 163840
QSCALE = 0.22360679774997896 * 1.4426950408889634

def f32hex(x):
    return "0x%08x" % struct.unpack("<I", struct.pack("<f", x))[0]

class Gen:
    def __init__(self, stop_after=None, stamps=False, opts=()):
        self.a = Asm()
        self.opts = set(opts)
        self.stop_after = stop_after
        self.stamps = stamps
        self.in_main = False
        self.swave = 0; self.quota = 24; self.TG = 6; self.TP = 1; self.SIDE0 = 1; self.Q0 = 50; self.Q1 = 100; self.LM0 = 1; self.BACK = 8; self.PRE = 3
        for o in self.opts:
            if o.startswith("swave="): self.swave = int(o[6:])
            if o.startswith("quota="): self.quota = int(o[6:])
            if o.startswith("pre="): self.PRE = int(o[4:])
            if o.startswith("tg="): self.TG = int(o[3:])
            if o.startswith("side0="): self.SIDE0 = int(o[6:])
            if o.startswith("tp="): self.TP = int(o[3:])
            if o.startswith("q0="): self.Q0 = int(o[3:])
            if o.startswith("q1="): self.Q1 = int(o[3:])
            if o.startswith("lm0="): self.LM0 = int(o[4:])
            if o.startswith("back="): self.BACK = int(o[5:])
            if o.startswith("stop="): self.stop_after = o[5:]

    def srd(self, base, kofs, size):
        self.a(f"s_load_dwordx2 s[{base}:{base+1}], s[0:1], {kofs}")
        self.post_srd.append((base, size))
    def srd_fin(self):
        for base, size in self.post_srd:
            self.a(f"s_mov_b32 s{base+2}, {size}\ns_mov_b32 s{base+3}, 0x20000")
        self.post_srd = []
    def stamp(self, idx):
        if self.stamps and self.in_main and "bst" in self.opts and idx != 0: return
        if self.stamps:
            self.a(f"s_memrealtime s[{72+2*idx}:{73+2*idx}]")
            if idx == 0: self.a("s_memtime s[96:97]")
    def fin_stamps(self, n, wave=0, slot=0):
        if not self.stamps: return
        a = self.a
        L = a.label("nostamp")
        a("s_memtime s[98:99]")
        a("s_waitcnt lgkmcnt(0)")
        a(f"s_cmp_lg_u32 s16, {wave}\ns_cbranch_scc1 {L}")
        a(f"s_lshl_b32 s29, s2, 8\ns_add_u32 s29, s29, {WS_DBG + 128*slot}\nv_mov_b32 v4, s29\ns_mov_b64 exec, 1")
        for i in range(n):
            a(f"v_mov_b32 v6, s{72+2*i}\nv_mov_b32 v7, s{73+2*i}\nbuffer_store_dwordx2 v[6:7], v4, s[12:15], 0 offen offset:{8*i}")
        a("s_sub_u32 s98, s98, s96\nv_mov_b32 v6, s98\nv_mov_b32 v7, 0\nbuffer_store_dwordx2 v[6:7], v4, s[12:15], 0 offen offset:120")
        a(f"s_mov_b64 exec, -1\n{L}:")

    def top2_merge(self, a1, a2, b1, b2, mn):
        a = self.a
        a(f"v_min_u32 {mn}, {a1}, {b1}")
        a(f"v_max_u32 {a1}, {a1}, {b1}")
        a(f"v_max3_u32 {a2}, {a2}, {b2}, {mn}")
    def top2_wave(self, a1, a2, b1, b2, mn):
        a = self.a
        for ctrl in ("quad_perm:[1,0,3,2]", "quad_perm:[2,3,0,1]", "row_half_mirror", "row_mirror"):
            a(f"v_mov_b32_dpp {b1}, {a1} {ctrl} row_mask:0xf bank_mask:0xf")
            a(f"v_mov_b32_dpp {b2}, {a2} {ctrl} row_mask:0xf bank_mask:0xf")
            self.top2_merge(a1, a2, b1, b2, mn)
        for sw in ("v_permlane16_swap_b32", "v_permlane32_swap_b32"):
            a(f"v_mov_b32 {b1}, {a1}\nv_mov_b32 {b2}, {a2}")
            a(f"{sw} {a1}, {b1}\n{sw} {a2}, {b2}")
            self.top2_merge(a1, a2, b1, b2, mn)
    def sum_wave_lines(self, regs, tmps):
        out = []
        for ctrl in ("quad_perm:[1,0,3,2]", "quad_perm:[2,3,0,1]", "row_half_mirror", "row_mirror"):
            for r in regs: out.append(f"v_add_f32_dpp {r}, {r}, {r} {ctrl} row_mask:0xf bank_mask:0xf")
        for sw in ("v_permlane16_swap_b32", "v_permlane32_swap_b32"):
            for r, t in zip(regs, tmps): out.append(f"v_mov_b32 {t}, {r}")
            for r, t in zip(regs, tmps): out.append(f"{sw} {r}, {t}")
            for r, t in zip(regs, tmps): out.append(f"v_add_f32 {r}, {r}, {t}")
        return out
    @staticmethod
    def bf16r(dst, src):
        return [f"v_cvt_pk_bf16_f32 {dst}, {src}, {src}", f"v_lshlrev_b32 {dst}, 16, {dst}"]
    @staticmethod
    def key_lines(rf, row, dst, t1, t2):
        return [f"v_cvt_pk_bf16_f32 {dst}, {rf}, {rf}", f"v_and_b32 {dst}, 0xffff, {dst}",
                f"v_or_b32 {t1}, 0x8000, {dst}", f"v_xor_b32 {t2}, 0xffff, {dst}",
                f"v_cmp_lt_u32 vcc, 0x7fff, {dst}\nv_cndmask_b32 {dst}, {t1}, {t2}, vcc",
                f"v_mov_b32 {t1}, 0",
                f"v_cmp_u_f32 vcc, {rf}, {rf}\nv_cndmask_b32 {dst}, {dst}, {t1}, vcc",
                f"v_sub_u32 {t1}, 0xfff, {row}", f"v_lshl_or_b32 {dst}, {dst}, 16, {t1}"]
    def guard(self, L):
        self.a(f"s_add_u32 s100, s100, 1\ns_bitcmp1_b32 s100, 21\ns_cbranch_scc0 {L}")
    def lds_spin(self, vaddr, vtmp, stmp, cmp_, val, off=0):
        a = self.a
        L = a.label("spin")
        a(f"{L}:\nds_read_b32 {vtmp}, {vaddr} offset:{off}\ns_waitcnt lgkmcnt(0)")
        Lo = a.label("spino")
        a(f"v_readfirstlane_b32 {stmp}, {vtmp}\ns_cmp_{cmp_}_u32 {stmp}, {val}\ns_cbranch_scc1 {Lo}")
        self.guard(L)
        a(f"{Lo}:")

    def build(self):
        a = self.a
        a.raw(f"; @launch grid=(256,1,1) block=(704,1,1) lds={LDS_BYTES}")
        a.raw('.amdgcn_target "amdgcn-amd-amdhsa--gfx950"')
        a.raw(".text")
        a.raw(f".globl {KNAME}")
        a.raw(".p2align 8")
        a.raw(f".type {KNAME},@function")
        a.raw(f"{KNAME}:")
        self.post_srd = []
        a("s_cmp_ge_u32 s2, 256\ns_cbranch_scc1 L_end")
        self.srd(4, 0, 2621440)
        self.srd(8, 8, 2457600)
        self.srd(12, 80, WS_SIZE)
        self.srd(36, 32, 1280)
        a("v_and_b32 v1, 63, v0\nv_lshrrev_b32 v2, 6, v0\ns_mov_b32 s100, 0")
        a("s_and_b32 s17, s2, 7\ns_lshr_b32 s18, s2, 3")
        a("v_readfirstlane_b32 s16, v2")
        a("s_and_b32 s46, s17, 1\ns_lshr_b32 s47, s17, 1\ns_lshr_b32 s48, s18, 3\ns_and_b32 s20, s18, 7")
        a("s_lshl_b32 s19, s47, 2\ns_add_u32 s19, s19, s48")
        self.srd_fin()
        a("s_cmp_eq_u32 s16, 10\ns_cbranch_scc1 L_aux")
        a("s_cmp_ge_u32 s16, 8\ns_cbranch_scc1 L_loader")
        self.in_main = True
        self.phase_a()
        self.in_main = False
        a("L_end:\ns_endpgm")
        self.loader()
        self.aux()
        a.raw(".section .rodata,\"a\"\n.p2align 6")
        a.raw(f".amdhsa_kernel {KNAME}")
        a.raw("  .amdhsa_next_free_vgpr 168\n  .amdhsa_next_free_sgpr 102\n  .amdhsa_accum_offset 168")
        a.raw("  .amdhsa_group_segment_fixed_size 0\n  .amdhsa_kernarg_size 88\n  .amdhsa_user_sgpr_count 2")
        a.raw("  .amdhsa_user_sgpr_kernarg_segment_ptr 1\n  .amdhsa_system_sgpr_workgroup_id_x 1")
        a.raw("  .amdhsa_float_denorm_mode_32 3\n  .amdhsa_float_denorm_mode_16_64 3")
        a.raw(".end_amdhsa_kernel")
        return a.finalize()

    NST = 20
    def dma_x(self, m, half):
        self.a(f"s_add_u32 m0, s26, {(m & 3) * 16384 + 1024 * half}\ns_nop 0")
        self.a(f"buffer_load_dwordx4 v{10 if half == 0 else 9}, s[4:7], s58 offen lds")
        if half == 1: self.a("s_add_u32 s58, s58, 128\ns_cmp_eq_u32 s58, 1280\ns_cselect_b32 s58, 0, s58")
        self.vm_seq.append(("X", m))
    def dma_w(self, t):
        self.a(f"s_add_u32 m0, s27, {(t & 7) * 8192}\ns_mov_b64 exec, s[24:25]")
        self.a("buffer_load_dwordx4 v11, s[8:11], s59 offen lds\ns_mov_b64 exec, -1")
        self.a(f"s_add_u32 s59, s59, 122880\ns_cmp_eq_u32 s59, {20*122880}\ns_cselect_b32 s59, 0, s59")
        self.vm_seq.append(("W", t))
    def vm_need(self, needs):
        if not any(op in needs for op in self.vm_seq): return 0
        last = max(i for i, op in enumerate(self.vm_seq) if op in needs)
        return len(self.vm_seq) - 1 - last
    def a_read_list(self, n):
        if "noreads" in self.opts: return []
        t, s = n >> 1, n & 1
        m, s4 = n >> 2, n & 3
        xo = (m & 3) * 16384
        wo = (t & 7) * 8192 + 4096 * s
        fs = 24 + 16 * (n % 3)
        return [f"ds_read_b128 v[{fs}:{fs+3}], v{12+s4} offset:{xo}",
                f"ds_read_b64_tr_b16 v[{fs+8}:{fs+9}], v16 offset:{wo}",
                f"ds_read_b64_tr_b16 v[{fs+10}:{fs+11}], v16 offset:{wo+1024}",
                f"ds_read_b128 v[{fs+4}:{fs+7}], v{12+s4} offset:{xo+4096}",
                f"ds_read_b64_tr_b16 v[{fs+12}:{fs+13}], v17 offset:{wo}",
                f"ds_read_b64_tr_b16 v[{fs+14}:{fs+15}], v17 offset:{wo+1024}"]
    def a_reads(self, n):
        for l in self.a_read_list(n): self.a(l)
    def col_oct(self, gam, dst, t):
        a = self.a
        a(f"s_mul_i32 {t}, {gam}, 26\ns_lshr_b32 {t}, {t}, 8\ns_add_u32 {t}, {t}, s46\ns_mul_i32 {t}, {t}, 40")
        a(f"s_lshl_b32 {dst}, {gam}, 2\ns_add_u32 {dst}, {dst}, {t}")

    def ln_stats_tasks(self):
        pk = "lnpk" in self.opts
        g = []
        X, Wr = 104, 114
        g.append(("wait",))
        g.append("v_lshlrev_b32 v124, 16, v104\nv_readlane_b32 s51, v124, 0\nv_readlane_b32 s52, v124, 32")
        g.append("v_mov_b32 v138, s52\nv_mov_b32 v139, s51\nv_cmp_gt_u32 vcc, 32, v1\nv_cndmask_b32 v138, v138, v139, vcc")
        for i in range(10):
            g += [f"v_lshlrev_b32 v132, 16, v{X+i}", f"v_and_b32 v133, s28, v{X+i}",
                  f"v_lshlrev_b32 v134, 16, v{Wr+i}", f"v_and_b32 v135, s28, v{Wr+i}",
                  "v_sub_f32 v136, v132, v138", "v_sub_f32 v137, v133, v138"]
            if i == 0:
                g += ["v_mul_f32 v128, v132, v134", "v_add_f32 v124, v136, v137", "v_mul_f32 v126, v136, v136", "v_add_f32 v130, v134, v135",
                      "v_fmac_f32 v128, v133, v135", "v_fmac_f32 v126, v137, v137"]
            else:
                g += ["v_fmac_f32 v128, v132, v134", "v_add_f32 v124, v124, v136", "v_fmac_f32 v126, v136, v136", "v_add_f32 v130, v130, v134",
                      "v_fmac_f32 v128, v133, v135", "v_add_f32 v124, v124, v137", "v_fmac_f32 v126, v137, v137", "v_add_f32 v130, v130, v135"]
        regs = ["v124", "v126", "v128", "v130"]; tm = ["v125", "v127", "v129", "v131"]
        for ctrl in ("quad_perm:[1,0,3,2]", "quad_perm:[2,3,0,1]", "row_half_mirror", "row_mirror"):
            for r in regs: g.append(f"v_add_f32_dpp {r}, {r}, {r} {ctrl} row_mask:0xf bank_mask:0xf")
        for r, t in zip(regs, tm): g.append(f"v_mov_b32 {t}, {r}")
        for r, t in zip(regs, tm): g.append(f"v_permlane16_swap_b32 {r}, {t}")
        for r, t in zip(regs, tm): g.append(f"v_add_f32 {r}, {r}, {t}")
        g += ["v_mul_f32 v124, s44, v124", "v_mul_f32 v132, v124, v124", "v_fma_f32 v126, v126, s44, -v132", "v_max_f32 v126, 0, v126",
              "v_add_f32 v124, v138, v124"]
        g += self.bf16r("v124", "v124") + self.bf16r("v126", "v126") + ["v_add_f32 v126, s45, v126"] + self.bf16r("v126", "v126")
        g += ["v_sqrt_f32 v126, v126"] + self.bf16r("v126", "v126") + ["v_rcp_f32 v132, v126"]
        g += ["v_fma_f32 v128, -v124, v130, v128", "v_mul_f32 v128, v128, v132"]
        g += self.key_lines("v128", "v20", "v141", "v134", "v135")
        g += ["v_lshrrev_b32 v140, 16, v124", "v_or_b32 v140, v140, v126"]
        g.append("s_mov_b32 exec_lo, 1\ns_mov_b32 exec_hi, 1\nds_write_b64 v21, v[140:141]\ns_mov_b64 exec, -1\ns_waitcnt lgkmcnt(0)")
        g.append(("mark",))
        return g

    def ln_wave(self):
        a = self.a
        a("L_ln:")
        a("s_sub_u32 s21, s16, 4")
        a("v_and_b32 v2, 31, v1\nv_lshrrev_b32 v3, 5, v1")
        a("s_lshl_b32 s23, s46, 3\ns_add_u32 s23, s23, s20\ns_lshl_b32 s23, s23, 3\ns_lshl_b32 s29, s21, 1\ns_add_u32 s23, s23, s29")
        a("s_lshl_b32 s29, s19, 7\ns_add_u32 s23, s23, s29\nv_add_u32 v20, s23, v3")
        a("v_mul_u32_u24 v4, 1280, v20\nv_lshl_add_u32 v4, v2, 3, v4\nv_lshlrev_b32 v5, 3, v2")
        a(f"s_lshl_b32 s29, s21, 4\ns_add_u32 s29, s29, {L_OWN}\nv_lshl_add_u32 v21, v3, 3, s29")
        a("s_lshr_b32 s29, s21, 1\ns_lshl_b32 s29, s29, 13\ns_and_b32 s30, s21, 1\ns_lshl_b32 s30, s30, 12\ns_add_u32 s29, s29, s30\ns_add_u32 s29, s29, 65536")
        a("v_lshrrev_b32 v8, 4, v1\nv_lshlrev_b32 v9, 2, v8\nv_and_b32 v10, 15, v1\nv_xor_b32 v9, v9, v10\nv_lshlrev_b32 v9, 4, v9")
        a("v_lshl_add_u32 v9, v8, 8, v9\nv_add_u32 v16, s29, v9")
        a(f"s_mov_b32 s28, 0xffff0000\ns_mov_b32 s44, {f32hex(1.0/640.0)}\ns_mov_b32 s45, {f32hex(1e-5)}\ns_waitcnt lgkmcnt(0)")
        tasks = self.ln_stats_tasks()
        a("s_barrier")
        for i in range(5): a(f"buffer_load_dwordx2 v[{104+2*i}:{105+2*i}], v4, s[4:7], 0 offen offset:{256*i}")
        for i in range(5): a(f"buffer_load_dwordx2 v[{114+2*i}:{115+2*i}], v5, s[36:39], 0 offen offset:{256*i}")
        pk = "lnpk" in self.opts
        for m in range(10):
            if m >= 1: a("s_barrier")
            if "noside" in self.opts:
                self.b_stats = 1; continue
            wo = ((2 * m) & 7) * 8192
            for i in range(4): a(f"ds_read_b128 v[{48+4*i}:{51+4*i}], v16 offset:{wo + 1024*i}")
            for i in range(4):
                a(f"s_waitcnt lgkmcnt({3-i})")
                for d in range(4):
                    src = 48 + 4 * i + d; acc = 72 + 2 * d; t = 64 + 2 * (d & 1)
                    if m == 0 and i == 0:
                        a(f"v_lshlrev_b32 v{acc}, 16, v{src}\nv_and_b32 v{acc+1}, s28, v{src}")
                    elif pk:
                        a(f"v_lshlrev_b32 v{t}, 16, v{src}\nv_and_b32 v{t+1}, s28, v{src}\nv_pk_add_f32 v[{acc}:{acc+1}], v[{acc}:{acc+1}], v[{t}:{t+1}]")
                    else:
                        a(f"v_lshlrev_b32 v{t}, 16, v{src}\nv_and_b32 v{t+1}, s28, v{src}\nv_add_f32 v{acc}, v{acc}, v{t}\nv_add_f32 v{acc+1}, v{acc+1}, v{t+1}")
            q = self.Q1 if m >= self.LM0 else 0
            while tasks and q > 0:
                it = tasks.pop(0)
                if isinstance(it, tuple):
                    if it[0] == "mark": self.b_stats = m
                    else: a("s_waitcnt vmcnt(0)")
                else: a(it); q -= it.count("\n") + 1
        if "noside" not in self.opts:
            assert not tasks
            for p in range(4): a(f"v_permlane32_swap_b32 v{72+2*p}, v{73+2*p}")
            for p in range(4): a(f"v_add_f32 v{72+2*p}, v{72+2*p}, v{73+2*p}")
            a("v_permlane16_swap_b32 v72, v74\nv_permlane16_swap_b32 v76, v78")
            a("v_add_f32 v72, v72, v74\nv_add_f32 v76, v76, v78")
            self.cs_tail()
        a("s_waitcnt lgkmcnt(0)")
        a("s_branch L_a_bE1")

    def cs_tail(self):
        a = self.a
        a("v_and_b32 v7, 15, v1\nv_lshlrev_b32 v7, 3, v7\nv_bfe_u32 v8, v1, 4, 1\nv_lshl_add_u32 v7, v8, 1, v7\nv_add_u32 v7, v7, v3")
        a(f"s_lshl_b32 s29, s21, 9\ns_add_u32 s29, s29, {L_CSW}\nv_lshl_add_u32 v7, v7, 2, s29")
        a("ds_write_b32 v7, v72\nds_write_b32 v7, v76 offset:16")

    def phase_a(self):
        a = self.a
        a("; ---- phase A ----")
        if self.stop_after is None:
            a("s_and_b32 s62, s18, 15\ns_lshl_b32 s29, s46, 4\ns_add_u32 s62, s62, s29\ns_lshr_b32 s63, s18, 4\ns_lshl_b32 s29, s47, 1\ns_add_u32 s63, s63, s29")
            a("s_lshl_b32 s34, s63, 8\ns_lshl_b32 s35, s16, 5\ns_add_u32 s34, s34, s35")
            a("v_and_b32 v2, 31, v1\nv_lshrrev_b32 v3, 5, v1\nv_add_u32 v5, s34, v2\nv_lshlrev_b32 v5, 3, v5\nv_lshl_add_u32 v5, v3, 14, v5")
            a(f"s_mul_i32 s35, s62, {5*16384}\ns_add_u32 s35, s35, {WS_O}\nv_mov_b32 v6, -1\nv_mov_b32 v7, -1\ns_waitcnt lgkmcnt(0)")
            a("buffer_store_dwordx2 v[6:7], v5, s[12:15], s35 offen sc1")
            a("s_add_u32 s35, s35, 32768\nbuffer_store_dwordx2 v[6:7], v5, s[12:15], s35 offen sc1")
            a("s_add_u32 s35, s35, 32768\ns_mov_b32 exec_hi, 0\nbuffer_store_dwordx2 v[6:7], v5, s[12:15], s35 offen sc1\ns_mov_b64 exec, -1")
        a("s_cmp_ge_u32 s16, 4\ns_cbranch_scc1 L_ln")
        a("s_and_b32 s21, s16, 1\ns_lshr_b32 s22, s16, 1")
        self.stamp(0)
        a("v_and_b32 v2, 31, v1\nv_lshrrev_b32 v3, 5, v1")
        a("s_lshl_b32 s29, s22, 6\nv_add_u32 v4, s29, v2\nv_lshlrev_b32 v4, 7, v4")
        a("v_bfe_u32 v5, v1, 1, 3\nv_xor_b32 v8, v3, v5")
        for s4 in range(4):
            a(f"v_xor_b32 v7, {2*s4}, v8\nv_lshl_add_u32 v{12+s4}, v7, 4, v4")
        a("v_bfe_u32 v5, v1, 2, 2")
        a("v_lshl_add_u32 v8, v3, 3, v5\nv_lshlrev_b32 v8, 8, v8")
        a("v_bfe_u32 v9, v1, 4, 1\nv_lshlrev_b32 v9, 5, v9\nv_and_b32 v10, 3, v1\nv_lshlrev_b32 v10, 3, v10\nv_add3_u32 v8, v8, v9, v10")
        a("s_lshl_b32 s29, s21, 1")
        for ntl in range(2):
            a(f"s_add_u32 s30, s29, {ntl}\nv_xor_b32 v7, s30, v5\nv_lshl_add_u32 v7, v7, 6, v8\nv_add_u32 v{16+ntl}, 0x10000, v7")
        self.stamp(4)
        a("s_barrier")
        self.stamp(1)
        self.a_reads(0); self.a_reads(1)
        N = 40
        ACC = lambda ntl, stl: 72 + 32 * ntl + 16 * stl
        for n in range(N):
            m, i4 = n >> 2, n & 3
            fs = 24 + 16 * (n % 3)
            CL = self.stamps and "lloop" in self.opts and m in (4, 5) and i4 == 2
            if CL: self.stamp(5 + 2 * (m - 4))
            if i4 == 2 and m + 1 < 10: a("s_barrier")
            if CL: self.stamp(6 + 2 * (m - 4))
            if self.stamps and "bst" in self.opts and i4 == 2 and m < 9: a(f"s_memrealtime s[{72+2*(m+1)}:{73+2*(m+1)}]")
            a(f"s_waitcnt lgkmcnt({6 if n + 1 < N else 0})")
            rl = self.a_read_list(n + 2) if n + 2 < N else []
            nomf = "nomfma" in self.opts and n > 0
            k = 0
            for ntl in range(2):
                for stl in range(2):
                    A = ACC(ntl, stl)
                    c = "0" if n == 0 else f"v[{A}:{A+15}]"
                    if not nomf: a(f"v_mfma_f32_32x32x16_bf16 v[{A}:{A+15}], v[{fs+8+4*ntl}:{fs+11+4*ntl}], v[{fs+4*stl}:{fs+4*stl+3}], {c}")
                    for l in rl[2*k:2*k+2]: a(l)
                    k += 1
        self.stamp(2)
        a("L_a_bE1:")
        a("s_barrier")
        if "est" in self.opts: self.stamp(5)
        a("s_cmp_ge_u32 s16, 4\ns_cbranch_scc1 L_a_e2")
        a(f"s_lshl_b32 s29, s22, 9\ns_add_u32 s29, s29, {L_STAT}")
        a("v_lshl_add_u32 v4, v2, 3, s29")
        a("ds_read_b64 v[20:21], v4\nds_read_b64 v[22:23], v4 offset:256")
        a(f"s_lshl_b32 s29, s21, 8\ns_add_u32 s29, s29, {L_CSW}\nv_lshl_add_u32 v4, v2, 2, s29")
        for p in range(4):
            a(f"ds_read_b32 v{44+2*p}, v4 offset:{512*p}\nds_read_b32 v{45+2*p}, v4 offset:{512*p+128}")
        a(f"v_mov_b32 v5, {L_FLG}\nds_read_b32 v6, v5")
        a("s_lshl_b32 s33, s19, 7\ns_lshl_b32 s34, s22, 6\ns_add_u32 s33, s33, s34")
        a("v_add_u32 v4, s33, v2\nv_lshlrev_b32 v4, 4, v4\nv_lshl_add_u32 v4, v3, 15, v4")
        for r in (29, 30, 31, 33, 34, 35, 37, 38, 39, 41, 42, 43): a(f"v_mov_b32 v{r}, 0")
        a("v_cmp_gt_u32 vcc, 32, v1\nv_mov_b32 v7, 0")
        a("s_waitcnt lgkmcnt(0)")
        a("v_readfirstlane_b32 s41, v6")
        a("v_add_f32 v24, v44, v46\nv_add_f32 v25, v45, v47\nv_add_f32 v48, v48, v50\nv_add_f32 v49, v49, v51\nv_add_f32 v24, v24, v48\nv_add_f32 v25, v25, v49")
        for ntl in range(2):
            c = 24 + ntl; d = 28 + 4 * ntl
            a(f"v_cvt_pk_bf16_f32 v8, v{c}, v{c}\nv_lshlrev_b32 v8, 16, v8\nv_sub_f32 v8, v{c}, v8\nv_cvt_pk_bf16_f32 v8, v{c}, v8\nv_cndmask_b32 v{d}, v7, v8, vcc")
        for stl in range(2):
            mm = 20 + 2 * stl; d = 36 + 4 * stl
            a(f"v_sub_f32 v8, 0, v{mm}\nv_cvt_pk_bf16_f32 v8, v8, v8\nv_cndmask_b32 v{d}, v7, v8, vcc")
        for ntl in range(2):
            for stl in range(2):
                A = ACC(ntl, stl)
                a(f"v_mfma_f32_32x32x16_bf16 v[{A}:{A+15}], v[{28+4*ntl}:{31+4*ntl}], v[{36+4*stl}:{39+4*stl}], v[{A}:{A+15}]")
        for ntl in range(2):
            Ls = a.label("askip")
            a(f"s_lshl_b32 s29, s20, 2\ns_lshl_b32 s30, s21, 1\ns_add_u32 s29, s29, s30\ns_add_u32 s29, s29, {ntl}")
            a(f"s_cmp_ge_u32 s29, 30\ns_cbranch_scc1 {Ls}")
            self.col_oct("s29", "s31", "s32")
            a(f"s_lshl_b32 s31, s31, 15\ns_add_u32 s31, s31, {WS_QKV}")
            a(f"s_cmp_lt_u32 s29, 10\ns_cselect_b32 s40, {f32hex(QSCALE)}, 1.0")
            a("v_mul_f32 v56, s40, v21\nv_mul_f32 v58, s40, v23\nv_mov_b32 v57, v56\nv_mov_b32 v59, v58")
            for stl in range(2):
                A = ACC(ntl, stl); rr = 56 + 2 * stl
                for p in range(8): a(f"v_pk_mul_f32 v[{A+2*p}:{A+2*p+1}], v[{A+2*p}:{A+2*p+1}], v[{rr}:{rr+1}]")
                d = 136 + 16 * ntl + 8 * stl
                for p in range(8): a(f"v_cvt_pk_bf16_f32 v{d+p}, v{A+2*p}, v{A+2*p+1}")
                for pr in range(2):
                    b0 = d + 4 * pr
                    a(f"v_permlane32_swap_b32 v{b0}, v{b0+2}\nv_permlane32_swap_b32 v{b0+1}, v{b0+3}")
            Lf = a.label("afast"); Ld = a.label("adone")
            a(f"s_cmp_eq_u32 s41, 1\ns_cbranch_scc1 {Lf}")
            for fast in (0, 1):
                if fast: a(f"{Lf}:")
                for pr in range(2):
                    a(f"s_add_u32 s32, s31, {pr*65536}")
                    for stl in range(2):
                        b0 = 136 + 16 * ntl + 8 * stl + 4 * pr
                        a(f"buffer_store_dwordx4 v[{b0}:{b0+3}], v4, s[12:15], s32 offen offset:{512*stl}" + ("" if fast else " sc1"))
                if not fast: a(f"s_branch {Ld}")
            a(f"{Ld}:\n{Ls}:")
        if "est" in self.opts: self.stamp(6)
        a("s_waitcnt vmcnt(0)")
        if "est" in self.opts: self.stamp(7)
        a(f"v_mov_b32 v5, {L_FLG}\nv_mov_b32 v6, 1\ns_mov_b64 exec, 1\nds_add_rtn_u32 v7, v5, v6 offset:44\nds_read_b32 v8, v5 offset:4\ns_waitcnt lgkmcnt(0)")
        a("v_readfirstlane_b32 s35, v7\ns_cmp_lg_u32 s35, 3\ns_cbranch_scc1 L_a_nf")
        a(f"s_lshl_b32 s29, s46, 7\ns_lshl_b32 s30, s19, 3\ns_add_u32 s29, s29, s30\ns_add_u32 s29, s29, s20\ns_lshl_b32 s29, s29, 6\ns_add_u32 s29, s29, {WS_F1}\nv_mov_b32 v6, s29")
        a("s_cmp_eq_u32 s41, 1\ns_cbranch_scc1 L_a_f1f")
        a("buffer_store_dword v8, v6, s[12:15], 0 offen sc1\ns_branch L_a_nf")
        a("L_a_f1f:\nbuffer_store_dword v8, v6, s[12:15], 0 offen")
        a("L_a_nf:\ns_mov_b64 exec, -1")
        a("s_and_b32 s29, s19, 2\ns_cmp_lt_u32 s19, 12\ns_cselect_b32 s29, s29, 0\ns_cmp_lt_u32 s20, 2\ns_cselect_b32 s29, 0, s29\ns_cmp_eq_u32 s29, 0\ns_cbranch_scc1 L_a_e2")
        a("s_lshr_b32 s29, s19, 2\ns_lshl_b32 s29, s29, 8\ns_and_b32 s30, s19, 1\ns_lshl_b32 s30, s30, 7\ns_add_u32 s29, s29, s30\ns_lshl_b32 s30, s22, 6\ns_add_u32 s29, s29, s30")
        a("v_add_u32 v60, s29, v2\nv_lshlrev_b32 v60, 4, v60\nv_mul_u32_u24 v61, 12288, v3\nv_add_u32 v60, v60, v61")
        for ntl in range(2):
            Lh = a.label("hskip")
            a(f"s_lshl_b32 s29, s20, 2\ns_lshl_b32 s30, s21, 1\ns_add_u32 s29, s29, s30\ns_add_u32 s29, s29, {ntl}")
            a(f"s_cmp_ge_u32 s29, 30\ns_cbranch_scc1 {Lh}\ns_cmp_lt_u32 s29, 10\ns_cbranch_scc1 {Lh}")
            self.col_oct("s29", "s31", "s32")
            a(f"s_sub_u32 s31, s31, 80\ns_mul_i32 s31, s31, 12288\ns_add_u32 s31, s31, {WS_HB}")
            for pr in range(2):
                a(f"s_add_u32 s32, s31, {pr*24576}")
                for stl in range(2):
                    b0 = 136 + 16 * ntl + 8 * stl + 4 * pr
                    a(f"buffer_store_dwordx4 v[{b0}:{b0+3}], v60, s[12:15], s32 offen offset:{512*stl} sc1")
            a(f"{Lh}:")
        a("s_waitcnt vmcnt(0)")
        a("v_mov_b32 v6, 1\ns_mov_b64 exec, 1\nds_add_rtn_u32 v7, v5, v6 offset:52\ns_waitcnt lgkmcnt(0)")
        a("v_readfirstlane_b32 s35, v7\ns_cmp_lg_u32 s35, 3\ns_cbranch_scc1 L_a_nh")
        a(f"s_lshl_b32 s29, s46, 7\ns_lshl_b32 s30, s19, 3\ns_add_u32 s29, s29, s30\ns_add_u32 s29, s29, s20\ns_lshl_b32 s29, s29, 6\ns_add_u32 s29, s29, {WS_F1H}\nv_mov_b32 v6, s29")
        a("buffer_store_dword v8, v6, s[12:15], 0 offen sc1")
        a("L_a_nh:\ns_mov_b64 exec, -1")
        a("L_a_e2:")
        self.stamp(3)
        if self.stop_after == "a":
            self.fin_stamps(10 if "bst" in self.opts else (9 if "lloop" in self.opts else (8 if "est" in self.opts else 5)), wave=self.swave)
            a("s_branch L_end")
            self.ln_wave()
            return
        self.phase_b()
        if self.stop_after == "b":
            self.fin_stamps(8, wave=self.swave)
            a("s_branch L_end")
            self.ln_wave()
            return
        self.phase_c()
        self.fin_stamps(10, wave=self.swave)
        a("s_branch L_end")
        self.ln_wave()

    def lg_reset(self): self.lg_seq = []
    def lg_issue(self, tag, n): self.lg_seq += [tag] * n
    def lg_wait(self, tag):
        last = max(i for i, t in enumerate(self.lg_seq) if t == tag)
        self.a(f"s_waitcnt lgkmcnt({min(15, len(self.lg_seq) - 1 - last)})")

    def loader(self):
        a = self.a
        a("L_loader:")
        LS = self.stamps and "lstamp" in self.opts
        if LS: self.stamp(0)
        a("s_setprio 2")
        a("s_sub_u32 s21, s16, 8")
        a("v_lshrrev_b32 v3, 4, v1")
        self.post_srd = []
        self.srd(52, 16, 819200)
        a("s_lshl_b32 s29, s21, 4\ns_add_u32 s29, s29, 40\ns_load_dwordx2 s[56:57], s[0:1], s29\ns_load_dwordx2 s[92:93], s[0:1], 48")
        a("s_mov_b32 s58, 1966080\ns_mov_b32 s59, 0x20000\ns_mov_b32 s94, 1966080\ns_mov_b32 s95, 0x20000")
        a("s_cmp_eq_u32 s21, 1\ns_cbranch_scc1 L_l_w")
        a("v_lshrrev_b32 v2, 3, v1\nv_and_b32 v8, 7, v1\nv_xor_b32 v8, v8, v3")
        a("s_lshl_b32 s23, s19, 7\nv_add_u32 v9, s23, v2\nv_mul_u32_u24 v9, 1280, v9\nv_lshl_add_u32 v10, v8, 4, v9")
        a("v_xor_b32 v8, 4, v8\nv_lshl_add_u32 v11, v8, 4, v9")
        a("s_mov_b64 s[24:25], -1\ns_mov_b32 s26, 0\ns_movk_i32 s27, 10240\ns_movk_i32 s31, 128\ns_mov_b32 s32, 0")
        a("s_branch L_l_go")
        a("L_l_w:")
        a("v_and_b32 v8, 15, v1\nv_lshlrev_b32 v17, 2, v3\nv_xor_b32 v17, v8, v17")
        a("s_lshl_b32 s29, s20, 2\ns_mul_i32 s31, s46, 40")
        a("v_lshrrev_b32 v19, 2, v17\nv_add_u32 v19, s29, v19\nv_cmp_gt_u32 s[24:25], 30, v19")
        a("v_mul_u32_u24 v18, 26, v19\nv_lshrrev_b32 v18, 8, v18\nv_mul_u32_u24 v18, 40, v18")
        a("v_lshl_add_u32 v18, v19, 2, v18\nv_and_b32 v19, 3, v17\nv_add3_u32 v18, v18, v19, s31\nv_lshlrev_b32 v18, 4, v18")
        a("v_mul_u32_u24 v19, 3840, v3\nv_add_u32 v10, v18, v19\nv_mov_b32 v11, v10")
        a("s_mov_b32 s26, 65536\ns_movk_i32 s27, 15360\ns_mov_b32 s31, 245760\ns_mov_b32 s32, 0")
        a("L_l_go:")
        a("s_waitcnt lgkmcnt(0)")
        self.srd_fin()
        def granule(role, m):
            srd = "s[4:7]" if role == 0 else "s[8:11]"
            base = ((m & 3) * 16384) if role == 0 else (65536 + ((2 * m) & 7) * 8192)
            gs = 128 if role == 0 else 245760
            step = 10240 if role == 0 else 15360
            for i in range(16):
                a(f"s_mov_b32 m0, {base + 1024*i}\ns_add_u32 s30, s40, {step*i}")
                a(f"buffer_load_dwordx4 v{10 + (i & 1)}, {srd}, s30 offen lds")
            a(f"s_add_u32 s40, s40, {gs}\ns_cmp_eq_u32 s40, {10*gs}\ns_cselect_b32 s40, 0, s40")
        rh_, rr_ = 0, 0
        for o in self.opts:
            if o.startswith("roth="): rh_ = int(o[5:])
            if o.startswith("rotr="): rr_ = int(o[5:])
        rc, rb = 1, 3
        for o in self.opts:
            if o.startswith("rotc="): rc = int(o[5:])
            if o.startswith("rotb="): rb = int(o[5:])
        rbm = 3
        for o in self.opts:
            if o.startswith("rotbm="): rbm = int(o[6:])
        rcm = 7
        for o in self.opts:
            if o.startswith("rotcm="): rcm = int(o[6:])
        if "norot" not in self.opts:
            a(f"s_and_b32 s41, s20, {rcm}\ns_mul_i32 s40, s41, {rc}\ns_and_b32 s41, s48, {rbm}\ns_mul_i32 s41, s41, {rb}\ns_add_u32 s40, s40, s41")
            a(f"s_mul_i32 s41, s46, {rh_}\ns_add_u32 s40, s40, s41\ns_mul_i32 s41, s47, {rr_}\ns_add_u32 s40, s40, s41")
            a("s_mul_i32 s41, s40, 205\ns_lshr_b32 s41, s41, 11\ns_mul_i32 s41, s41, 10\ns_sub_u32 s40, s40, s41")
        else:
            a("s_mov_b32 s40, 0")
        a("s_movk_i32 s42, 128\ns_cmp_eq_u32 s21, 0\ns_cselect_b32 s41, s42, 245760\ns_mul_i32 s40, s40, s41")
        for role in range(2):
            a(f"L_l_r{role}:") if role == 1 else a("s_cmp_eq_u32 s21, 1\ns_cbranch_scc1 L_l_r1")
            a("s_mov_b64 exec, s[24:25]")
            if "k0late" in self.opts:
                for m in range(3): granule(role, m)
                a("s_waitcnt vmcnt(32)\ns_barrier")
            else:
                if LS: self.stamp(1)
                granule(role, 0)
                if LS: self.stamp(2)
                granule(role, 1)
                if LS: self.stamp(3)
                ms = self.stop_after is None and "nomoe" not in self.opts and "moestart" in self.opts
                if ms:
                    a("s_mov_b64 exec, -1")
                    self.moe_dma(role, pad=True)
                    a("s_mov_b64 exec, s[24:25]")
                a(f"s_waitcnt vmcnt({16 + (16 if role == 0 else 8) * ms})")
                if LS: self.stamp(4)
                a("s_barrier")
                granule(role, 2)
                if LS: self.stamp(5)
            npf = 0
            for m in range(9):
                extra = npf if m >= 7 else 0
                if m == 0 and self.stop_after is None and "nomoe" not in self.opts and "moestart" in self.opts:
                    pass
                LL = self.stamps and "lloop" in self.opts
                if LL and m in (4, 5): self.stamp(0 + 4 * (m - 4) + 0)
                a(f"s_waitcnt vmcnt({(16 if m < 8 else 0) + extra})")
                if LL and m in (4, 5): self.stamp(0 + 4 * (m - 4) + 1)
                a("s_barrier")
                if LL and m in (4, 5): self.stamp(0 + 4 * (m - 4) + 2)
                if m + 3 < 10: granule(role, m + 3)
                if LL and m in (4, 5): self.stamp(0 + 4 * (m - 4) + 3)
                if m == 6 and npf:
                    a("s_mov_b64 exec, -1")
                    self.l2pf(role)
            a("s_mov_b64 exec, -1")
            if self.stop_after is None and "nomoe" not in self.opts and "moelate" not in self.opts and "moestart" not in self.opts: self.moe_dma(role)
            if self.stop_after is None and "wopf" in self.opts:
                a(f"s_mul_i32 s29, s18, 25600\nv_lshlrev_b32 v26, 7, v1\nv_add_u32 v26, s29, v26\ns_mov_b32 s30, {16384*role}\nbuffer_load_dword v27, v26, s[52:55], s30 offen")
                a(f"s_mov_b32 s30, {16384*role + 8192}\n" + ("s_mov_b64 exec, 0xff\n" if role == 1 else "") + "buffer_load_dword v27, v26, s[52:55], s30 offen\ns_mov_b64 exec, -1")
            if role == 0: a("s_branch L_l_j")
        a("L_l_j:")
        if LS:
            self.stamp(6); self.stamp(7)
            self.fin_stamps(8, wave=8, slot=1)
        if self.stamps and "lloop" in self.opts:
            self.fin_stamps(8, wave=8 + ("lw1" in self.opts), slot=1)
        a("s_barrier")
        if self.stop_after == "a":
            a("s_endpgm"); return
        a("s_and_b32 s62, s18, 15\ns_lshl_b32 s29, s46, 4\ns_add_u32 s62, s62, s29")
        a("s_lshr_b32 s63, s18, 4\ns_lshl_b32 s29, s47, 1\ns_add_u32 s63, s63, s29")
        a("s_and_b32 s64, s62, 1\ns_mul_i32 s65, s62, 5\ns_lshr_b32 s65, s65, 1")
        a(f"s_sub_u32 s36, 1, s21\ns_mul_i32 s32, s36, 80\ns_add_u32 s32, s32, 80\ns_add_u32 s32, s32, s65\ns_lshl_b32 s32, s32, 15\ns_add_u32 s32, s32, {WS_QKV}")
        a(f"s_mul_i32 s33, s36, {LB_V}")
        a("s_lshl_b32 s31, s63, 8\ns_sub_u32 s31, s31, 256\ns_lshl_b32 s31, s31, 4\ns_add_u32 s32, s32, s31")
        a("v_lshlrev_b32 v4, 4, v1\nv_add_u32 v7, s33, v4")
        a("s_and_b32 s37, s63, 1\ns_xor_b32 s37, s37, 1\ns_cmp_eq_u32 s63, 0\ns_cselect_b32 s37, 0, s37")
        a(f"s_mul_i32 s44, s36, 80\ns_add_u32 s44, s44, s65\ns_mul_i32 s44, s44, 12288\ns_lshr_b32 s45, s63, 1\ns_sub_u32 s45, s45, 1\ns_lshl_b32 s45, s45, 12\ns_add_u32 s44, s44, s45\ns_add_u32 s44, s44, {WS_HB}")
        a(f"s_sub_u32 s35, 1, s64\ns_mul_i32 s35, s35, {2*PLS+8}\nv_add_u32 v8, s35, v7")
        a("v_mov_b32 v20, 0x3f803f80\ns_cmp_eq_u32 s36, 0\ns_cselect_b32 s35, 0, 0x3f803f80\nv_mov_b32 v21, s35")
        a("v_mov_b32 v22, 0x3f803f80\ns_mov_b32 s34, 0x3f803f80\ns_cselect_b32 s35, 0xf149, s34\nv_mov_b32 v23, s35")
        a("v_mov_b32 v24, 0\nv_mov_b32 v25, 0\nv_mov_b32 v26, 0\nv_mov_b32 v27, 0")
        a(f"v_mov_b32 v5, {L_FLG}")
        a("s_cmp_eq_u32 s21, 0\ns_cbranch_scc1 L_l_b0")
        a(f"s_lshl_b32 s29, s46, 7\ns_lshl_b32 s30, s63, 4\ns_add_u32 s29, s29, s30\ns_sub_u32 s29, s29, 16\ns_lshl_b32 s29, s29, 6\ns_add_u32 s29, s29, {WS_F1}")
        a("v_and_b32 v6, 31, v1\ns_cmp_eq_u32 s63, 0\ns_cselect_b32 s30, 16, 0\nv_max_u32 v6, s30, v6")
        a("s_and_b32 s37, s63, 1\ns_xor_b32 s37, s37, 1\ns_cmp_eq_u32 s63, 0\ns_cselect_b32 s37, 0, s37")
        a(f"v_and_b32 v10, 7, v6\nv_max_u32 v10, 2, v10\nv_and_b32 v11, 24, v6\nv_or_b32 v10, v10, v11\nv_lshlrev_b32 v10, 6, v10\nv_add_u32 v10, {WS_F1H - WS_F1 + (1 << 32) if WS_F1H < WS_F1 else WS_F1H - WS_F1}, v10")
        a("v_lshlrev_b32 v11, 6, v6\nv_cmp_gt_u32 vcc, 16, v6\ns_cmp_eq_u32 s37, 1\ns_cselect_b64 s[38:39], vcc, 0\nv_cndmask_b32 v6, v11, v10, s[38:39]")
        a("ds_read_b32 v9, v5 offset:4\ns_waitcnt lgkmcnt(0)")
        a("L_x_p1:\nbuffer_load_dword v10, v6, s[12:15], s29 offen sc1\ns_waitcnt vmcnt(0)")
        a("v_cmp_ne_u32 vcc, v9, v10\ns_cbranch_vccz L_x_p1_o\ns_add_u32 s100, s100, 1\ns_bitcmp1_b32 s100, 21\ns_cbranch_scc0 L_x_p1\nL_x_p1_o:")
        a("v_mov_b32 v6, 1\ns_mov_b64 exec, 1\nds_write_b32 v5, v6 offset:48")
        if "nomoe" not in self.opts and "moelate" not in self.opts and self.stop_after is None: a("ds_add_u32 v5, v6 offset:36")
        a("s_mov_b64 exec, -1")
        a("s_branch L_l_kv")
        a("L_l_b0:")
        if "nomoe" not in self.opts and "moelate" not in self.opts and self.stop_after is None:
            a("s_waitcnt vmcnt(0)\nv_mov_b32 v6, 1\ns_mov_b64 exec, 1\nds_add_u32 v5, v6 offset:36\ns_mov_b64 exec, -1")
        self.lds_spin("v5", "v6", "s35", "ge", 1, off=48)
        a("L_l_kv:")
        a("s_cmp_eq_u32 s63, 0\ns_cbranch_scc1 L_l_c0")
        a("s_cmp_eq_u32 s37, 1\ns_cbranch_scc1 L_l_ch")
        for blk in range(4):
            for p in range(3):
                a(f"s_add_u32 m0, s33, {p*PLS + blk*1024}\ns_add_u32 s30, s32, {p*32768 + blk*1024}\nbuffer_load_dwordx4 v4, s[12:15], s30 offen sc1 lds")
        a("s_branch L_l_c1")
        a("L_l_ch:")
        for blk in range(4):
            for p in range(3):
                a(f"s_add_u32 m0, s33, {p*PLS + blk*1024}\ns_add_u32 s30, s44, {p*12288 + blk*1024}\nbuffer_load_dwordx4 v4, s[12:15], s30 offen sc1 lds")
        a("s_branch L_l_c1")
        a("L_l_c0:")
        for blk in range(4):
            for p in range(3): a(f"ds_write_b128 v7, v[24:27] offset:{p*PLS + blk*1024}")
        a("L_l_c1:")
        for blk in range(4, 8):
            for p in range(3):
                a(f"s_add_u32 m0, s33, {p*PLS + blk*1024}\ns_add_u32 s30, s32, {p*32768 + blk*1024}\nbuffer_load_dwordx4 v4, s[12:15], s30 offen sc1 lds")
        a("s_cmp_eq_u32 s21, 0\ns_cbranch_scc1 L_l_noq")
        a(f"s_lshl_b32 s35, s65, 15\ns_lshl_b32 s34, s63, 12\ns_add_u32 s35, s35, s34\ns_add_u32 s35, s35, {WS_QKV}")
        for p in range(3):
            for blk in range(4):
                a(f"s_mov_b32 m0, {LQ + p*4096 + blk*1024}\ns_add_u32 s30, s35, {p*32768 + blk*1024}\nbuffer_load_dwordx4 v4, s[12:15], s30 offen sc1 lds")
        a("s_branch L_l_w0")
        a("L_l_noq:")
        a("L_l_w0:")
        a("s_waitcnt vmcnt(0) lgkmcnt(0)")
        a("s_cmp_eq_u32 s63, 0\ns_cbranch_scc1 L_l_p0")
        for blk in range(4): a(f"ds_write_b64 v8, v[20:21] offset:{blk*1024}")
        a("s_branch L_l_p1")
        a("L_l_p0:")
        for blk in range(4): a(f"ds_write_b64 v8, v[22:23] offset:{blk*1024}")
        a("L_l_p1:")
        for blk in range(4, 8): a(f"ds_write_b64 v8, v[20:21] offset:{blk*1024}")
        a("v_mov_b32 v6, 1\ns_waitcnt lgkmcnt(0)\ns_mov_b64 exec, 1\nds_add_u32 v5, v6 offset:8\ns_mov_b64 exec, -1")
        if self.stop_after == "b":
            a("s_endpgm"); return
        if "nomoe" not in self.opts and "moelate" in self.opts:
            a("s_cmp_eq_u32 s21, 0\ns_cbranch_scc0 L_l_mr1")
            self.moe_dma(0)
            a("s_branch L_l_mrd\nL_l_mr1:")
            self.moe_dma(1)
            a("L_l_mrd:")
            a("s_waitcnt vmcnt(0)\nv_mov_b32 v6, 1\ns_mov_b64 exec, 1\nds_add_u32 v5, v6 offset:36\ns_mov_b64 exec, -1")
        self.wo_setup()
        if "nomoe" not in self.opts and "wogate" in self.opts:
            self.lds_spin("v5", "v6", "s35", "ge", 1, off=56)
        a("s_lshl_b32 s34, s21, 10\ns_mul_i32 s35, s21, 10240")
        for q in range(28):
            a(f"s_add_u32 m0, s34, {LA1 + q*2048}\ns_add_u32 s30, s35, {q*20480}\nbuffer_load_dwordx4 v152, s[52:55], s30 offen lds")
        self.lds_spin("v5", "v6", "s35", "ge", 8, off=40)
        a("s_mul_i32 s35, s21, 40960")
        for q in range(10):
            a(f"s_add_u32 m0, s34, {LBB + q*2048}\ns_add_u32 s30, s35, {q*81920}\nbuffer_load_dwordx4 v153, s[52:55], s30 offen lds")
        a("s_cmp_eq_u32 s21, 1\ns_cbranch_scc1 L_l_poll")
        self.lds_spin("v5", "v6", "s35", "ge", 8, off=12)
        for q in range(12):
            for par in range(2):
                i = 56 + 2 * q + par
                a(f"s_mov_b32 m0, {LA2 + (i-56)*1024}\ns_mov_b32 s30, {i*10240}\nbuffer_load_dwordx4 v{152 if par == 0 else 154}, s[52:55], s30 offen lds")
        a("s_waitcnt vmcnt(0)\nv_mov_b32 v6, 1\ns_mov_b64 exec, 1\nds_add_u32 v5, v6 offset:32\ns_mov_b64 exec, -1\ns_endpgm")
        a("L_l_poll:")
        a("s_waitcnt vmcnt(0)\nv_mov_b32 v6, 1\ns_mov_b64 exec, 1\nds_add_u32 v5, v6 offset:32\ns_mov_b64 exec, -1")
        self.lds_spin("v5", "v6", "s35", "ge", 8, off=12)
        a(f"s_lshl_b32 s29, s17, 14\ns_lshr_b32 s30, s18, 3\ns_lshl_b32 s30, s30, 7\ns_add_u32 s29, s29, s30\ns_add_u32 s29, s29, {WS_F2}")
        a("v_lshrrev_b32 v26, 1, v1\nv_lshlrev_b32 v26, 9, v26\nv_and_b32 v27, 1, v1\nv_lshl_add_u32 v26, v27, 6, v26\nds_read_b32 v6, v5 offset:4\ns_waitcnt lgkmcnt(0)")
        a("L_c_poll:\nbuffer_load_dword v27, v26, s[12:15], s29 offen sc1\ns_waitcnt vmcnt(0)")
        a("v_cmp_ne_u32 vcc, v6, v27\ns_cbranch_vccz L_c_poll_o\ns_add_u32 s100, s100, 1\ns_bitcmp1_b32 s100, 21\ns_cbranch_scc0 L_c_poll\nL_c_poll_o:")
        a("v_mov_b32 v6, 1\ns_mov_b64 exec, 1\nds_write_b32 v5, v6 offset:16\ns_mov_b64 exec, -1")
        a("s_endpgm")

    def moe_dma(self, role, pad=False):
        a = self.a
        Lx = a.label("mx")
        if not pad: a(f"s_cmp_ge_u32 s2, 240\ns_cbranch_scc1 {Lx}")
        a("s_min_u32 s43, s2, 239")
        a("v_bfe_u32 v12, v1, 4, 1\nv_lshlrev_b32 v12, 1, v12\nv_and_b32 v13, 7, v1\nv_xor_b32 v12, v12, v13\nv_lshlrev_b32 v12, 4, v12\nv_xor_b32 v13, 64, v12\nv_lshrrev_b32 v14, 3, v1")
        if role == 0:
            a("s_mul_i32 s29, s43, 171\ns_lshr_b32 s29, s29, 12\ns_mul_i32 s30, s29, 24\ns_sub_u32 s30, s43, s30")
            a(f"s_mul_i32 s29, s29, {64*3072}\ns_lshl_b32 s30, s30, 7\ns_add_u32 s29, s29, s30")
            a("v_mul_u32_u24 v14, 3072, v14\nv_add_u32 v12, v12, v14\nv_add_u32 v13, v13, v14")
            for mat, srd in ((0, "s[56:59]"), (1, "s[92:95]")):
                for i in range(8):
                    a(f"s_mov_b32 m0, {L_AUX + mat*8192 + 1024*i}\ns_add_u32 s30, s29, {i*8*3072}\nbuffer_load_dwordx4 v{12 + (i & 1)}, {srd}, s30 offen lds")
        else:
            a("s_mul_i32 s29, s43, 205\ns_lshr_b32 s29, s29, 11\ns_mul_i32 s30, s29, 10\ns_sub_u32 s30, s43, s30")
            a(f"s_mul_i32 s29, s29, {64*1280}\ns_lshl_b32 s30, s30, 7\ns_add_u32 s29, s29, s30")
            a("v_mul_u32_u24 v14, 1280, v14\nv_add_u32 v12, v12, v14\nv_add_u32 v13, v13, v14")
            for i in range(8):
                a(f"s_mov_b32 m0, {L_AUX + 16384 + 1024*i}\ns_add_u32 s30, s29, {i*8*1280}\nbuffer_load_dwordx4 v{12 + (i & 1)}, s[56:59], s30 offen lds")
        a(f"{Lx}:")

    def wo_setup(self):
        a = self.a
        a("s_and_b32 s67, s18, 7\ns_mul_i32 s69, s67, 160")
        for dst, par in (("v152", "s21"), ("v154", "1")):
            a(f"v_bfe_u32 v19, v1, 4, 1\ns_lshl_b32 s29, {par}, 1\nv_or_b32 v19, s29, v19\nv_lshlrev_b32 v19, 1, v19")
            a(f"v_and_b32 {dst}, 7, v1\nv_xor_b32 {dst}, {dst}, v19\nv_lshlrev_b32 {dst}, 4, {dst}")
            a(f"v_lshrrev_b32 v19, 3, v1\nv_mul_u32_u24 v19, 1280, v19\nv_add3_u32 {dst}, {dst}, v19, s69")
        a("v_lshrrev_b32 v19, 1, v1\nv_bfe_u32 v153, v19, 3, 1\nv_lshlrev_b32 v153, 2, v153\nv_xor_b32 v19, v19, v153\nv_mul_u32_u24 v19, 1280, v19")
        a("v_and_b32 v153, 1, v1\nv_lshlrev_b32 v153, 4, v153\nv_add3_u32 v153, v153, v19, s69\nv_add_u32 v153, 128, v153")

    def phase_b(self):
        a = self.a
        a("; ---- phase B ----")
        a("s_waitcnt vmcnt(0)")
        a("s_and_b32 s62, s18, 15\ns_lshl_b32 s29, s46, 4\ns_add_u32 s62, s62, s29")
        a("s_lshr_b32 s63, s18, 4\ns_lshl_b32 s29, s47, 1\ns_add_u32 s63, s63, s29")
        a("s_and_b32 s64, s62, 1\ns_mul_i32 s65, s62, 5\ns_lshr_b32 s65, s65, 1")
        a("v_and_b32 v2, 31, v1\nv_lshrrev_b32 v3, 5, v1")
        a(f"v_lshlrev_b32 v5, 2, v3\nv_sub_u32 v5, v2, v5\nv_mov_b32 v6, {NEGF}\nv_mov_b32 v7, 0")
        for r in range(16):
            cr = 8 * (r >> 2) + (r & 3)
            a(f"v_cmp_le_i32 vcc, {cr}, v5")
            a(f"v_cndmask_b32 v{108+r}, v6, v7, vcc\nv_cndmask_b32 v{124+r}, v7, v6, vcc")
        a("s_lshl_b32 s29, s16, 9")
        a(f"v_add_u32 v5, s64, v3\nv_mul_u32_u24 v5, {PLS}, v5\nv_lshl_add_u32 v16, v2, 4, v5\nv_add_u32 v16, s29, v16")
        a(f"s_sub_u32 s30, 1, s64\ns_mul_i32 s30, s30, {2*PLS}\ns_add_u32 s30, s30, s29\nv_lshl_add_u32 v17, v2, 4, s30")
        a("v_bfe_u32 v5, v1, 4, 1\nv_and_b32 v6, 3, v1\nv_lshl_add_u32 v5, v5, 2, v6")
        a("v_add_u32 v6, s64, v5")
        a("s_mul_i32 s30, s64, 6\nv_subrev_u32 v7, s30, v6\nv_cmp_eq_u32 vcc, 5, v5\nv_cndmask_b32 v6, v6, v7, vcc")
        a(f"v_lshrrev_b32 v7, 1, v6\nv_mul_u32_u24 v7, {PLS}, v7\nv_and_b32 v6, 1, v6\nv_lshl_add_u32 v7, v6, 3, v7")
        a("v_and_b32 v6, 1, v5\nv_lshlrev_b32 v6, 3, v6\nv_add_u32 v6, 192, v6")
        a("v_cmp_lt_u32 vcc, 5, v5\nv_cndmask_b32 v7, v7, v6, vcc")
        a("v_bfe_u32 v6, v1, 2, 2\nv_lshl_add_u32 v6, v3, 2, v6\nv_lshl_add_u32 v7, v6, 4, v7")
        a(f"s_add_u32 s30, s29, {LB_V}\nv_add_u32 v18, s30, v7")
        a("s_and_b32 s67, s18, 7\ns_lshr_b32 s68, s18, 3\ns_mul_i32 s69, s67, 160")
        a("s_and_b32 s29, s16, 3\ns_lshl_b32 s29, s29, 4\ns_lshl_b32 s30, s17, 8\ns_add_u32 s29, s29, s30\ns_lshl_b32 s30, s68, 6\ns_add_u32 s29, s29, s30")
        a("v_and_b32 v19, 15, v1\nv_add_u32 v163, s29, v19\nv_mul_u32_u24 v162, 1280, v163\nv_lshrrev_b32 v19, 4, v1\nv_lshl_add_u32 v162, v19, 3, v162")
        a("s_lshr_b32 s29, s16, 2\ns_mul_i32 s29, s29, 96\ns_add_u32 s29, s29, s69\nv_add_u32 v162, s29, v162")
        for i in range(3):
            a(f"buffer_load_dwordx2 v[{154+2*i}:{155+2*i}], v162, s[4:7], 0 offen offset:{32*i}")
        a("v_lshlrev_b32 v19, 4, v163\nbuffer_load_dwordx2 v[160:161], v19, s[12:15], 0 offen sc1")
        a("s_lshl_b32 s34, s63, 8\ns_lshl_b32 s35, s16, 5\ns_add_u32 s34, s34, s35")
        a(f"s_lshl_b32 s29, s16, 9\ns_add_u32 s29, s29, {LQ}\nv_add_u32 v5, s64, v3\nv_lshlrev_b32 v5, 12, v5\nv_lshl_add_u32 v5, v2, 4, v5\nv_add_u32 v6, s29, v5")
        a("s_sub_u32 s30, 1, s64\ns_lshl_b32 s30, s30, 13\ns_add_u32 s30, s30, s29\nv_lshl_add_u32 v7, v2, 4, s30")
        a(f"v_mov_b32 v5, {L_FLG}")
        self.stamp(5)
        self.lds_spin("v5", "v19", "s35", "ge", 2, off=8)
        self.stamp(6)
        a("ds_read_b128 v[8:11], v6\nds_read_b128 v[12:15], v7\ns_waitcnt lgkmcnt(0)")
        a("v_mov_b32 v6, 1\ns_mov_b64 exec, 1\nds_add_u32 v5, v6 offset:40\ns_mov_b64 exec, -1")
        a("v_cmp_gt_u32 vcc, 32, v1\nv_mov_b32 v5, 0\nv_mov_b32 v6, 0x3f80")
        a("s_cmp_eq_u32 s64, 1\ns_cbranch_scc1 L_b_qodd")
        a("v_cndmask_b32 v12, v5, v12, vcc\nv_cndmask_b32 v13, v5, v13, vcc\nv_mov_b32 v14, 0\nv_cndmask_b32 v15, v5, v6, vcc")
        a("s_branch L_b_qd")
        a("L_b_qodd:")
        a("v_mov_b32 v12, 0\nv_cndmask_b32 v13, v5, v6, vcc\nv_cndmask_b32 v14, v5, v14, vcc\nv_cndmask_b32 v15, v5, v15, vcc")
        a("L_b_qd:")
        KS = lambda kt: 20 + 8 * (kt & 1)
        VS = lambda kt: 36 + 8 * (kt & 1)
        SB = lambda kt: 52 + 16 * (kt & 1)
        def rdK(ps, kt):
            a(f"ds_read_b128 v[{KS(kt)}:{KS(kt)+3}], v16 offset:{512*kt}\nds_read_b128 v[{KS(kt)+4}:{KS(kt)+7}], v17 offset:{512*kt}")
            self.lg_issue(("K", ps, kt), 2)
        def rdV(kt):
            b = VS(kt)
            for j2 in range(2):
                for jj in range(2):
                    a(f"ds_read_b64_tr_b16 v[{b+4*j2+2*jj}:{b+4*j2+2*jj+1}], v18 offset:{512*kt+256*j2+128*jj}")
            self.lg_issue(("V", kt), 4)
        def cop(kt): return "v[124:139]" if kt == 0 else ("v[108:123]" if kt == 8 else "0")
        def qk1(kt): a(f"v_mfma_f32_32x32x16_bf16 v[{SB(kt)}:{SB(kt)+15}], v[{KS(kt)}:{KS(kt)+3}], v[8:11], {cop(kt)}")
        def qk2(kt): a(f"v_mfma_f32_32x32x16_bf16 v[{SB(kt)}:{SB(kt)+15}], v[{KS(kt)+4}:{KS(kt)+7}], v[12:15], v[{SB(kt)}:{SB(kt)+15}]")
        def maxes(kt):
            b = SB(kt)
            for i in range(8):
                acc = 140 + (i & 1)
                if kt == 0 and i < 2: a(f"v_max_f32 v{acc}, v{b+2*i}, v{b+2*i+1}")
                else: a(f"v_max3_f32 v{acc}, v{b+2*i}, v{b+2*i+1}, v{acc}")
        def ex(kt, r0, r1):
            for r in range(r0, r1): a(f"v_exp_f32 v{SB(kt)+r}, v{SB(kt)+r}")
        def cv(kt, i0, i1):
            for i in range(i0, i1): a(f"v_cvt_pk_bf16_f32 v{84+i}, v{SB(kt)+2*i}, v{SB(kt)+2*i+1}")
        self.lg_reset()
        rdK(1, 0); rdK(1, 1)
        for kt in range(9):
            self.lg_wait(("K", 1, kt))
            qk1(kt); qk2(kt)
            if kt + 2 <= 8: rdK(1, kt + 2)
            if kt == 7: rdK(2, 1)
            if kt == 8: rdK(2, 0); rdV(0); rdV(1)
            if kt >= 1: maxes(kt - 1)
        maxes(8)
        a("v_max_f32 v140, v140, v141\nv_mov_b32 v141, v140\nv_permlane32_swap_b32 v140, v141\nv_max_f32 v140, v140, v141")
        a("v_sub_f32 v140, 0, v140")
        a("v_cvt_pk_bf16_f32 v141, v140, v140\nv_lshlrev_b32 v141, 16, v141\nv_sub_f32 v141, v140, v141")
        a("v_cvt_pk_bf16_f32 v141, v140, v141")
        a("v_cmp_gt_u32 vcc, 32, v1\nv_mov_b32 v142, 0\nv_cndmask_b32 v141, v142, v141, vcc")
        a("s_cmp_eq_u32 s64, 1\ns_cbranch_scc1 L_b_mo\nv_mov_b32 v14, v141\ns_branch L_b_md\nL_b_mo:\nv_mov_b32 v12, v141\nL_b_md:")
        a("s_nop 1")
        self.lg_wait(("K", 2, 0))
        qk1(0); qk2(0)
        rdK(2, 2)
        for kt in range(9):
            if kt < 8:
                self.lg_wait(("K", 2, kt + 1)); qk1(kt + 1)
            ex(kt, 0, 4)
            if kt < 8:
                qk2(kt + 1)
                if kt + 3 <= 8: rdK(2, kt + 3)
            ex(kt, 4, 8); cv(kt, 0, 4); ex(kt, 8, 10)
            self.lg_wait(("V", kt))
            a(f"v_mfma_f32_32x32x16_bf16 v[92:107], v[{VS(kt)}:{VS(kt)+3}], v[84:87], {'0' if kt == 0 else 'v[92:107]'}")
            ex(kt, 10, 16); cv(kt, 4, 8)
            a(f"v_mfma_f32_32x32x16_bf16 v[92:107], v[{VS(kt)+4}:{VS(kt)+7}], v[88:91], v[92:107]")
            if kt + 2 <= 8: rdV(kt + 2)
        self.stamp(7)
        a("v_mov_b32 v140, v100\nv_mov_b32 v141, v100\nv_permlane32_swap_b32 v140, v141")
        a("v_rcp_f32 v141, v141")
        for r in range(12): a(f"v_mul_f32 v{92+r}, v{92+r}, v141")
        for i in range(6): a(f"v_cvt_pk_bf16_f32 v{84+i}, v{92+2*i}, v{92+2*i+1}")
        a("v_add_u32 v5, s34, v2\nv_lshlrev_b32 v5, 3, v5\nv_lshl_add_u32 v5, v3, 14, v5")
        a(f"s_mul_i32 s35, s62, {5*16384}\ns_add_u32 s35, s35, {WS_O}")
        a("buffer_store_dwordx2 v[84:85], v5, s[12:15], s35 offen sc1")
        a("s_add_u32 s35, s35, 32768\nbuffer_store_dwordx2 v[86:87], v5, s[12:15], s35 offen sc1")
        a("s_add_u32 s35, s35, 32768\ns_mov_b32 exec_hi, 0\nbuffer_store_dwordx2 v[88:89], v5, s[12:15], s35 offen sc1\ns_mov_b64 exec, -1")
        a(f"v_mov_b32 v5, {L_FLG}\nds_read_b32 v7, v5 offset:4")
        a(f"s_lshl_b32 s35, s63, 5\ns_add_u32 s35, s35, s62\ns_lshl_b32 s35, s35, 3\ns_add_u32 s35, s35, s16\ns_lshl_b32 s35, s35, 6\ns_add_u32 s35, s35, {WS_F2}\nv_mov_b32 v6, s35")
        a("s_waitcnt lgkmcnt(0)\ns_mov_b64 exec, 1\nbuffer_store_dword v7, v6, s[12:15], 0 offen sc1")
        a("v_mov_b32 v6, 1\nds_add_u32 v5, v6 offset:12\ns_mov_b64 exec, -1")
        a("L_b_nf:")
        self.stamp(8)

    def phase_c(self):
        a = self.a
        a("; ---- phase C ----")
        self.post_srd = []
        self.srd(56, 64, 2621440)
        a("s_and_b32 s21, s16, 3\ns_lshr_b32 s22, s16, 2")
        a("v_and_b32 v2, 15, v1\nv_lshrrev_b32 v3, 4, v1\nv_mov_b32 v8, v163\nv_mov_b32 v10, v162")
        a(f"v_mov_b32 v5, {L_FLG}")
        a(f"s_mul_i32 s30, s22, {80*16384}\ns_add_u32 s30, s30, {WS_O}\nv_lshlrev_b32 v20, 3, v8\nv_lshl_add_u32 v20, v3, 15, v20")
        a("v_bfe_u32 v21, v1, 2, 2")
        a("v_lshrrev_b32 v22, 1, v21\nv_and_b32 v23, 1, v3\nv_lshl_or_b32 v22, v23, 1, v22")
        a("v_lshl_add_u32 v23, v3, 3, v21")
        a("v_and_b32 v24, 3, v1\nv_lshlrev_b32 v24, 3, v24")
        a("v_lshlrev_b32 v25, 7, v23\nv_lshl_add_u32 v25, v22, 5, v25\nv_add_u32 v25, v25, v24")
        a(f"s_mul_i32 s31, s22, {320*128}\ns_add_u32 s31, s31, {LA1}")
        a(f"s_cmp_eq_u32 s22, 0\ns_cselect_b32 s32, {LA1 + 128*128}, {LA2}")
        for nt in range(4):
            a(f"v_xor_b32 v26, {nt << 5}, v25\nv_add_u32 v{28+nt}, s31, v26\nv_add_u32 v{32+nt}, s32, v26")
        a("v_and_b32 v26, 1, v3\nv_lshlrev_b32 v26, 2, v26")
        a(f"s_mul_i32 s31, s22, {320*32}\ns_add_u32 s31, s31, {LBB}")
        for jj in range(2):
            a(f"v_xor_b32 v27, {4*jj}, v26\nv_add_u32 v27, v27, v23\nv_lshl_add_u32 v27, v27, 5, v24\nv_add_u32 v{36+jj}, s31, v27")
        a("s_waitcnt lgkmcnt(0)")
        self.srd_fin()
        a("ds_read_b32 v6, v5 offset:4\nv_lshlrev_b32 v11, 4, v8\ns_waitcnt lgkmcnt(0)")
        a("L_c_st:\nv_cmp_ne_u32 vcc, v6, v161\ns_cbranch_vccz L_c_stok")
        a("buffer_load_dwordx2 v[160:161], v11, s[12:15], 0 offen sc1\ns_waitcnt vmcnt(0)\ns_add_u32 s100, s100, 1\ns_bitcmp1_b32 s100, 21\ns_cbranch_scc0 L_c_st\nL_c_stok:")
        a("v_lshlrev_b32 v22, 16, v160\nv_and_b32 v23, 0xffff0000, v160\nv_rcp_f32 v23, v23")
        for i in range(3):
            for d in range(2):
                a(f"v_lshlrev_b32 v{40+4*i+2*d}, 16, v{154+2*i+d}\nv_and_b32 v{41+4*i+2*d}, 0xffff0000, v{154+2*i+d}")
            for d in range(2):
                e = 40 + 4 * i + 2 * d; o = 52 + 4 * i + 2 * d
                a(f"v_sub_f32 v{o}, v{e}, v22\nv_sub_f32 v{o+1}, v{e+1}, v22")
                a(f"v_cvt_pk_bf16_f32 v26, v{o}, v{o+1}\nv_lshlrev_b32 v{o}, 16, v26\nv_and_b32 v{o+1}, 0xffff0000, v26")
                a(f"v_mul_f32 v{o}, v{o}, v23\nv_mul_f32 v{o+1}, v{o+1}, v23")
                a(f"v_cvt_pk_bf16_f32 v26, v{o}, v{o+1}\nv_lshlrev_b32 v{o}, 16, v26\nv_and_b32 v{o+1}, 0xffff0000, v26")
        self.lds_spin("v5", "v6", "s35", "ge", 1, off=16)
        self.stamp(9)
        a("L_c_retry:\nv_mov_b32 v38, 0")
        for sl in range(10):
            a(f"s_add_u32 s31, s30, {sl*8*16384}\nbuffer_load_dwordx2 v[{64+4*sl}:{65+4*sl}], v20, s[12:15], s31 offen sc1")
            a(f"s_add_u32 s31, s31, 16384\nbuffer_load_dwordx2 v[{66+4*sl}:{67+4*sl}], v20, s[12:15], s31 offen sc1")
        self.lds_spin("v5", "v6", "s35", "ge", 2, off=32)
        self.lg_reset()
        def rdW(sl):
            b = 104 + 20 * (sl & 1)
            for nt in range(4):
                ar = (28 if sl < 4 else 32) + nt
                off = (sl if sl < 4 else sl - 4) * 4096
                a(f"ds_read_b64_tr_b16 v[{b+4*nt}:{b+4*nt+1}], v{ar} offset:{off}\nds_read_b64_tr_b16 v[{b+4*nt+2}:{b+4*nt+3}], v{ar} offset:{off+512}")
            a(f"ds_read_b64_tr_b16 v[{b+16}:{b+17}], v36 offset:{1024*sl}\nds_read_b64_tr_b16 v[{b+18}:{b+19}], v37 offset:{1024*sl}")
            self.lg_issue(("W", sl), 10)
        rdW(0)
        for sl in range(10):
            if sl + 1 < 10: rdW(sl + 1)
            self.lg_wait(("W", sl))
            a(f"s_waitcnt vmcnt({2 * (9 - sl)})")
            b = 104 + 20 * (sl & 1)
            for nt in range(5):
                c = "0" if sl == 0 else f"v[{144+4*nt}:{147+4*nt}]"
                a(f"v_mfma_f32_16x16x32_bf16 v[{144+4*nt}:{147+4*nt}], v[{b+4*nt}:{b+4*nt+3}], v[{64+4*sl}:{67+4*sl}], {c}")
            a(f"v_max3_u32 v38, v{64+4*sl}, v{65+4*sl}, v38\nv_max3_u32 v38, v{66+4*sl}, v{67+4*sl}, v38")
        a("v_cmp_eq_u32 vcc, -1, v38")
        self.guard_br("L_c_retry")
        a(f"s_mul_i32 s29, s16, 3072\ns_add_u32 s29, s29, {L_EX}\nv_lshlrev_b32 v26, 4, v1\nv_add_u32 v26, s29, v26")
        a("s_cmp_eq_u32 s22, 0\ns_cbranch_scc0 L_c_x1")
        a("ds_write_b128 v26, v[156:159]\nds_write_b128 v26, v[160:163] offset:1024")
        a("s_branch L_c_x2")
        a("L_c_x1:")
        a("ds_write_b128 v26, v[144:147]\nds_write_b128 v26, v[148:151] offset:1024\nds_write_b128 v26, v[152:155] offset:2048")
        for k in range(8): a(f"v_mov_b32 v{144+k}, v{156+k}")
        a("L_c_x2:")
        a(f"s_lshl_b32 s29, s16, 2\ns_add_u32 s29, s29, {L_FLG+64}\nv_mov_b32 v27, s29\nv_mov_b32 v6, 1\ns_waitcnt lgkmcnt(0)")
        a("s_mov_b64 exec, 1\nds_write_b32 v27, v6\ns_mov_b64 exec, -1")
        a(f"s_xor_b32 s31, s16, 4\ns_lshl_b32 s29, s31, 2\ns_add_u32 s29, s29, {L_FLG+64}\nv_mov_b32 v27, s29")
        self.lds_spin("v27", "v6", "s35", "ge", 1)
        a(f"s_mul_i32 s29, s31, 3072\ns_add_u32 s29, s29, {L_EX}\nv_lshlrev_b32 v26, 4, v1\nv_add_u32 v26, s29, v26")
        a("ds_read_b128 v[104:107], v26\nds_read_b128 v[108:111], v26 offset:1024\nds_read_b128 v[112:115], v26 offset:2048")
        a("s_waitcnt lgkmcnt(0)")
        for k in range(12): a(f"v_add_f32 v{144+k}, v{144+k}, v{104+k}")
        self.moe_hook()
        for i in range(3):
            if i == 2: a("s_cmp_eq_u32 s22, 1\ns_cbranch_scc1 L_c_done")
            for d in range(2):
                ac = 144 + 4 * i + 2 * d; e = 40 + 4 * i + 2 * d; o = 52 + 4 * i + 2 * d
                a(f"v_cvt_pk_bf16_f32 v26, v{ac}, v{ac+1}\nv_lshlrev_b32 v{ac}, 16, v26\nv_and_b32 v{ac+1}, 0xffff0000, v26")
                a(f"v_add_f32 v{ac}, v{ac}, v{e}\nv_add_f32 v{ac+1}, v{ac+1}, v{e+1}")
                a(f"v_cvt_pk_bf16_f32 v26, v{ac}, v{ac+1}\nv_lshlrev_b32 v{ac}, 16, v26\nv_and_b32 v{ac+1}, 0xffff0000, v26")
                a(f"v_add_f32 v{ac}, v{ac}, v{o}\nv_add_f32 v{ac+1}, v{ac+1}, v{o+1}")
                a(f"v_cvt_pk_bf16_f32 v{104+2*i+d}, v{ac}, v{ac+1}")
            a(f"buffer_store_dwordx2 v[{104+2*i}:{105+2*i}], v10, s[56:59], 0 offen offset:{32*i}")
        a("L_c_done:")

    def moe_hook(self):
        a = self.a
        if "nomoe" in self.opts: return
        self.lds_spin("v5", "v6", "s35", "ge", 1, off=20)
        a("ds_read_b64 v[26:27], v5 offset:24\nds_read_b32 v6, v5 offset:4\ns_waitcnt lgkmcnt(0)")
        a("v_cmp_eq_u32 s[30:31], v26, v8\nv_cmp_eq_u32 s[32:33], v27, v8\ns_or_b64 s[34:35], s[30:31], s[32:33]")
        a("s_cmp_eq_u64 s[34:35], 0\ns_cbranch_scc1 L_c_nomoe")
        a(f"s_lshl_b32 s29, s69, 2\ns_mul_i32 s36, s22, 384\ns_add_u32 s29, s29, s36\ns_add_u32 s29, s29, {WS_UPD}\nv_lshlrev_b32 v7, 5, v3")
        a("L_c_upd:")
        for i in range(3):
            a(f"buffer_load_dwordx4 v[{104+8*i}:{107+8*i}], v7, s[12:15], s29 offen offset:{128*i} sc1")
            a(f"buffer_load_dwordx4 v[{108+8*i}:{111+8*i}], v7, s[12:15], s29 offen offset:{128*i+16} sc1")
        a("s_waitcnt vmcnt(0)")
        a("v_cmp_ne_u32 vcc, v6, v105")
        regs = [105 + 2 * k for k in range(1, 8)]
        for r in regs: a(f"v_cmp_ne_u32 s[36:37], v6, v{r}\ns_or_b64 vcc, vcc, s[36:37]")
        L = a.label("u3")
        a(f"s_cmp_eq_u32 s22, 1\ns_cbranch_scc1 {L}")
        for r in [121, 123, 125, 127]: a(f"v_cmp_ne_u32 s[36:37], v6, v{r}\ns_or_b64 vcc, vcc, s[36:37]")
        a(f"{L}:")
        a("s_and_b64 vcc, vcc, s[34:35]\ns_cbranch_vccz L_c_upd_o\ns_add_u32 s100, s100, 1\ns_bitcmp1_b32 s100, 21\ns_cbranch_scc0 L_c_upd\nL_c_upd_o:")
        for i in range(3):
            for e in range(4):
                g = 104 + 8 * i + 2 * e; o = 52 + 4 * i + e
                a(f"v_lshlrev_b32 v26, 16, v{g}\nv_and_b32 v27, 0xffff0000, v{g}\nv_cndmask_b32 v26, v27, v26, s[30:31]")
                a(f"v_add_f32 v26, v{o}, v26\nv_cvt_pk_bf16_f32 v26, v26, v26\nv_lshlrev_b32 v26, 16, v26\nv_cndmask_b32 v{o}, v{o}, v26, s[34:35]")
        a("L_c_nomoe:")

    def guard_br(self, L):
        Lo = self.a.label("ok")
        self.a(f"s_cbranch_vccz {Lo}\ns_sleep {self.BACK}\ns_add_u32 s100, s100, 1\ns_bitcmp1_b32 s100, 21\ns_cbranch_scc0 {L}\n{Lo}:")

    def moe_tile_gemm(self, img, nmat, lds_a):
        a = self.a
        a(f"v_and_b32 v30, 1, v1\nv_lshlrev_b32 v30, 7, v30\nv_lshrrev_b32 v31, 4, v1\nv_lshl_add_u32 v30, v31, 4, v30\nv_add_u32 v30, {lds_a}, v30")
        a("v_bfe_u32 v32, v1, 2, 2\nv_lshrrev_b32 v33, 1, v32\nv_and_b32 v34, 1, v31\nv_lshl_or_b32 v33, v34, 1, v33")
        a("v_lshl_add_u32 v32, v31, 3, v32\nv_lshlrev_b32 v32, 7, v32\nv_lshl_add_u32 v32, v33, 5, v32\nv_and_b32 v33, 3, v1\nv_lshl_add_u32 v32, v33, 3, v32")
        a(f"v_add_u32 v32, {img}, v32")
        for nt in range(4): a(f"v_xor_b32 v{36+nt}, {nt << 5}, v32")
        a("ds_read_b128 v[40:43], v30\nds_read_b128 v[44:47], v30 offset:64")
        T = nmat * 4
        for t in range(T):
            mat, nt = t >> 2, t & 3
            b = 96 + 8 * t
            for s_ in range(2):
                for jj in range(2):
                    a(f"ds_read_b64_tr_b16 v[{b+4*s_+2*jj}:{b+4*s_+2*jj+1}], v{36+nt} offset:{mat*8192 + s_*4096 + jj*512}")
            if t == 2: a("s_waitcnt lgkmcnt(8)") if False else None
        a("s_waitcnt lgkmcnt(0)")
        for t in range(T):
            b = 96 + 8 * t; d = 64 + 4 * t
            a(f"v_mfma_f32_16x16x32_bf16 v[{d}:{d+3}], v[40:43], v[{b}:{b+3}], 0")
        for t in range(T):
            b = 96 + 8 * t; d = 64 + 4 * t
            a(f"v_mfma_f32_16x16x32_bf16 v[{d}:{d+3}], v[44:47], v[{b+4}:{b+7}], v[{d}:{d+3}]")
        for t in range(T):
            d = 64 + 4 * t
            a(f"v_mov_b32 v{d+2}, s61\nv_mov_b32 v{d+3}, s61")

    def moe_aux(self):
        a = self.a
        a(f"v_lshlrev_b32 v6, 4, v1\nv_add_u32 v6, {WS_FR}, v6")
        a("L_m_fr:")
        for i in range(4): a(f"buffer_load_dwordx4 v[{16+4*i}:{19+4*i}], v6, s[12:15], 0 offen offset:{1024*i} sc1")
        a("s_waitcnt vmcnt(0)")
        a("v_cmp_ne_u32 vcc, s61, v17")
        for r in (19, 21, 23, 25, 27, 29, 31): a(f"v_cmp_ne_u32 s[62:63], s61, v{r}\ns_or_b64 vcc, vcc, s[62:63]")
        self.guard_br("L_m_fr")
        a("v_mov_b32 v8, v16\nv_mov_b32 v10, v18")
        for i in range(1, 4): self.top2_merge("v8", "v10", f"v{16+4*i}", f"v{18+4*i}", "v14")
        self.top2_wave("v8", "v10", "v12", "v13", "v14")
        a("v_readfirstlane_b32 s64, v8\nv_readfirstlane_b32 s65, v10")
        a("s_and_b32 s66, s64, 0x7ff\ns_sub_u32 s66, 2047, s66\ns_and_b32 s67, s65, 0x7ff\ns_sub_u32 s67, 2047, s67")
        a(f"v_mov_b32 v6, {L_FLG}\nv_mov_b32 v12, s66\nv_mov_b32 v13, s67\nv_mov_b32 v14, 1\nds_write_b64 v6, v[12:13] offset:24\ns_waitcnt lgkmcnt(0)\nds_write_b32 v6, v14 offset:20")
        for k, d in (("s64", "s68"), ("s65", "s69")):
            a(f"s_lshr_b32 s29, {k}, 16\ns_and_b32 s30, s29, 0x7fff\ns_xor_b32 s31, s29, 0xffff\ns_bitcmp1_b32 s29, 15\ns_cselect_b32 {d}, s30, s31\ns_lshl_b32 {d}, {d}, 16")
        self.stamp(5)
        a("s_cmp_ge_u32 s2, 240\ns_cbranch_scc1 L_m_s4")
        a("s_mul_i32 s29, s2, 171\ns_lshr_b32 s29, s29, 12\ns_mul_i32 s30, s29, 24\ns_sub_u32 s30, s2, s30")
        a("v_bfe_u32 v6, v1, 4, 1\nv_cmp_eq_u32 vcc, 1, v6\nv_mov_b32 v7, s66\nv_mov_b32 v8, s67\nv_cndmask_b32 v7, v7, v8, vcc")
        a("v_and_b32 v9, 15, v1\nv_mul_u32_u24 v10, 1280, v7\nv_lshl_add_u32 v10, v9, 3, v10\ns_lshl_b32 s31, s29, 7\nv_add_u32 v10, s31, v10\nv_lshlrev_b32 v11, 4, v7")
        a("buffer_load_dwordx2 v[16:17], v10, s[4:7], 0 offen")
        a("L_m_st:\nbuffer_load_dwordx2 v[14:15], v11, s[12:15], 0 offen sc1\ns_waitcnt vmcnt(0)")
        a("v_cmp_ne_u32 vcc, s61, v15")
        self.guard_br("L_m_st")
        a("v_lshlrev_b32 v12, 16, v14\nv_and_b32 v13, s28, v14\nv_rcp_f32 v13, v13")
        for r in (16, 17):
            a(f"v_lshlrev_b32 v30, 16, v{r}\nv_and_b32 v31, s28, v{r}\nv_sub_f32 v30, v30, v12\nv_sub_f32 v31, v31, v12")
            a("v_cvt_pk_bf16_f32 v32, v30, v31\nv_lshlrev_b32 v30, 16, v32\nv_and_b32 v31, s28, v32")
            a(f"v_mul_f32 v30, v30, v13\nv_mul_f32 v31, v31, v13\nv_cvt_pk_bf16_f32 v{r}, v30, v31")
        a(f"v_lshlrev_b32 v6, 7, v6\nv_lshl_add_u32 v6, v9, 3, v6\nv_add_u32 v6, {L_XS}, v6\nds_write_b64 v6, v[16:17]")
        a(f"v_mov_b32 v6, {L_FLG}\ns_waitcnt lgkmcnt(0)")
        self.lds_spin("v6", "v7", "s35", "ge", 2, off=36)
        self.moe_tile_gemm(L_AUX, 2, L_XS)
        if "moegate" in self.opts:
            a(f"v_mov_b32 v6, {L_FLG}")
            self.lds_spin("v6", "v7", "s35", "ge", 2, off=8)
        a(f"s_lshl_b32 s29, s2, 11\ns_add_u32 s29, s29, {WS_P1}\nv_lshlrev_b32 v6, 4, v1\ns_mov_b64 exec, 0xffff")
        for t in range(8): a(f"buffer_store_dwordx4 v[{64+4*t}:{67+4*t}], v6, s[12:15], s29 offen offset:{256*t} sc1")
        a("s_mov_b64 exec, -1")
        self.stamp(6)
        a("s_mul_i32 s57, s2, 205\ns_lshr_b32 s57, s57, 11")
        a(f"s_lshl_b32 s29, s57, 11\ns_add_u32 s29, s29, {WS_P1}\nv_lshlrev_b32 v6, 4, v1")
        a(f"v_min_u32 v7, 9, v1\nv_mul_u32_u24 v7, {24*2048}, v7\nv_add_u32 v7, {127*16+8}, v7")
        a("L_m_p1t:\nbuffer_load_dword v8, v7, s[12:15], s29 offen sc1\ns_waitcnt vmcnt(0)\nv_cmp_ne_u32 vcc, s61, v8")
        self.guard_br("L_m_p1t")
        a("L_m_p1:")
        for kc in range(10):
            a(f"s_add_u32 s30, s29, {kc*24*2048}\nbuffer_load_dwordx4 v[{64+8*kc}:{67+8*kc}], v6, s[12:15], s30 offen sc1\nbuffer_load_dwordx4 v[{68+8*kc}:{71+8*kc}], v6, s[12:15], s30 offen offset:1024 sc1")
        a("s_waitcnt vmcnt(0)")
        a("v_cmp_ne_u32 vcc, s61, v66")
        for k in range(1, 20): a(f"v_cmp_ne_u32 s[62:63], s61, v{66+4*k}\ns_or_b64 vcc, vcc, s[62:63]")
        self.guard_br("L_m_p1")
        a(f"v_mov_b32 v6, {L_FLG}\nv_mov_b32 v7, 1\nds_write_b32 v6, v7 offset:56")
        for kc in range(1, 10):
            for o in (0, 1, 4, 5): a(f"v_add_f32 v{64+o}, v{64+o}, v{64+8*kc+o}")
        for c in range(2):
            g_, u_ = 64 + c, 68 + c
            a(f"v_cvt_pk_bf16_f32 v{g_}, v{g_}, v{g_}\nv_lshlrev_b32 v{g_}, 16, v{g_}\nv_cvt_pk_bf16_f32 v{u_}, v{u_}, v{u_}\nv_lshlrev_b32 v{u_}, 16, v{u_}")
            a(f"v_mul_f32 v46, {f32hex(-1.4426950408889634)}, v{g_}\nv_exp_f32 v46, v46\nv_add_f32 v46, 1.0, v46\nv_rcp_f32 v46, v46\nv_mul_f32 v46, v{g_}, v46")
            a(f"v_cvt_pk_bf16_f32 v46, v46, v46\nv_lshlrev_b32 v46, 16, v46\nv_mul_f32 v{g_}, v46, v{u_}")
        a("v_cvt_pk_bf16_f32 v16, v64, v65")
        a(f"v_lshlrev_b32 v6, 1, v1\nv_add_u32 v6, {L_HS}, v6\nds_write_b16 v6, v16\nds_write_b16_d16_hi v6, v16 offset:128")
        a(f"v_mov_b32 v6, {L_FLG}\ns_waitcnt lgkmcnt(0)")
        self.lds_spin("v6", "v7", "s35", "ge", 2, off=36)
        self.moe_tile_gemm(L_AUX + 16384, 1, L_HS)
        a(f"s_lshl_b32 s29, s2, 10\ns_add_u32 s29, s29, {WS_P3}\nv_lshlrev_b32 v6, 4, v1\ns_mov_b64 exec, 0xffff")
        for t in range(4): a(f"buffer_store_dwordx4 v[{64+4*t}:{67+4*t}], v6, s[12:15], s29 offen offset:{256*t} sc1")
        a("s_mov_b64 exec, -1")
        self.stamp(7)
        a("s_branch L_m_end")
        a("L_m_s4:")
        a(f"v_mov_b32 v6, {L_FLG}\nv_mov_b32 v7, 1\nds_write_b32 v6, v7 offset:56")
        a("s_cmp_ge_u32 s2, 250\ns_cbranch_scc1 L_m_end")
        a(f"s_sub_u32 s57, s2, 240\ns_lshl_b32 s29, s57, 10\ns_add_u32 s29, s29, {WS_P3}\nv_lshlrev_b32 v6, 4, v1")
        a(f"v_min_u32 v7, 23, v1\nv_mul_u32_u24 v7, {10*1024}, v7\nv_add_u32 v7, {63*16+8}, v7")
        a("L_m_p3t:\nbuffer_load_dword v8, v7, s[12:15], s29 offen sc1\ns_waitcnt vmcnt(0)\nv_cmp_ne_u32 vcc, s61, v8")
        self.guard_br("L_m_p3t")
        a("L_m_p3:")
        for kc in range(24):
            a(f"s_add_u32 s30, s29, {kc*10*1024}\nbuffer_load_dwordx4 v[{64+4*kc}:{67+4*kc}], v6, s[12:15], s30 offen sc1")
        a("s_waitcnt vmcnt(0)")
        a("v_cmp_ne_u32 vcc, s61, v66")
        for k in range(1, 24): a(f"v_cmp_ne_u32 s[62:63], s61, v{66+4*k}\ns_or_b64 vcc, vcc, s[62:63]")
        self.guard_br("L_m_p3")
        for kc in range(1, 24): a(f"v_add_f32 v64, v64, v{64+4*kc}\nv_add_f32 v65, v65, v{65+4*kc}")
        for c in range(2):
            a(f"v_cvt_pk_bf16_f32 v{64+c}, v{64+c}, v{64+c}\nv_lshlrev_b32 v{64+c}, 16, v{64+c}")
            sr = "s68" if c == 0 else "s69"
            a(f"v_mov_b32 v46, {sr}\nv_mul_f32 v46, {f32hex(-1.4426950408889634)}, v46\nv_exp_f32 v46, v46\nv_add_f32 v46, 1.0, v46\nv_rcp_f32 v46, v46")
            a(f"v_cvt_pk_bf16_f32 v46, v46, v46\nv_lshlrev_b32 v46, 16, v46\nv_mul_f32 v{64+c}, v{64+c}, v46")
        a("v_cvt_pk_bf16_f32 v48, v64, v65\nv_mov_b32 v49, s61")
        a(f"s_lshl_b32 s29, s57, 9\ns_add_u32 s29, s29, {WS_UPD}\nv_lshlrev_b32 v6, 3, v1\nbuffer_store_dwordx2 v[48:49], v6, s[12:15], s29 offen sc1")
        self.stamp(7)
        a("L_m_end:")

    def small_gemm(self, nk, astride, jjoff, bstride):
        a = self.a
        self.lg_reset()
        def rd(s_):
            b = 50 + 8 * (s_ % 3)
            a(f"ds_read_b128 v[{b}:{b+3}], v30 offset:{astride*s_}")
            a(f"ds_read_b64_tr_b16 v[{b+4}:{b+5}], v32 offset:{bstride*s_}\nds_read_b64_tr_b16 v[{b+6}:{b+7}], v32 offset:{bstride*s_+jjoff}")
            self.lg_issue(("G", s_), 3)
        rd(0); rd(1)
        for s_ in range(nk):
            if s_ + 2 < nk: rd(s_ + 2)
            self.lg_wait(("G", s_))
            b = 50 + 8 * (s_ % 3)
            a(f"v_mfma_f32_16x16x32_bf16 v[40:43], v[{b}:{b+3}], v[{b+4}:{b+7}], {'0' if s_ == 0 else 'v[40:43]'}")

    def aux(self):
        a = self.a
        a("L_aux:")
        self.post_srd = []
        self.srd(40, 72, 256)
        a("v_mov_b32 v2, 0")
        a(f"v_lshlrev_b32 v6, 2, v1\nv_add_u32 v6, {L_FLG}, v6\ns_mov_b32 exec_hi, 0\nds_write_b32 v6, v2\ns_mov_b64 exec, -1")
        a("s_memrealtime s[54:55]")
        a("s_lshl_b32 s23, s46, 3\ns_add_u32 s23, s23, s20")
        a("s_waitcnt lgkmcnt(0)")
        self.srd_fin()
        self.stamp(0)
        a("v_mov_b32 v9, 0")
        a("s_cmp_lg_u32 s2, 0\ns_cbranch_scc1 L_x_non")
        a("s_or_b32 s54, s54, 1\nv_mov_b32 v10, s54\ns_mov_b64 exec, 1\nbuffer_store_dword v10, v9, s[40:43], 0 offen sc1\ns_mov_b64 exec, -1")
        a("L_x_non:")
        a("s_getreg_b32 s52, hwreg(HW_REG_XCC_ID, 0, 4)")
        a("s_and_b32 s52, s52, 7\ns_or_b32 s52, s52, 16\ns_mov_b32 s28, 0xffff0000")
        a("s_barrier")
        a("buffer_load_dword v10, v9, s[40:43], 0 offen sc1")
        def get_nonce():
            a("s_waitcnt vmcnt(0)")
            a("L_x_wn:\nv_cmp_ne_u32 vcc, 0, v10\ns_cbranch_vccnz L_x_gotn")
            a("buffer_load_dword v10, v9, s[40:43], 0 offen sc1\ns_waitcnt vmcnt(0)\ns_add_u32 s100, s100, 1\ns_bitcmp1_b32 s100, 21\ns_cbranch_scc0 L_x_wn")
            a("L_x_gotn:")
            a("v_readfirstlane_b32 s61, v10")
            a(f"v_mov_b32 v6, {L_FLG}\nds_write_b32 v6, v10 offset:4")
            a(f"s_lshl_b32 s31, s17, 5\ns_add_u32 s31, s31, s18\ns_lshl_b32 s31, s31, 4\ns_add_u32 s31, s31, {WS_XF}")
            a("v_mov_b32 v14, s52\nv_mov_b32 v15, v10\ns_mov_b64 exec, 1\nbuffer_store_dwordx2 v[14:15], v9, s[12:15], s31 offen sc1\ns_mov_b64 exec, -1")
            self.stamp(1)
        def pub_st():
            a(f"v_and_b32 v12, 7, v1\nv_lshlrev_b32 v13, 3, v12\nv_add_u32 v13, {L_OWN}, v13\nds_read_b64 v[18:19], v13")
            a("s_lshl_b32 s29, s23, 3\ns_lshl_b32 s30, s19, 7\ns_add_u32 s29, s29, s30\ns_lshl_b32 s29, s29, 4")
            a("v_lshlrev_b32 v12, 4, v1\nv_mov_b32 v21, s61\nv_mov_b32 v23, s61")
            a("s_waitcnt lgkmcnt(0)\nv_mov_b32 v20, v18\nv_mov_b32 v22, v19")
            a("s_mov_b64 exec, 0xff\nbuffer_store_dwordx4 v[20:23], v12, s[12:15], s29 offen sc1\ns_mov_b64 exec, -1")
            a("v_cmp_gt_u32 vcc, 8, v1\nv_mov_b32 v30, 0\nv_cndmask_b32 v30, v30, v19, vcc\nv_mov_b32 v32, 0")
            for ctrl in ("quad_perm:[1,0,3,2]", "quad_perm:[2,3,0,1]", "row_half_mirror"):
                a(f"v_mov_b32_dpp v34, v30 {ctrl} row_mask:0xf bank_mask:0xf\nv_mov_b32_dpp v35, v32 {ctrl} row_mask:0xf bank_mask:0xf")
                self.top2_merge("v30", "v32", "v34", "v35", "v36")
            a(f"s_lshl_b32 s29, s2, 4\ns_add_u32 s29, s29, {WS_FR}\nv_mov_b32 v28, s29\nv_mov_b32 v31, s61\nv_mov_b32 v33, s61")
            a("s_mov_b64 exec, 1\nbuffer_store_dwordx4 v[30:33], v28, s[12:15], 0 offen sc1\ns_mov_b64 exec, -1")
        def gather_issue():
            a(f"s_lshl_b32 s29, s19, 11\ns_add_u32 s29, s29, {WS_ST}\nv_lshlrev_b32 v9, 5, v1")
            a("buffer_load_dwordx4 v[40:43], v9, s[12:15], s29 offen sc1")
            a("buffer_load_dwordx4 v[44:47], v9, s[12:15], s29 offen offset:16 sc1")
            a(f"s_lshl_b32 s31, s17, 9\ns_add_u32 s31, s31, {WS_XF}\nv_and_b32 v16, 31, v1\nv_lshlrev_b32 v16, 4, v16")
            a("buffer_load_dwordx2 v[18:19], v16, s[12:15], s31 offen sc1")
        def gather_check(Lok):
            a("s_waitcnt vmcnt(0)")
            a("v_cmp_ne_u32 vcc, s61, v41\nv_cmp_ne_u32 s[62:63], s61, v45\ns_or_b64 vcc, vcc, s[62:63]")
            if "nocheck" in self.opts: a(f"s_branch {Lok}")
            a(f"s_cbranch_vccz {Lok}")
        tst = self.b_stats
        for t in range(9):
            a("s_barrier")
            if t == 1: get_nonce()
            if t == tst: pub_st()
            if t == max(self.TG, tst + 2): gather_issue()
        gather_check("L_x_gdone")
        a("L_x_gretry:")
        gather_issue()
        gather_check("L_x_gdone")
        self.guard("L_x_gretry")
        a("L_x_gdone:")
        a("v_lshlrev_b32 v24, 16, v40\nv_and_b32 v25, 0xffff0000, v40\nv_lshlrev_b32 v26, 16, v44\nv_and_b32 v27, 0xffff0000, v44")
        a("v_rcp_f32 v25, v25\nv_rcp_f32 v27, v27")
        a(f"v_lshlrev_b32 v28, 4, v1\nv_add_u32 v28, {L_STAT}, v28")
        a("ds_write_b128 v28, v[24:27]")
        a("s_waitcnt vmcnt(0)")
        a("v_cmp_ne_u32 vcc, s52, v18\nv_cmp_ne_u32 s[62:63], s61, v19\ns_or_b64 vcc, vcc, s[62:63]")
        a("s_cmp_eq_u64 vcc, 0\ns_cselect_b32 s56, 1, 0")
        if "slow" in self.opts: a("s_mov_b32 s56, 0")
        a(f"v_mov_b32 v28, {L_FLG}\nv_mov_b32 v29, s56\nds_write_b32 v28, v29\ns_waitcnt lgkmcnt(0)")
        self.stamp(2)
        a("s_barrier")
        self.stamp(3); self.stamp(4)
        if self.stop_after is None:
            a("s_mov_b32 s28, 0xffff0000\ns_setprio 3")
            if self.stamps:
                for k in (5, 6, 7): a(f"s_mov_b64 s[{72+2*k}:{73+2*k}], 0")
            if "nomoe" not in self.opts: self.moe_aux()
        if "lstamp" not in self.opts and "lloop" not in self.opts: self.fin_stamps(8 if self.stop_after is None else 5, wave=10, slot=1)
        a("s_endpgm")

if __name__ == "__main__":
    import argparse
    ap = argparse.ArgumentParser()
    ap.add_argument("-o", default="k.s")
    ap.add_argument("--stamps", action="store_true")
    ap.add_argument("--opt", action="append", default=[])
    args = ap.parse_args()
    g = Gen(stamps=args.stamps, opts=args.opt)
    open(args.o, "w").write(g.build())
    print("wrote", args.o)
```

```python
import sys, struct
from asmlib import Asm

KNAME = "parallel_sum__sliding_block__moe_arch_mod__prompt_kernel"

WS_ST = 0
WS_CSP = 0x8000
WS_F1 = 0x48000
WS_F2 = 0xBC0000
WS_FR = 0x57000
WS_XF = 0x50400
WS_XH = 0x52000
WS_UPD = 0x55000
WS_P1 = 0x60000
WS_P3 = 0xB80000
WS_QKV = 0x100000
WS_O = 0x900000
WS_DBG = 0xC00000
WS_HB = 0xD00000
WS_F1H = 0x4C000
WS_SIZE = 0xF00000
L_MISC = 131072
L_STAT = L_MISC
L_CS = L_MISC + 1024
L_CSW = L_MISC + 2176
L_OWN = L_MISC + 2048
L_FLG = L_MISC + 6400
L_XS = L_MISC + 6656
L_HS = L_MISC + 6912
L_AUX = 138240
LB_K = 0
LB_V = 24768
PLS = 8256
LA1 = 49664
LBB = 107008
LA2 = 0
L_EX = 24832
LQ = 107008
NEGF = "0xf149f2ca"
LDS_BYTES = 163840
QSCALE = 0.22360679774997896 * 1.4426950408889634

def f32hex(x):
    return "0x%08x" % struct.unpack("<I", struct.pack("<f", x))[0]

class Gen:
    def __init__(self, stop_after=None, stamps=False, opts=()):
        self.a = Asm()
        self.opts = set(opts)
        self.stop_after = stop_after
        self.stamps = stamps
        self.in_main = False
        self.swave = 0; self.quota = 24; self.TG = 6; self.TP = 1; self.SIDE0 = 1; self.Q0 = 50; self.Q1 = 100; self.LM0 = 1; self.BACK = 8; self.PRE = 3
        for o in self.opts:
            if o.startswith("swave="): self.swave = int(o[6:])
            if o.startswith("quota="): self.quota = int(o[6:])
            if o.startswith("pre="): self.PRE = int(o[4:])
            if o.startswith("tg="): self.TG = int(o[3:])
            if o.startswith("side0="): self.SIDE0 = int(o[6:])
            if o.startswith("tp="): self.TP = int(o[3:])
            if o.startswith("q0="): self.Q0 = int(o[3:])
            if o.startswith("q1="): self.Q1 = int(o[3:])
            if o.startswith("lm0="): self.LM0 = int(o[4:])
            if o.startswith("back="): self.BACK = int(o[5:])
            if o.startswith("stop="): self.stop_after = o[5:]

    def srd(self, base, kofs, size):
        self.a(f"s_load_dwordx2 s[{base}:{base+1}], s[0:1], {kofs}")
        self.post_srd.append((base, size))
    def srd_fin(self):
        for base, size in self.post_srd:
            self.a(f"s_mov_b32 s{base+2}, {size}\ns_mov_b32 s{base+3}, 0x20000")
        self.post_srd = []
    def stamp(self, idx):
        if self.stamps and self.in_main and "bst" in self.opts and idx != 0: return
        if self.stamps:
            self.a(f"s_memrealtime s[{72+2*idx}:{73+2*idx}]")
            if idx == 0: self.a("s_memtime s[96:97]")
    def fin_stamps(self, n, wave=0, slot=0):
        if not self.stamps: return
        a = self.a
        L = a.label("nostamp")
        a("s_memtime s[98:99]")
        a("s_waitcnt lgkmcnt(0)")
        a(f"s_cmp_lg_u32 s16, {wave}\ns_cbranch_scc1 {L}")
        a(f"s_lshl_b32 s29, s2, 8\ns_add_u32 s29, s29, {WS_DBG + 128*slot}\nv_mov_b32 v4, s29\ns_mov_b64 exec, 1")
        for i in range(n):
            a(f"v_mov_b32 v6, s{72+2*i}\nv_mov_b32 v7, s{73+2*i}\nbuffer_store_dwordx2 v[6:7], v4, s[12:15], 0 offen offset:{8*i}")
        a("s_sub_u32 s98, s98, s96\nv_mov_b32 v6, s98\nv_mov_b32 v7, 0\nbuffer_store_dwordx2 v[6:7], v4, s[12:15], 0 offen offset:120")
        a(f"s_mov_b64 exec, -1\n{L}:")

    def top2_merge(self, a1, a2, b1, b2, mn):
        a = self.a
        a(f"v_min_u32 {mn}, {a1}, {b1}")
        a(f"v_max_u32 {a1}, {a1}, {b1}")
        a(f"v_max3_u32 {a2}, {a2}, {b2}, {mn}")
    def top2_wave(self, a1, a2, b1, b2, mn):
        a = self.a
        for ctrl in ("quad_perm:[1,0,3,2]", "quad_perm:[2,3,0,1]", "row_half_mirror", "row_mirror"):
            a(f"v_mov_b32_dpp {b1}, {a1} {ctrl} row_mask:0xf bank_mask:0xf")
            a(f"v_mov_b32_dpp {b2}, {a2} {ctrl} row_mask:0xf bank_mask:0xf")
            self.top2_merge(a1, a2, b1, b2, mn)
        for sw in ("v_permlane16_swap_b32", "v_permlane32_swap_b32"):
            a(f"v_mov_b32 {b1}, {a1}\nv_mov_b32 {b2}, {a2}")
            a(f"{sw} {a1}, {b1}\n{sw} {a2}, {b2}")
            self.top2_merge(a1, a2, b1, b2, mn)
    def sum_wave_lines(self, regs, tmps):
        out = []
        for ctrl in ("quad_perm:[1,0,3,2]", "quad_perm:[2,3,0,1]", "row_half_mirror", "row_mirror"):
            for r in regs: out.append(f"v_add_f32_dpp {r}, {r}, {r} {ctrl} row_mask:0xf bank_mask:0xf")
        for sw in ("v_permlane16_swap_b32", "v_permlane32_swap_b32"):
            for r, t in zip(regs, tmps): out.append(f"v_mov_b32 {t}, {r}")
            for r, t in zip(regs, tmps): out.append(f"{sw} {r}, {t}")
            for r, t in zip(regs, tmps): out.append(f"v_add_f32 {r}, {r}, {t}")
        return out
    @staticmethod
    def bf16r(dst, src):
        return [f"v_cvt_pk_bf16_f32 {dst}, {src}, {src}", f"v_lshlrev_b32 {dst}, 16, {dst}"]
    @staticmethod
    def key_lines(rf, row, dst, t1, t2):
        return [f"v_cvt_pk_bf16_f32 {dst}, {rf}, {rf}", f"v_and_b32 {dst}, 0xffff, {dst}",
                f"v_or_b32 {t1}, 0x8000, {dst}", f"v_xor_b32 {t2}, 0xffff, {dst}",
                f"v_cmp_lt_u32 vcc, 0x7fff, {dst}\nv_cndmask_b32 {dst}, {t1}, {t2}, vcc",
                f"v_mov_b32 {t1}, 0",
                f"v_cmp_u_f32 vcc, {rf}, {rf}\nv_cndmask_b32 {dst}, {dst}, {t1}, vcc",
                f"v_sub_u32 {t1}, 0xfff, {row}", f"v_lshl_or_b32 {dst}, {dst}, 16, {t1}"]
    def guard(self, L):
        self.a(f"s_add_u32 s100, s100, 1\ns_bitcmp1_b32 s100, 21\ns_cbranch_scc0 {L}")
    def lds_spin(self, vaddr, vtmp, stmp, cmp_, val, off=0):
        a = self.a
        L = a.label("spin")
        a(f"{L}:\nds_read_b32 {vtmp}, {vaddr} offset:{off}\ns_waitcnt lgkmcnt(0)")
        Lo = a.label("spino")
        a(f"v_readfirstlane_b32 {stmp}, {vtmp}\ns_cmp_{cmp_}_u32 {stmp}, {val}\ns_cbranch_scc1 {Lo}")
        self.guard(L)
        a(f"{Lo}:")

    def build(self):
        a = self.a
        a.raw(f"; @launch grid=(256,1,1) block=(704,1,1) lds={LDS_BYTES}")
        a.raw('.amdgcn_target "amdgcn-amd-amdhsa--gfx950"')
        a.raw(".text")
        a.raw(f".globl {KNAME}")
        a.raw(".p2align 8")
        a.raw(f".type {KNAME},@function")
        a.raw(f"{KNAME}:")
        self.post_srd = []
        a("s_cmp_ge_u32 s2, 256\ns_cbranch_scc1 L_end")
        self.srd(4, 0, 2621440)
        self.srd(8, 8, 2457600)
        self.srd(12, 80, WS_SIZE)
        self.srd(36, 32, 1280)
        a("v_and_b32 v1, 63, v0\nv_lshrrev_b32 v2, 6, v0\ns_mov_b32 s100, 0")
        a("s_and_b32 s17, s2, 7\ns_lshr_b32 s18, s2, 3")
        a("v_readfirstlane_b32 s16, v2")
        a("s_and_b32 s46, s17, 1\ns_lshr_b32 s47, s17, 1\ns_lshr_b32 s48, s18, 3\ns_and_b32 s20, s18, 7")
        a("s_lshl_b32 s19, s47, 2\ns_add_u32 s19, s19, s48")
        self.srd_fin()
        a("s_cmp_eq_u32 s16, 10\ns_cbranch_scc1 L_aux")
        a("s_cmp_ge_u32 s16, 8\ns_cbranch_scc1 L_loader")
        self.in_main = True
        self.phase_a()
        self.in_main = False
        a("L_end:\ns_endpgm")
        self.loader()
        self.aux()
        a.raw(".section .rodata,\"a\"\n.p2align 6")
        a.raw(f".amdhsa_kernel {KNAME}")
        a.raw("  .amdhsa_next_free_vgpr 168\n  .amdhsa_next_free_sgpr 102\n  .amdhsa_accum_offset 168")
        a.raw("  .amdhsa_group_segment_fixed_size 0\n  .amdhsa_kernarg_size 88\n  .amdhsa_user_sgpr_count 2")
        a.raw("  .amdhsa_user_sgpr_kernarg_segment_ptr 1\n  .amdhsa_system_sgpr_workgroup_id_x 1")
        a.raw("  .amdhsa_float_denorm_mode_32 3\n  .amdhsa_float_denorm_mode_16_64 3")
        a.raw(".end_amdhsa_kernel")
        return a.finalize()

    NST = 20
    def dma_x(self, m, half):
        self.a(f"s_add_u32 m0, s26, {(m & 3) * 16384 + 1024 * half}\ns_nop 0")
        self.a(f"buffer_load_dwordx4 v{10 if half == 0 else 9}, s[4:7], s58 offen lds")
        if half == 1: self.a("s_add_u32 s58, s58, 128\ns_cmp_eq_u32 s58, 1280\ns_cselect_b32 s58, 0, s58")
        self.vm_seq.append(("X", m))
    def dma_w(self, t):
        self.a(f"s_add_u32 m0, s27, {(t & 7) * 8192}\ns_mov_b64 exec, s[24:25]")
        self.a("buffer_load_dwordx4 v11, s[8:11], s59 offen lds\ns_mov_b64 exec, -1")
        self.a(f"s_add_u32 s59, s59, 122880\ns_cmp_eq_u32 s59, {20*122880}\ns_cselect_b32 s59, 0, s59")
        self.vm_seq.append(("W", t))
    def vm_need(self, needs):
        if not any(op in needs for op in self.vm_seq): return 0
        last = max(i for i, op in enumerate(self.vm_seq) if op in needs)
        return len(self.vm_seq) - 1 - last
    def a_read_list(self, n):
        if "noreads" in self.opts: return []
        t, s = n >> 1, n & 1
        m, s4 = n >> 2, n & 3
        xo = (m & 3) * 16384
        wo = (t & 7) * 8192 + 4096 * s
        fs = 24 + 16 * (n % 3)
        return [f"ds_read_b128 v[{fs}:{fs+3}], v{12+s4} offset:{xo}",
                f"ds_read_b64_tr_b16 v[{fs+8}:{fs+9}], v16 offset:{wo}",
                f"ds_read_b64_tr_b16 v[{fs+10}:{fs+11}], v16 offset:{wo+1024}",
                f"ds_read_b128 v[{fs+4}:{fs+7}], v{12+s4} offset:{xo+4096}",
                f"ds_read_b64_tr_b16 v[{fs+12}:{fs+13}], v17 offset:{wo}",
                f"ds_read_b64_tr_b16 v[{fs+14}:{fs+15}], v17 offset:{wo+1024}"]
    def a_reads(self, n):
        for l in self.a_read_list(n): self.a(l)
    def col_oct(self, gam, dst, t):
        a = self.a
        a(f"s_mul_i32 {t}, {gam}, 26\ns_lshr_b32 {t}, {t}, 8\ns_add_u32 {t}, {t}, s46\ns_mul_i32 {t}, {t}, 40")
        a(f"s_lshl_b32 {dst}, {gam}, 2\ns_add_u32 {dst}, {dst}, {t}")

    def o_fill(self):
        a = self.a
        if self.stop_after is None:
            a("s_and_b32 s62, s18, 15\ns_lshl_b32 s29, s46, 4\ns_add_u32 s62, s62, s29\ns_lshr_b32 s63, s18, 4\ns_lshl_b32 s29, s47, 1\ns_add_u32 s63, s63, s29")
            a("s_lshl_b32 s34, s63, 8\ns_lshl_b32 s35, s16, 5\ns_add_u32 s34, s34, s35")
            a("v_and_b32 v2, 31, v1\nv_lshrrev_b32 v3, 5, v1\nv_add_u32 v5, s34, v2\nv_lshlrev_b32 v5, 3, v5\nv_lshl_add_u32 v5, v3, 14, v5")
            a(f"s_mul_i32 s35, s62, {5*16384}\ns_add_u32 s35, s35, {WS_O}\nv_mov_b32 v6, -1\nv_mov_b32 v7, -1\ns_waitcnt lgkmcnt(0)")
            a("buffer_store_dwordx2 v[6:7], v5, s[12:15], s35 offen sc1")
            a("s_add_u32 s35, s35, 32768\nbuffer_store_dwordx2 v[6:7], v5, s[12:15], s35 offen sc1")
            a("s_add_u32 s35, s35, 32768\ns_mov_b32 exec_hi, 0\nbuffer_store_dwordx2 v[6:7], v5, s[12:15], s35 offen sc1\ns_mov_b64 exec, -1")

    def o_fill2(self):
        a = self.a
        if self.stop_after is not None: return
        a("s_and_b32 s62, s18, 15\ns_lshl_b32 s29, s46, 4\ns_add_u32 s62, s62, s29\ns_lshr_b32 s63, s18, 4\ns_lshl_b32 s29, s47, 1\ns_add_u32 s63, s63, s29")
        a("s_lshl_b32 s34, s63, 8\ns_lshl_b32 s35, s16, 5\ns_add_u32 s34, s34, s35")
        a("v_add_u32 v148, s34, v2\nv_lshlrev_b32 v148, 3, v148\nv_lshl_add_u32 v148, v3, 14, v148")
        a(f"s_mul_i32 s35, s62, {5*16384}\ns_add_u32 s35, s35, {WS_O}\nv_mov_b32 v150, -1\nv_mov_b32 v151, -1")
        a("buffer_store_dwordx2 v[150:151], v148, s[12:15], s35 offen sc1")
        a("s_add_u32 s35, s35, 32768\nbuffer_store_dwordx2 v[150:151], v148, s[12:15], s35 offen sc1")
        a("s_add_u32 s35, s35, 32768\ns_mov_b32 exec_hi, 0\nbuffer_store_dwordx2 v[150:151], v148, s[12:15], s35 offen sc1\ns_mov_b64 exec, -1")
    def ln_stats_tasks(self):
        pk = "lnpk" in self.opts
        g = []
        X, Wr = 104, 114
        g.append(("wait",))
        g.append("v_lshlrev_b32 v124, 16, v104\nv_readlane_b32 s51, v124, 0\nv_readlane_b32 s52, v124, 32")
        g.append("v_mov_b32 v138, s52\nv_mov_b32 v139, s51\nv_cmp_gt_u32 vcc, 32, v1\nv_cndmask_b32 v138, v138, v139, vcc")
        for i in range(10):
            g += [f"v_lshlrev_b32 v132, 16, v{X+i}", f"v_and_b32 v133, s28, v{X+i}",
                  f"v_lshlrev_b32 v134, 16, v{Wr+i}", f"v_and_b32 v135, s28, v{Wr+i}",
                  "v_sub_f32 v136, v132, v138", "v_sub_f32 v137, v133, v138"]
            if i == 0:
                g += ["v_mul_f32 v128, v132, v134", "v_add_f32 v124, v136, v137", "v_mul_f32 v126, v136, v136", "v_add_f32 v130, v134, v135",
                      "v_fmac_f32 v128, v133, v135", "v_fmac_f32 v126, v137, v137"]
            else:
                g += ["v_fmac_f32 v128, v132, v134", "v_add_f32 v124, v124, v136", "v_fmac_f32 v126, v136, v136", "v_add_f32 v130, v130, v134",
                      "v_fmac_f32 v128, v133, v135", "v_add_f32 v124, v124, v137", "v_fmac_f32 v126, v137, v137", "v_add_f32 v130, v130, v135"]
        regs = ["v124", "v126", "v128", "v130"]; tm = ["v125", "v127", "v129", "v131"]
        for ctrl in ("quad_perm:[1,0,3,2]", "quad_perm:[2,3,0,1]", "row_half_mirror", "row_mirror"):
            for r in regs: g.append(f"v_add_f32_dpp {r}, {r}, {r} {ctrl} row_mask:0xf bank_mask:0xf")
        for r, t in zip(regs, tm): g.append(f"v_mov_b32 {t}, {r}")
        for r, t in zip(regs, tm): g.append(f"v_permlane16_swap_b32 {r}, {t}")
        for r, t in zip(regs, tm): g.append(f"v_add_f32 {r}, {r}, {t}")
        g += ["v_mul_f32 v124, s44, v124", "v_mul_f32 v132, v124, v124", "v_fma_f32 v126, v126, s44, -v132", "v_max_f32 v126, 0, v126",
              "v_add_f32 v124, v138, v124"]
        g += self.bf16r("v124", "v124") + self.bf16r("v126", "v126") + ["v_add_f32 v126, s45, v126"] + self.bf16r("v126", "v126")
        g += ["v_sqrt_f32 v126, v126"] + self.bf16r("v126", "v126") + ["v_rcp_f32 v132, v126"]
        g += ["v_fma_f32 v128, -v124, v130, v128", "v_mul_f32 v128, v128, v132"]
        g += self.key_lines("v128", "v20", "v141", "v134", "v135")
        g += ["v_lshrrev_b32 v140, 16, v124", "v_or_b32 v140, v140, v126"]
        g.append("s_mov_b32 exec_lo, 1\ns_mov_b32 exec_hi, 1\nds_write_b64 v21, v[140:141]\ns_mov_b64 exec, -1\ns_waitcnt lgkmcnt(0)")
        g.append(("mark",))
        return g

    def ln_wave(self):
        a = self.a
        a("L_ln:")
        a("s_sub_u32 s21, s16, 4")
        a("v_and_b32 v2, 31, v1\nv_lshrrev_b32 v3, 5, v1")
        a("s_lshl_b32 s23, s46, 3\ns_add_u32 s23, s23, s20\ns_lshl_b32 s23, s23, 3\ns_lshl_b32 s29, s21, 1\ns_add_u32 s23, s23, s29")
        a("s_lshl_b32 s29, s19, 7\ns_add_u32 s23, s23, s29\nv_add_u32 v20, s23, v3")
        a("v_mul_u32_u24 v4, 1280, v20\nv_lshl_add_u32 v4, v2, 3, v4\nv_lshlrev_b32 v5, 3, v2")
        a(f"s_lshl_b32 s29, s21, 4\ns_add_u32 s29, s29, {L_OWN}\nv_lshl_add_u32 v21, v3, 3, s29")
        a("s_lshr_b32 s29, s21, 1\ns_lshl_b32 s29, s29, 13\ns_and_b32 s30, s21, 1\ns_lshl_b32 s30, s30, 12\ns_add_u32 s29, s29, s30\ns_add_u32 s29, s29, 65536")
        a("v_lshrrev_b32 v8, 4, v1\nv_lshlrev_b32 v9, 2, v8\nv_and_b32 v10, 15, v1\nv_xor_b32 v9, v9, v10\nv_lshlrev_b32 v9, 4, v9")
        a("v_lshl_add_u32 v9, v8, 8, v9\nv_add_u32 v16, s29, v9")
        a(f"s_mov_b32 s28, 0xffff0000\ns_mov_b32 s44, {f32hex(1.0/640.0)}\ns_mov_b32 s45, {f32hex(1e-5)}\ns_waitcnt lgkmcnt(0)")
        tasks = self.ln_stats_tasks()
        a("s_barrier")
        if "fill2" in self.opts: self.o_fill2()
        for i in range(5): a(f"buffer_load_dwordx2 v[{104+2*i}:{105+2*i}], v4, s[4:7], 0 offen offset:{256*i}")
        for i in range(5): a(f"buffer_load_dwordx2 v[{114+2*i}:{115+2*i}], v5, s[36:39], 0 offen offset:{256*i}")
        pk = "lnpk" in self.opts
        for m in range(10):
            if m >= 1: a("s_barrier")
            if "noside" in self.opts:
                self.b_stats = 1; continue
            wo = ((2 * m) & 7) * 8192
            for i in range(4): a(f"ds_read_b128 v[{48+4*i}:{51+4*i}], v16 offset:{wo + 1024*i}")
            for i in range(4):
                a(f"s_waitcnt lgkmcnt({3-i})")
                for d in range(4):
                    src = 48 + 4 * i + d; acc = 72 + 2 * d; t = 64 + 2 * (d & 1)
                    if m == 0 and i == 0:
                        a(f"v_lshlrev_b32 v{acc}, 16, v{src}\nv_and_b32 v{acc+1}, s28, v{src}")
                    elif pk:
                        a(f"v_lshlrev_b32 v{t}, 16, v{src}\nv_and_b32 v{t+1}, s28, v{src}\nv_pk_add_f32 v[{acc}:{acc+1}], v[{acc}:{acc+1}], v[{t}:{t+1}]")
                    else:
                        a(f"v_lshlrev_b32 v{t}, 16, v{src}\nv_and_b32 v{t+1}, s28, v{src}\nv_add_f32 v{acc}, v{acc}, v{t}\nv_add_f32 v{acc+1}, v{acc+1}, v{t+1}")
            q = self.Q1 if m >= self.LM0 else 0
            while tasks and q > 0:
                it = tasks.pop(0)
                if isinstance(it, tuple):
                    if it[0] == "mark": self.b_stats = m
                    else: a("s_waitcnt vmcnt(0)")
                else: a(it); q -= it.count("\n") + 1
        if "noside" not in self.opts:
            assert not tasks
            for p in range(4): a(f"v_permlane32_swap_b32 v{72+2*p}, v{73+2*p}")
            for p in range(4): a(f"v_add_f32 v{72+2*p}, v{72+2*p}, v{73+2*p}")
            a("v_permlane16_swap_b32 v72, v74\nv_permlane16_swap_b32 v76, v78")
            a("v_add_f32 v72, v72, v74\nv_add_f32 v76, v76, v78")
            self.cs_tail()
        a("s_waitcnt lgkmcnt(0)")
        a("s_branch L_a_bE1")

    def cs_tail(self):
        a = self.a
        a("v_and_b32 v7, 15, v1\nv_lshlrev_b32 v7, 3, v7\nv_bfe_u32 v8, v1, 4, 1\nv_lshl_add_u32 v7, v8, 1, v7\nv_add_u32 v7, v7, v3")
        a(f"s_lshl_b32 s29, s21, 9\ns_add_u32 s29, s29, {L_CSW}\nv_lshl_add_u32 v7, v7, 2, s29")
        a("ds_write_b32 v7, v72\nds_write_b32 v7, v76 offset:16")

    def phase_a(self):
        a = self.a
        a("; ---- phase A ----")
        if "fill2" not in self.opts: self.o_fill()
        a("s_cmp_ge_u32 s16, 4\ns_cbranch_scc1 L_ln")
        a("s_and_b32 s21, s16, 1\ns_lshr_b32 s22, s16, 1")
        self.stamp(0)
        a("v_and_b32 v2, 31, v1\nv_lshrrev_b32 v3, 5, v1")
        a("s_lshl_b32 s29, s22, 6\nv_add_u32 v4, s29, v2\nv_lshlrev_b32 v4, 7, v4")
        a("v_bfe_u32 v5, v1, 1, 3\nv_xor_b32 v8, v3, v5")
        for s4 in range(4):
            a(f"v_xor_b32 v7, {2*s4}, v8\nv_lshl_add_u32 v{12+s4}, v7, 4, v4")
        a("v_bfe_u32 v5, v1, 2, 2")
        a("v_lshl_add_u32 v8, v3, 3, v5\nv_lshlrev_b32 v8, 8, v8")
        a("v_bfe_u32 v9, v1, 4, 1\nv_lshlrev_b32 v9, 5, v9\nv_and_b32 v10, 3, v1\nv_lshlrev_b32 v10, 3, v10\nv_add3_u32 v8, v8, v9, v10")
        a("s_lshl_b32 s29, s21, 1")
        for ntl in range(2):
            a(f"s_add_u32 s30, s29, {ntl}\nv_xor_b32 v7, s30, v5\nv_lshl_add_u32 v7, v7, 6, v8\nv_add_u32 v{16+ntl}, 0x10000, v7")
        self.stamp(4)
        a("s_barrier")
        self.stamp(1)
        if "fill2" in self.opts: self.o_fill2()
        self.a_reads(0); self.a_reads(1)
        N = 40
        ACC = lambda ntl, stl: 72 + 32 * ntl + 16 * stl
        for n in range(N):
            m, i4 = n >> 2, n & 3
            fs = 24 + 16 * (n % 3)
            CL = self.stamps and "lloop" in self.opts and m in (4, 5) and i4 == 2
            if CL: self.stamp(5 + 2 * (m - 4))
            if i4 == 2 and m + 1 < 10: a("s_barrier")
            if CL: self.stamp(6 + 2 * (m - 4))
            if self.stamps and "bst" in self.opts and i4 == 2 and m < 9: a(f"s_memrealtime s[{72+2*(m+1)}:{73+2*(m+1)}]")
            a(f"s_waitcnt lgkmcnt({6 if n + 1 < N else 0})")
            rl = self.a_read_list(n + 2) if n + 2 < N else []
            nomf = "nomfma" in self.opts and n > 0
            k = 0
            for ntl in range(2):
                for stl in range(2):
                    A = ACC(ntl, stl)
                    c = "0" if n == 0 else f"v[{A}:{A+15}]"
                    if not nomf: a(f"v_mfma_f32_32x32x16_bf16 v[{A}:{A+15}], v[{fs+8+4*ntl}:{fs+11+4*ntl}], v[{fs+4*stl}:{fs+4*stl+3}], {c}")
                    for l in rl[2*k:2*k+2]: a(l)
                    k += 1
        self.stamp(2)
        a("L_a_bE1:")
        a("s_barrier")
        if "est" in self.opts: self.stamp(5)
        a("s_cmp_ge_u32 s16, 4\ns_cbranch_scc1 L_a_e2")
        a(f"s_lshl_b32 s29, s22, 9\ns_add_u32 s29, s29, {L_STAT}")
        a("v_lshl_add_u32 v4, v2, 3, s29")
        a("ds_read_b64 v[20:21], v4\nds_read_b64 v[22:23], v4 offset:256")
        a(f"s_lshl_b32 s29, s21, 8\ns_add_u32 s29, s29, {L_CSW}\nv_lshl_add_u32 v4, v2, 2, s29")
        for p in range(4):
            a(f"ds_read_b32 v{44+2*p}, v4 offset:{512*p}\nds_read_b32 v{45+2*p}, v4 offset:{512*p+128}")
        a(f"v_mov_b32 v5, {L_FLG}\nds_read_b32 v6, v5")
        a("s_lshl_b32 s33, s19, 7\ns_lshl_b32 s34, s22, 6\ns_add_u32 s33, s33, s34")
        a("v_add_u32 v4, s33, v2\nv_lshlrev_b32 v4, 4, v4\nv_lshl_add_u32 v4, v3, 15, v4")
        for r in (29, 30, 31, 33, 34, 35, 37, 38, 39, 41, 42, 43): a(f"v_mov_b32 v{r}, 0")
        a("v_cmp_gt_u32 vcc, 32, v1\nv_mov_b32 v7, 0")
        a("s_waitcnt lgkmcnt(0)")
        a("v_readfirstlane_b32 s41, v6")
        a("v_add_f32 v24, v44, v46\nv_add_f32 v25, v45, v47\nv_add_f32 v48, v48, v50\nv_add_f32 v49, v49, v51\nv_add_f32 v24, v24, v48\nv_add_f32 v25, v25, v49")
        for ntl in range(2):
            c = 24 + ntl; d = 28 + 4 * ntl
            a(f"v_cvt_pk_bf16_f32 v8, v{c}, v{c}\nv_lshlrev_b32 v8, 16, v8\nv_sub_f32 v8, v{c}, v8\nv_cvt_pk_bf16_f32 v8, v{c}, v8\nv_cndmask_b32 v{d}, v7, v8, vcc")
        for stl in range(2):
            mm = 20 + 2 * stl; d = 36 + 4 * stl
            a(f"v_sub_f32 v8, 0, v{mm}\nv_cvt_pk_bf16_f32 v8, v8, v8\nv_cndmask_b32 v{d}, v7, v8, vcc")
        for ntl in range(2):
            for stl in range(2):
                A = ACC(ntl, stl)
                a(f"v_mfma_f32_32x32x16_bf16 v[{A}:{A+15}], v[{28+4*ntl}:{31+4*ntl}], v[{36+4*stl}:{39+4*stl}], v[{A}:{A+15}]")
        for ntl in range(2):
            Ls = a.label("askip")
            a(f"s_lshl_b32 s29, s20, 2\ns_lshl_b32 s30, s21, 1\ns_add_u32 s29, s29, s30\ns_add_u32 s29, s29, {ntl}")
            a(f"s_cmp_ge_u32 s29, 30\ns_cbranch_scc1 {Ls}")
            self.col_oct("s29", "s31", "s32")
            a(f"s_lshl_b32 s31, s31, 15\ns_add_u32 s31, s31, {WS_QKV}")
            a(f"s_cmp_lt_u32 s29, 10\ns_cselect_b32 s40, {f32hex(QSCALE)}, 1.0")
            a("v_mul_f32 v56, s40, v21\nv_mul_f32 v58, s40, v23\nv_mov_b32 v57, v56\nv_mov_b32 v59, v58")
            for stl in range(2):
                A = ACC(ntl, stl); rr = 56 + 2 * stl
                for p in range(8): a(f"v_pk_mul_f32 v[{A+2*p}:{A+2*p+1}], v[{A+2*p}:{A+2*p+1}], v[{rr}:{rr+1}]")
                d = 136 + 16 * ntl + 8 * stl
                for p in range(8): a(f"v_cvt_pk_bf16_f32 v{d+p}, v{A+2*p}, v{A+2*p+1}")
                for pr in range(2):
                    b0 = d + 4 * pr
                    a(f"v_permlane32_swap_b32 v{b0}, v{b0+2}\nv_permlane32_swap_b32 v{b0+1}, v{b0+3}")
            Lf = a.label("afast"); Ld = a.label("adone")
            a(f"s_cmp_eq_u32 s41, 1\ns_cbranch_scc1 {Lf}")
            for fast in (0, 1):
                if fast: a(f"{Lf}:")
                for pr in range(2):
                    a(f"s_add_u32 s32, s31, {pr*65536}")
                    for stl in range(2):
                        b0 = 136 + 16 * ntl + 8 * stl + 4 * pr
                        a(f"buffer_store_dwordx4 v[{b0}:{b0+3}], v4, s[12:15], s32 offen offset:{512*stl}" + ("" if fast else " sc1"))
                if not fast: a(f"s_branch {Ld}")
            a(f"{Ld}:\n{Ls}:")
        if "est" in self.opts: self.stamp(6)
        a("s_waitcnt vmcnt(0)")
        if "est" in self.opts: self.stamp(7)
        a(f"v_mov_b32 v5, {L_FLG}\nv_mov_b32 v6, 1\ns_mov_b64 exec, 1\nds_add_rtn_u32 v7, v5, v6 offset:44\nds_read_b32 v8, v5 offset:4\ns_waitcnt lgkmcnt(0)")
        a("v_readfirstlane_b32 s35, v7\ns_cmp_lg_u32 s35, 3\ns_cbranch_scc1 L_a_nf")
        a(f"s_lshl_b32 s29, s46, 7\ns_lshl_b32 s30, s19, 3\ns_add_u32 s29, s29, s30\ns_add_u32 s29, s29, s20\ns_lshl_b32 s29, s29, 6\ns_add_u32 s29, s29, {WS_F1}\nv_mov_b32 v6, s29")
        a("s_cmp_eq_u32 s41, 1\ns_cbranch_scc1 L_a_f1f")
        a("buffer_store_dword v8, v6, s[12:15], 0 offen sc1\ns_branch L_a_nf")
        a("L_a_f1f:\nbuffer_store_dword v8, v6, s[12:15], 0 offen")
        a("L_a_nf:\ns_mov_b64 exec, -1")
        a("s_and_b32 s29, s19, 2\ns_cmp_lt_u32 s19, 12\ns_cselect_b32 s29, s29, 0\ns_cmp_lt_u32 s20, 2\ns_cselect_b32 s29, 0, s29\ns_cmp_eq_u32 s29, 0\ns_cbranch_scc1 L_a_e2")
        a("s_lshr_b32 s29, s19, 2\ns_lshl_b32 s29, s29, 8\ns_and_b32 s30, s19, 1\ns_lshl_b32 s30, s30, 7\ns_add_u32 s29, s29, s30\ns_lshl_b32 s30, s22, 6\ns_add_u32 s29, s29, s30")
        a("v_add_u32 v60, s29, v2\nv_lshlrev_b32 v60, 4, v60\nv_mul_u32_u24 v61, 12288, v3\nv_add_u32 v60, v60, v61")
        for ntl in range(2):
            Lh = a.label("hskip")
            a(f"s_lshl_b32 s29, s20, 2\ns_lshl_b32 s30, s21, 1\ns_add_u32 s29, s29, s30\ns_add_u32 s29, s29, {ntl}")
            a(f"s_cmp_ge_u32 s29, 30\ns_cbranch_scc1 {Lh}\ns_cmp_lt_u32 s29, 10\ns_cbranch_scc1 {Lh}")
            self.col_oct("s29", "s31", "s32")
            a(f"s_sub_u32 s31, s31, 80\ns_mul_i32 s31, s31, 12288\ns_add_u32 s31, s31, {WS_HB}")
            for pr in range(2):
                a(f"s_add_u32 s32, s31, {pr*24576}")
                for stl in range(2):
                    b0 = 136 + 16 * ntl + 8 * stl + 4 * pr
                    a(f"buffer_store_dwordx4 v[{b0}:{b0+3}], v60, s[12:15], s32 offen offset:{512*stl} sc1")
            a(f"{Lh}:")
        a("s_waitcnt vmcnt(0)")
        a("v_mov_b32 v6, 1\ns_mov_b64 exec, 1\nds_add_rtn_u32 v7, v5, v6 offset:52\ns_waitcnt lgkmcnt(0)")
        a("v_readfirstlane_b32 s35, v7\ns_cmp_lg_u32 s35, 3\ns_cbranch_scc1 L_a_nh")
        a(f"s_lshl_b32 s29, s46, 7\ns_lshl_b32 s30, s19, 3\ns_add_u32 s29, s29, s30\ns_add_u32 s29, s29, s20\ns_lshl_b32 s29, s29, 6\ns_add_u32 s29, s29, {WS_F1H}\nv_mov_b32 v6, s29")
        a("buffer_store_dword v8, v6, s[12:15], 0 offen sc1")
        a("L_a_nh:\ns_mov_b64 exec, -1")
        a("L_a_e2:")
        self.stamp(3)
        if self.stop_after == "a":
            self.fin_stamps(10 if "bst" in self.opts else (9 if "lloop" in self.opts else (8 if "est" in self.opts else 5)), wave=self.swave)
            a("s_branch L_end")
            self.ln_wave()
            return
        self.phase_b()
        if self.stop_after == "b":
            self.fin_stamps(8, wave=self.swave)
            a("s_branch L_end")
            self.ln_wave()
            return
        self.phase_c()
        self.fin_stamps(10, wave=self.swave)
        a("s_branch L_end")
        self.ln_wave()

    def lg_reset(self): self.lg_seq = []
    def lg_issue(self, tag, n): self.lg_seq += [tag] * n
    def lg_wait(self, tag):
        last = max(i for i, t in enumerate(self.lg_seq) if t == tag)
        self.a(f"s_waitcnt lgkmcnt({min(15, len(self.lg_seq) - 1 - last)})")

    def loader(self):
        a = self.a
        a("L_loader:")
        LS = self.stamps and "lstamp" in self.opts
        if LS: self.stamp(0)
        a("s_setprio 2")
        a("s_sub_u32 s21, s16, 8")
        a("v_lshrrev_b32 v3, 4, v1")
        self.post_srd = []
        self.srd(52, 16, 819200)
        a("s_lshl_b32 s29, s21, 4\ns_add_u32 s29, s29, 40\ns_load_dwordx2 s[56:57], s[0:1], s29\ns_load_dwordx2 s[92:93], s[0:1], 48")
        a("s_mov_b32 s58, 1966080\ns_mov_b32 s59, 0x20000\ns_mov_b32 s94, 1966080\ns_mov_b32 s95, 0x20000")
        a("s_cmp_eq_u32 s21, 1\ns_cbranch_scc1 L_l_w")
        a("v_lshrrev_b32 v2, 3, v1\nv_and_b32 v8, 7, v1\nv_xor_b32 v8, v8, v3")
        a("s_lshl_b32 s23, s19, 7\nv_add_u32 v9, s23, v2\nv_mul_u32_u24 v9, 1280, v9\nv_lshl_add_u32 v10, v8, 4, v9")
        a("v_xor_b32 v8, 4, v8\nv_lshl_add_u32 v11, v8, 4, v9")
        a("s_mov_b64 s[24:25], -1\ns_mov_b32 s26, 0\ns_movk_i32 s27, 10240\ns_movk_i32 s31, 128\ns_mov_b32 s32, 0")
        a("s_branch L_l_go")
        a("L_l_w:")
        a("v_and_b32 v8, 15, v1\nv_lshlrev_b32 v17, 2, v3\nv_xor_b32 v17, v8, v17")
        a("s_lshl_b32 s29, s20, 2\ns_mul_i32 s31, s46, 40")
        a("v_lshrrev_b32 v19, 2, v17\nv_add_u32 v19, s29, v19\nv_cmp_gt_u32 s[24:25], 30, v19")
        a("v_mul_u32_u24 v18, 26, v19\nv_lshrrev_b32 v18, 8, v18\nv_mul_u32_u24 v18, 40, v18")
        a("v_lshl_add_u32 v18, v19, 2, v18\nv_and_b32 v19, 3, v17\nv_add3_u32 v18, v18, v19, s31\nv_lshlrev_b32 v18, 4, v18")
        a("v_mul_u32_u24 v19, 3840, v3\nv_add_u32 v10, v18, v19\nv_mov_b32 v11, v10")
        a("s_mov_b32 s26, 65536\ns_movk_i32 s27, 15360\ns_mov_b32 s31, 245760\ns_mov_b32 s32, 0")
        a("L_l_go:")
        a("s_waitcnt lgkmcnt(0)")
        self.srd_fin()
        def granule(role, m):
            srd = "s[4:7]" if role == 0 else "s[8:11]"
            base = ((m & 3) * 16384) if role == 0 else (65536 + ((2 * m) & 7) * 8192)
            gs = 128 if role == 0 else 245760
            step = 10240 if role == 0 else 15360
            for i in range(16):
                a(f"s_mov_b32 m0, {base + 1024*i}\ns_add_u32 s30, s40, {step*i}")
                a(f"buffer_load_dwordx4 v{10 + (i & 1)}, {srd}, s30 offen lds")
            a(f"s_add_u32 s40, s40, {gs}\ns_cmp_eq_u32 s40, {10*gs}\ns_cselect_b32 s40, 0, s40")
        rh_, rr_ = 0, 0
        for o in self.opts:
            if o.startswith("roth="): rh_ = int(o[5:])
            if o.startswith("rotr="): rr_ = int(o[5:])
        rc, rb = 1, 3
        for o in self.opts:
            if o.startswith("rotc="): rc = int(o[5:])
            if o.startswith("rotb="): rb = int(o[5:])
        rbm = 3
        for o in self.opts:
            if o.startswith("rotbm="): rbm = int(o[6:])
        rcm = 7
        for o in self.opts:
            if o.startswith("rotcm="): rcm = int(o[6:])
        if "norot" not in self.opts:
            a(f"s_and_b32 s41, s20, {rcm}\ns_mul_i32 s40, s41, {rc}\ns_and_b32 s41, s48, {rbm}\ns_mul_i32 s41, s41, {rb}\ns_add_u32 s40, s40, s41")
            a(f"s_mul_i32 s41, s46, {rh_}\ns_add_u32 s40, s40, s41\ns_mul_i32 s41, s47, {rr_}\ns_add_u32 s40, s40, s41")
            a("s_mul_i32 s41, s40, 205\ns_lshr_b32 s41, s41, 11\ns_mul_i32 s41, s41, 10\ns_sub_u32 s40, s40, s41")
        else:
            a("s_mov_b32 s40, 0")
        a("s_movk_i32 s42, 128\ns_cmp_eq_u32 s21, 0\ns_cselect_b32 s41, s42, 245760\ns_mul_i32 s40, s40, s41")
        for role in range(2):
            a(f"L_l_r{role}:") if role == 1 else a("s_cmp_eq_u32 s21, 1\ns_cbranch_scc1 L_l_r1")
            a("s_mov_b64 exec, s[24:25]")
            if "k0late" in self.opts:
                for m in range(3): granule(role, m)
                a("s_waitcnt vmcnt(32)\ns_barrier")
            else:
                if LS: self.stamp(1)
                granule(role, 0)
                if LS: self.stamp(2)
                granule(role, 1)
                if LS: self.stamp(3)
                ms = self.stop_after is None and "nomoe" not in self.opts and "moestart" in self.opts
                if ms:
                    a("s_mov_b64 exec, -1")
                    self.moe_dma(role, pad=True)
                    a("s_mov_b64 exec, s[24:25]")
                a(f"s_waitcnt vmcnt({16 + (16 if role == 0 else 8) * ms})")
                if LS: self.stamp(4)
                a("s_barrier")
                granule(role, 2)
                if LS: self.stamp(5)
            npf = 0
            for m in range(9):
                extra = npf if m >= 7 else 0
                if m == 0 and self.stop_after is None and "nomoe" not in self.opts and "moestart" in self.opts:
                    pass
                LL = self.stamps and "lloop" in self.opts
                if LL and m in (4, 5): self.stamp(0 + 4 * (m - 4) + 0)
                a(f"s_waitcnt vmcnt({(16 if m < 8 else 0) + extra})")
                if LL and m in (4, 5): self.stamp(0 + 4 * (m - 4) + 1)
                a("s_barrier")
                if LL and m in (4, 5): self.stamp(0 + 4 * (m - 4) + 2)
                if m + 3 < 10: granule(role, m + 3)
                if LL and m in (4, 5): self.stamp(0 + 4 * (m - 4) + 3)
                if m == 6 and npf:
                    a("s_mov_b64 exec, -1")
                    self.l2pf(role)
            a("s_mov_b64 exec, -1")
            if self.stop_after is None and "nomoe" not in self.opts and "moelate" not in self.opts and "moestart" not in self.opts: self.moe_dma(role)
            if self.stop_after is None and "wopf" in self.opts:
                a(f"s_mul_i32 s29, s18, 25600\nv_lshlrev_b32 v26, 7, v1\nv_add_u32 v26, s29, v26\ns_mov_b32 s30, {16384*role}\nbuffer_load_dword v27, v26, s[52:55], s30 offen")
                a(f"s_mov_b32 s30, {16384*role + 8192}\n" + ("s_mov_b64 exec, 0xff\n" if role == 1 else "") + "buffer_load_dword v27, v26, s[52:55], s30 offen\ns_mov_b64 exec, -1")
            if role == 0: a("s_branch L_l_j")
        a("L_l_j:")
        if LS:
            self.stamp(6); self.stamp(7)
            self.fin_stamps(8, wave=8, slot=1)
        if self.stamps and "lloop" in self.opts:
            self.fin_stamps(8, wave=8 + ("lw1" in self.opts), slot=1)
        a("s_barrier")
        if self.stop_after == "a":
            a("s_endpgm"); return
        a("s_and_b32 s62, s18, 15\ns_lshl_b32 s29, s46, 4\ns_add_u32 s62, s62, s29")
        a("s_lshr_b32 s63, s18, 4\ns_lshl_b32 s29, s47, 1\ns_add_u32 s63, s63, s29")
        a("s_and_b32 s64, s62, 1\ns_mul_i32 s65, s62, 5\ns_lshr_b32 s65, s65, 1")
        a(f"s_sub_u32 s36, 1, s21\ns_mul_i32 s32, s36, 80\ns_add_u32 s32, s32, 80\ns_add_u32 s32, s32, s65\ns_lshl_b32 s32, s32, 15\ns_add_u32 s32, s32, {WS_QKV}")
        a(f"s_mul_i32 s33, s36, {LB_V}")
        a("s_lshl_b32 s31, s63, 8\ns_sub_u32 s31, s31, 256\ns_lshl_b32 s31, s31, 4\ns_add_u32 s32, s32, s31")
        a("v_lshlrev_b32 v4, 4, v1\nv_add_u32 v7, s33, v4")
        a("s_and_b32 s37, s63, 1\ns_xor_b32 s37, s37, 1\ns_cmp_eq_u32 s63, 0\ns_cselect_b32 s37, 0, s37")
        a(f"s_mul_i32 s44, s36, 80\ns_add_u32 s44, s44, s65\ns_mul_i32 s44, s44, 12288\ns_lshr_b32 s45, s63, 1\ns_sub_u32 s45, s45, 1\ns_lshl_b32 s45, s45, 12\ns_add_u32 s44, s44, s45\ns_add_u32 s44, s44, {WS_HB}")
        a(f"s_sub_u32 s35, 1, s64\ns_mul_i32 s35, s35, {2*PLS+8}\nv_add_u32 v8, s35, v7")
        a("v_mov_b32 v20, 0x3f803f80\ns_cmp_eq_u32 s36, 0\ns_cselect_b32 s35, 0, 0x3f803f80\nv_mov_b32 v21, s35")
        a("v_mov_b32 v22, 0x3f803f80\ns_mov_b32 s34, 0x3f803f80\ns_cselect_b32 s35, 0xf149, s34\nv_mov_b32 v23, s35")
        a("v_mov_b32 v24, 0\nv_mov_b32 v25, 0\nv_mov_b32 v26, 0\nv_mov_b32 v27, 0")
        a(f"v_mov_b32 v5, {L_FLG}")
        a("s_cmp_eq_u32 s21, 0\ns_cbranch_scc1 L_l_b0")
        a(f"s_lshl_b32 s29, s46, 7\ns_lshl_b32 s30, s63, 4\ns_add_u32 s29, s29, s30\ns_sub_u32 s29, s29, 16\ns_lshl_b32 s29, s29, 6\ns_add_u32 s29, s29, {WS_F1}")
        a("v_and_b32 v6, 31, v1\ns_cmp_eq_u32 s63, 0\ns_cselect_b32 s30, 16, 0\nv_max_u32 v6, s30, v6")
        a("s_and_b32 s37, s63, 1\ns_xor_b32 s37, s37, 1\ns_cmp_eq_u32 s63, 0\ns_cselect_b32 s37, 0, s37")
        a(f"v_and_b32 v10, 7, v6\nv_max_u32 v10, 2, v10\nv_and_b32 v11, 24, v6\nv_or_b32 v10, v10, v11\nv_lshlrev_b32 v10, 6, v10\nv_add_u32 v10, {WS_F1H - WS_F1 + (1 << 32) if WS_F1H < WS_F1 else WS_F1H - WS_F1}, v10")
        a("v_lshlrev_b32 v11, 6, v6\nv_cmp_gt_u32 vcc, 16, v6\ns_cmp_eq_u32 s37, 1\ns_cselect_b64 s[38:39], vcc, 0\nv_cndmask_b32 v6, v11, v10, s[38:39]")
        a("ds_read_b32 v9, v5 offset:4\ns_waitcnt lgkmcnt(0)")
        a("L_x_p1:\nbuffer_load_dword v10, v6, s[12:15], s29 offen sc1\ns_waitcnt vmcnt(0)")
        a("v_cmp_ne_u32 vcc, v9, v10\ns_cbranch_vccz L_x_p1_o\ns_add_u32 s100, s100, 1\ns_bitcmp1_b32 s100, 21\ns_cbranch_scc0 L_x_p1\nL_x_p1_o:")
        a("v_mov_b32 v6, 1\ns_mov_b64 exec, 1\nds_write_b32 v5, v6 offset:48")
        if "nomoe" not in self.opts and "moelate" not in self.opts and self.stop_after is None: a("ds_add_u32 v5, v6 offset:36")
        a("s_mov_b64 exec, -1")
        a("s_branch L_l_kv")
        a("L_l_b0:")
        if "nomoe" not in self.opts and "moelate" not in self.opts and self.stop_after is None:
            a("s_waitcnt vmcnt(0)\nv_mov_b32 v6, 1\ns_mov_b64 exec, 1\nds_add_u32 v5, v6 offset:36\ns_mov_b64 exec, -1")
        self.lds_spin("v5", "v6", "s35", "ge", 1, off=48)
        a("L_l_kv:")
        a("s_cmp_eq_u32 s63, 0\ns_cbranch_scc1 L_l_c0")
        a("s_cmp_eq_u32 s37, 1\ns_cbranch_scc1 L_l_ch")
        for blk in range(4):
            for p in range(3):
                a(f"s_add_u32 m0, s33, {p*PLS + blk*1024}\ns_add_u32 s30, s32, {p*32768 + blk*1024}\nbuffer_load_dwordx4 v4, s[12:15], s30 offen sc1 lds")
        a("s_branch L_l_c1")
        a("L_l_ch:")
        for blk in range(4):
            for p in range(3):
                a(f"s_add_u32 m0, s33, {p*PLS + blk*1024}\ns_add_u32 s30, s44, {p*12288 + blk*1024}\nbuffer_load_dwordx4 v4, s[12:15], s30 offen sc1 lds")
        a("s_branch L_l_c1")
        a("L_l_c0:")
        for blk in range(4):
            for p in range(3): a(f"ds_write_b128 v7, v[24:27] offset:{p*PLS + blk*1024}")
        a("L_l_c1:")
        for blk in range(4, 8):
            for p in range(3):
                a(f"s_add_u32 m0, s33, {p*PLS + blk*1024}\ns_add_u32 s30, s32, {p*32768 + blk*1024}\nbuffer_load_dwordx4 v4, s[12:15], s30 offen sc1 lds")
        a("s_cmp_eq_u32 s21, 0\ns_cbranch_scc1 L_l_noq")
        a(f"s_lshl_b32 s35, s65, 15\ns_lshl_b32 s34, s63, 12\ns_add_u32 s35, s35, s34\ns_add_u32 s35, s35, {WS_QKV}")
        for p in range(3):
            for blk in range(4):
                a(f"s_mov_b32 m0, {LQ + p*4096 + blk*1024}\ns_add_u32 s30, s35, {p*32768 + blk*1024}\nbuffer_load_dwordx4 v4, s[12:15], s30 offen sc1 lds")
        a("s_branch L_l_w0")
        a("L_l_noq:")
        a("L_l_w0:")
        a("s_waitcnt vmcnt(0) lgkmcnt(0)")
        a("s_cmp_eq_u32 s63, 0\ns_cbranch_scc1 L_l_p0")
        for blk in range(4): a(f"ds_write_b64 v8, v[20:21] offset:{blk*1024}")
        a("s_branch L_l_p1")
        a("L_l_p0:")
        for blk in range(4): a(f"ds_write_b64 v8, v[22:23] offset:{blk*1024}")
        a("L_l_p1:")
        for blk in range(4, 8): a(f"ds_write_b64 v8, v[20:21] offset:{blk*1024}")
        a("v_mov_b32 v6, 1\ns_waitcnt lgkmcnt(0)\ns_mov_b64 exec, 1\nds_add_u32 v5, v6 offset:8\ns_mov_b64 exec, -1")
        if self.stop_after == "b":
            a("s_endpgm"); return
        if "nomoe" not in self.opts and "moelate" in self.opts:
            a("s_cmp_eq_u32 s21, 0\ns_cbranch_scc0 L_l_mr1")
            self.moe_dma(0)
            a("s_branch L_l_mrd\nL_l_mr1:")
            self.moe_dma(1)
            a("L_l_mrd:")
            a("s_waitcnt vmcnt(0)\nv_mov_b32 v6, 1\ns_mov_b64 exec, 1\nds_add_u32 v5, v6 offset:36\ns_mov_b64 exec, -1")
        self.wo_setup()
        if "nomoe" not in self.opts and "wogate" in self.opts:
            self.lds_spin("v5", "v6", "s35", "ge", 1, off=56)
        a("s_lshl_b32 s34, s21, 10\ns_mul_i32 s35, s21, 10240")
        for q in range(28):
            a(f"s_add_u32 m0, s34, {LA1 + q*2048}\ns_add_u32 s30, s35, {q*20480}\nbuffer_load_dwordx4 v152, s[52:55], s30 offen lds")
        self.lds_spin("v5", "v6", "s35", "ge", 8, off=40)
        a("s_mul_i32 s35, s21, 40960")
        for q in range(10):
            a(f"s_add_u32 m0, s34, {LBB + q*2048}\ns_add_u32 s30, s35, {q*81920}\nbuffer_load_dwordx4 v153, s[52:55], s30 offen lds")
        a("s_cmp_eq_u32 s21, 1\ns_cbranch_scc1 L_l_poll")
        self.lds_spin("v5", "v6", "s35", "ge", 8, off=12)
        for q in range(12):
            for par in range(2):
                i = 56 + 2 * q + par
                a(f"s_mov_b32 m0, {LA2 + (i-56)*1024}\ns_mov_b32 s30, {i*10240}\nbuffer_load_dwordx4 v{152 if par == 0 else 154}, s[52:55], s30 offen lds")
        a("s_waitcnt vmcnt(0)\nv_mov_b32 v6, 1\ns_mov_b64 exec, 1\nds_add_u32 v5, v6 offset:32\ns_mov_b64 exec, -1\ns_endpgm")
        a("L_l_poll:")
        a("s_waitcnt vmcnt(0)\nv_mov_b32 v6, 1\ns_mov_b64 exec, 1\nds_add_u32 v5, v6 offset:32\ns_mov_b64 exec, -1")
        self.lds_spin("v5", "v6", "s35", "ge", 8, off=12)
        a(f"s_lshl_b32 s29, s17, 14\ns_lshr_b32 s30, s18, 3\ns_lshl_b32 s30, s30, 7\ns_add_u32 s29, s29, s30\ns_add_u32 s29, s29, {WS_F2}")
        a("v_lshrrev_b32 v26, 1, v1\nv_lshlrev_b32 v26, 9, v26\nv_and_b32 v27, 1, v1\nv_lshl_add_u32 v26, v27, 6, v26\nds_read_b32 v6, v5 offset:4\ns_waitcnt lgkmcnt(0)")
        a("L_c_poll:\nbuffer_load_dword v27, v26, s[12:15], s29 offen sc1\ns_waitcnt vmcnt(0)")
        a("v_cmp_ne_u32 vcc, v6, v27\ns_cbranch_vccz L_c_poll_o\ns_add_u32 s100, s100, 1\ns_bitcmp1_b32 s100, 21\ns_cbranch_scc0 L_c_poll\nL_c_poll_o:")
        a("v_mov_b32 v6, 1\ns_mov_b64 exec, 1\nds_write_b32 v5, v6 offset:16\ns_mov_b64 exec, -1")
        a("s_endpgm")

    def moe_dma(self, role, pad=False):
        a = self.a
        Lx = a.label("mx")
        if not pad: a(f"s_cmp_ge_u32 s2, 240\ns_cbranch_scc1 {Lx}")
        a("s_min_u32 s43, s2, 239")
        a("v_bfe_u32 v12, v1, 4, 1\nv_lshlrev_b32 v12, 1, v12\nv_and_b32 v13, 7, v1\nv_xor_b32 v12, v12, v13\nv_lshlrev_b32 v12, 4, v12\nv_xor_b32 v13, 64, v12\nv_lshrrev_b32 v14, 3, v1")
        if role == 0:
            a("s_mul_i32 s29, s43, 171\ns_lshr_b32 s29, s29, 12\ns_mul_i32 s30, s29, 24\ns_sub_u32 s30, s43, s30")
            a(f"s_mul_i32 s29, s29, {64*3072}\ns_lshl_b32 s30, s30, 7\ns_add_u32 s29, s29, s30")
            a("v_mul_u32_u24 v14, 3072, v14\nv_add_u32 v12, v12, v14\nv_add_u32 v13, v13, v14")
            for mat, srd in ((0, "s[56:59]"), (1, "s[92:95]")):
                for i in range(8):
                    a(f"s_mov_b32 m0, {L_AUX + mat*8192 + 1024*i}\ns_add_u32 s30, s29, {i*8*3072}\nbuffer_load_dwordx4 v{12 + (i & 1)}, {srd}, s30 offen lds")
        else:
            a("s_mul_i32 s29, s43, 205\ns_lshr_b32 s29, s29, 11\ns_mul_i32 s30, s29, 10\ns_sub_u32 s30, s43, s30")
            a(f"s_mul_i32 s29, s29, {64*1280}\ns_lshl_b32 s30, s30, 7\ns_add_u32 s29, s29, s30")
            a("v_mul_u32_u24 v14, 1280, v14\nv_add_u32 v12, v12, v14\nv_add_u32 v13, v13, v14")
            for i in range(8):
                a(f"s_mov_b32 m0, {L_AUX + 16384 + 1024*i}\ns_add_u32 s30, s29, {i*8*1280}\nbuffer_load_dwordx4 v{12 + (i & 1)}, s[56:59], s30 offen lds")
        a(f"{Lx}:")

    def wo_setup(self):
        a = self.a
        a("s_and_b32 s67, s18, 7\ns_mul_i32 s69, s67, 160")
        for dst, par in (("v152", "s21"), ("v154", "1")):
            a(f"v_bfe_u32 v19, v1, 4, 1\ns_lshl_b32 s29, {par}, 1\nv_or_b32 v19, s29, v19\nv_lshlrev_b32 v19, 1, v19")
            a(f"v_and_b32 {dst}, 7, v1\nv_xor_b32 {dst}, {dst}, v19\nv_lshlrev_b32 {dst}, 4, {dst}")
            a(f"v_lshrrev_b32 v19, 3, v1\nv_mul_u32_u24 v19, 1280, v19\nv_add3_u32 {dst}, {dst}, v19, s69")
        a("v_lshrrev_b32 v19, 1, v1\nv_bfe_u32 v153, v19, 3, 1\nv_lshlrev_b32 v153, 2, v153\nv_xor_b32 v19, v19, v153\nv_mul_u32_u24 v19, 1280, v19")
        a("v_and_b32 v153, 1, v1\nv_lshlrev_b32 v153, 4, v153\nv_add3_u32 v153, v153, v19, s69\nv_add_u32 v153, 128, v153")

    def phase_b(self):
        a = self.a
        a("; ---- phase B ----")
        a("s_waitcnt vmcnt(0)")
        a("s_and_b32 s62, s18, 15\ns_lshl_b32 s29, s46, 4\ns_add_u32 s62, s62, s29")
        a("s_lshr_b32 s63, s18, 4\ns_lshl_b32 s29, s47, 1\ns_add_u32 s63, s63, s29")
        a("s_and_b32 s64, s62, 1\ns_mul_i32 s65, s62, 5\ns_lshr_b32 s65, s65, 1")
        a("v_and_b32 v2, 31, v1\nv_lshrrev_b32 v3, 5, v1")
        a(f"v_lshlrev_b32 v5, 2, v3\nv_sub_u32 v5, v2, v5\nv_mov_b32 v6, {NEGF}\nv_mov_b32 v7, 0")
        for r in range(16):
            cr = 8 * (r >> 2) + (r & 3)
            a(f"v_cmp_le_i32 vcc, {cr}, v5")
            a(f"v_cndmask_b32 v{108+r}, v6, v7, vcc\nv_cndmask_b32 v{124+r}, v7, v6, vcc")
        a("s_lshl_b32 s29, s16, 9")
        a(f"v_add_u32 v5, s64, v3\nv_mul_u32_u24 v5, {PLS}, v5\nv_lshl_add_u32 v16, v2, 4, v5\nv_add_u32 v16, s29, v16")
        a(f"s_sub_u32 s30, 1, s64\ns_mul_i32 s30, s30, {2*PLS}\ns_add_u32 s30, s30, s29\nv_lshl_add_u32 v17, v2, 4, s30")
        a("v_bfe_u32 v5, v1, 4, 1\nv_and_b32 v6, 3, v1\nv_lshl_add_u32 v5, v5, 2, v6")
        a("v_add_u32 v6, s64, v5")
        a("s_mul_i32 s30, s64, 6\nv_subrev_u32 v7, s30, v6\nv_cmp_eq_u32 vcc, 5, v5\nv_cndmask_b32 v6, v6, v7, vcc")
        a(f"v_lshrrev_b32 v7, 1, v6\nv_mul_u32_u24 v7, {PLS}, v7\nv_and_b32 v6, 1, v6\nv_lshl_add_u32 v7, v6, 3, v7")
        a("v_and_b32 v6, 1, v5\nv_lshlrev_b32 v6, 3, v6\nv_add_u32 v6, 192, v6")
        a("v_cmp_lt_u32 vcc, 5, v5\nv_cndmask_b32 v7, v7, v6, vcc")
        a("v_bfe_u32 v6, v1, 2, 2\nv_lshl_add_u32 v6, v3, 2, v6\nv_lshl_add_u32 v7, v6, 4, v7")
        a(f"s_add_u32 s30, s29, {LB_V}\nv_add_u32 v18, s30, v7")
        a("s_and_b32 s67, s18, 7\ns_lshr_b32 s68, s18, 3\ns_mul_i32 s69, s67, 160")
        a("s_and_b32 s29, s16, 3\ns_lshl_b32 s29, s29, 4\ns_lshl_b32 s30, s17, 8\ns_add_u32 s29, s29, s30\ns_lshl_b32 s30, s68, 6\ns_add_u32 s29, s29, s30")
        a("v_and_b32 v19, 15, v1\nv_add_u32 v163, s29, v19\nv_mul_u32_u24 v162, 1280, v163\nv_lshrrev_b32 v19, 4, v1\nv_lshl_add_u32 v162, v19, 3, v162")
        a("s_lshr_b32 s29, s16, 2\ns_mul_i32 s29, s29, 96\ns_add_u32 s29, s29, s69\nv_add_u32 v162, s29, v162")
        for i in range(3):
            a(f"buffer_load_dwordx2 v[{154+2*i}:{155+2*i}], v162, s[4:7], 0 offen offset:{32*i}")
        a("v_lshlrev_b32 v19, 4, v163\nbuffer_load_dwordx2 v[160:161], v19, s[12:15], 0 offen sc1")
        a("s_lshl_b32 s34, s63, 8\ns_lshl_b32 s35, s16, 5\ns_add_u32 s34, s34, s35")
        a(f"s_lshl_b32 s29, s16, 9\ns_add_u32 s29, s29, {LQ}\nv_add_u32 v5, s64, v3\nv_lshlrev_b32 v5, 12, v5\nv_lshl_add_u32 v5, v2, 4, v5\nv_add_u32 v6, s29, v5")
        a("s_sub_u32 s30, 1, s64\ns_lshl_b32 s30, s30, 13\ns_add_u32 s30, s30, s29\nv_lshl_add_u32 v7, v2, 4, s30")
        a(f"v_mov_b32 v5, {L_FLG}")
        self.stamp(5)
        self.lds_spin("v5", "v19", "s35", "ge", 2, off=8)
        self.stamp(6)
        a("ds_read_b128 v[8:11], v6\nds_read_b128 v[12:15], v7\ns_waitcnt lgkmcnt(0)")
        a("v_mov_b32 v6, 1\ns_mov_b64 exec, 1\nds_add_u32 v5, v6 offset:40\ns_mov_b64 exec, -1")
        a("v_cmp_gt_u32 vcc, 32, v1\nv_mov_b32 v5, 0\nv_mov_b32 v6, 0x3f80")
        a("s_cmp_eq_u32 s64, 1\ns_cbranch_scc1 L_b_qodd")
        a("v_cndmask_b32 v12, v5, v12, vcc\nv_cndmask_b32 v13, v5, v13, vcc\nv_mov_b32 v14, 0\nv_cndmask_b32 v15, v5, v6, vcc")
        a("s_branch L_b_qd")
        a("L_b_qodd:")
        a("v_mov_b32 v12, 0\nv_cndmask_b32 v13, v5, v6, vcc\nv_cndmask_b32 v14, v5, v14, vcc\nv_cndmask_b32 v15, v5, v15, vcc")
        a("L_b_qd:")
        KS = lambda kt: 20 + 8 * (kt & 1)
        VS = lambda kt: 36 + 8 * (kt & 1)
        SB = lambda kt: 52 + 16 * (kt & 1)
        def rdK(ps, kt):
            a(f"ds_read_b128 v[{KS(kt)}:{KS(kt)+3}], v16 offset:{512*kt}\nds_read_b128 v[{KS(kt)+4}:{KS(kt)+7}], v17 offset:{512*kt}")
            self.lg_issue(("K", ps, kt), 2)
        def rdV(kt):
            b = VS(kt)
            for j2 in range(2):
                for jj in range(2):
                    a(f"ds_read_b64_tr_b16 v[{b+4*j2+2*jj}:{b+4*j2+2*jj+1}], v18 offset:{512*kt+256*j2+128*jj}")
            self.lg_issue(("V", kt), 4)
        def cop(kt): return "v[124:139]" if kt == 0 else ("v[108:123]" if kt == 8 else "0")
        def qk1(kt): a(f"v_mfma_f32_32x32x16_bf16 v[{SB(kt)}:{SB(kt)+15}], v[{KS(kt)}:{KS(kt)+3}], v[8:11], {cop(kt)}")
        def qk2(kt): a(f"v_mfma_f32_32x32x16_bf16 v[{SB(kt)}:{SB(kt)+15}], v[{KS(kt)+4}:{KS(kt)+7}], v[12:15], v[{SB(kt)}:{SB(kt)+15}]")
        def maxes(kt):
            b = SB(kt)
            for i in range(8):
                acc = 140 + (i & 1)
                if kt == 0 and i < 2: a(f"v_max_f32 v{acc}, v{b+2*i}, v{b+2*i+1}")
                else: a(f"v_max3_f32 v{acc}, v{b+2*i}, v{b+2*i+1}, v{acc}")
        def ex(kt, r0, r1):
            for r in range(r0, r1): a(f"v_exp_f32 v{SB(kt)+r}, v{SB(kt)+r}")
        def cv(kt, i0, i1):
            for i in range(i0, i1): a(f"v_cvt_pk_bf16_f32 v{84+i}, v{SB(kt)+2*i}, v{SB(kt)+2*i+1}")
        self.lg_reset()
        rdK(1, 0); rdK(1, 1)
        for kt in range(9):
            self.lg_wait(("K", 1, kt))
            qk1(kt); qk2(kt)
            if kt + 2 <= 8: rdK(1, kt + 2)
            if kt == 7: rdK(2, 1)
            if kt == 8: rdK(2, 0); rdV(0); rdV(1)
            if kt >= 1: maxes(kt - 1)
        maxes(8)
        a("v_max_f32 v140, v140, v141\nv_mov_b32 v141, v140\nv_permlane32_swap_b32 v140, v141\nv_max_f32 v140, v140, v141")
        a("v_sub_f32 v140, 0, v140")
        a("v_cvt_pk_bf16_f32 v141, v140, v140\nv_lshlrev_b32 v141, 16, v141\nv_sub_f32 v141, v140, v141")
        a("v_cvt_pk_bf16_f32 v141, v140, v141")
        a("v_cmp_gt_u32 vcc, 32, v1\nv_mov_b32 v142, 0\nv_cndmask_b32 v141, v142, v141, vcc")
        a("s_cmp_eq_u32 s64, 1\ns_cbranch_scc1 L_b_mo\nv_mov_b32 v14, v141\ns_branch L_b_md\nL_b_mo:\nv_mov_b32 v12, v141\nL_b_md:")
        a("s_nop 1")
        self.lg_wait(("K", 2, 0))
        qk1(0); qk2(0)
        rdK(2, 2)
        for kt in range(9):
            if kt < 8:
                self.lg_wait(("K", 2, kt + 1)); qk1(kt + 1)
            ex(kt, 0, 4)
            if kt < 8:
                qk2(kt + 1)
                if kt + 3 <= 8: rdK(2, kt + 3)
            ex(kt, 4, 8); cv(kt, 0, 4); ex(kt, 8, 10)
            self.lg_wait(("V", kt))
            a(f"v_mfma_f32_32x32x16_bf16 v[92:107], v[{VS(kt)}:{VS(kt)+3}], v[84:87], {'0' if kt == 0 else 'v[92:107]'}")
            ex(kt, 10, 16); cv(kt, 4, 8)
            a(f"v_mfma_f32_32x32x16_bf16 v[92:107], v[{VS(kt)+4}:{VS(kt)+7}], v[88:91], v[92:107]")
            if kt + 2 <= 8: rdV(kt + 2)
        self.stamp(7)
        a("v_mov_b32 v140, v100\nv_mov_b32 v141, v100\nv_permlane32_swap_b32 v140, v141")
        a("v_rcp_f32 v141, v141")
        for r in range(12): a(f"v_mul_f32 v{92+r}, v{92+r}, v141")
        for i in range(6): a(f"v_cvt_pk_bf16_f32 v{84+i}, v{92+2*i}, v{92+2*i+1}")
        a("v_add_u32 v5, s34, v2\nv_lshlrev_b32 v5, 3, v5\nv_lshl_add_u32 v5, v3, 14, v5")
        a(f"s_mul_i32 s35, s62, {5*16384}\ns_add_u32 s35, s35, {WS_O}")
        a("buffer_store_dwordx2 v[84:85], v5, s[12:15], s35 offen sc1")
        a("s_add_u32 s35, s35, 32768\nbuffer_store_dwordx2 v[86:87], v5, s[12:15], s35 offen sc1")
        a("s_add_u32 s35, s35, 32768\ns_mov_b32 exec_hi, 0\nbuffer_store_dwordx2 v[88:89], v5, s[12:15], s35 offen sc1\ns_mov_b64 exec, -1")
        a(f"v_mov_b32 v5, {L_FLG}\nds_read_b32 v7, v5 offset:4")
        a(f"s_lshl_b32 s35, s63, 5\ns_add_u32 s35, s35, s62\ns_lshl_b32 s35, s35, 3\ns_add_u32 s35, s35, s16\ns_lshl_b32 s35, s35, 6\ns_add_u32 s35, s35, {WS_F2}\nv_mov_b32 v6, s35")
        a("s_waitcnt lgkmcnt(0)\ns_mov_b64 exec, 1\nbuffer_store_dword v7, v6, s[12:15], 0 offen sc1")
        a("v_mov_b32 v6, 1\nds_add_u32 v5, v6 offset:12\ns_mov_b64 exec, -1")
        a("L_b_nf:")
        self.stamp(8)

    def phase_c(self):
        a = self.a
        a("; ---- phase C ----")
        self.post_srd = []
        self.srd(56, 64, 2621440)
        a("s_and_b32 s21, s16, 3\ns_lshr_b32 s22, s16, 2")
        a("v_and_b32 v2, 15, v1\nv_lshrrev_b32 v3, 4, v1\nv_mov_b32 v8, v163\nv_mov_b32 v10, v162")
        a(f"v_mov_b32 v5, {L_FLG}")
        a(f"s_mul_i32 s30, s22, {80*16384}\ns_add_u32 s30, s30, {WS_O}\nv_lshlrev_b32 v20, 3, v8\nv_lshl_add_u32 v20, v3, 15, v20")
        a("v_bfe_u32 v21, v1, 2, 2")
        a("v_lshrrev_b32 v22, 1, v21\nv_and_b32 v23, 1, v3\nv_lshl_or_b32 v22, v23, 1, v22")
        a("v_lshl_add_u32 v23, v3, 3, v21")
        a("v_and_b32 v24, 3, v1\nv_lshlrev_b32 v24, 3, v24")
        a("v_lshlrev_b32 v25, 7, v23\nv_lshl_add_u32 v25, v22, 5, v25\nv_add_u32 v25, v25, v24")
        a(f"s_mul_i32 s31, s22, {320*128}\ns_add_u32 s31, s31, {LA1}")
        a(f"s_cmp_eq_u32 s22, 0\ns_cselect_b32 s32, {LA1 + 128*128}, {LA2}")
        for nt in range(4):
            a(f"v_xor_b32 v26, {nt << 5}, v25\nv_add_u32 v{28+nt}, s31, v26\nv_add_u32 v{32+nt}, s32, v26")
        a("v_and_b32 v26, 1, v3\nv_lshlrev_b32 v26, 2, v26")
        a(f"s_mul_i32 s31, s22, {320*32}\ns_add_u32 s31, s31, {LBB}")
        for jj in range(2):
            a(f"v_xor_b32 v27, {4*jj}, v26\nv_add_u32 v27, v27, v23\nv_lshl_add_u32 v27, v27, 5, v24\nv_add_u32 v{36+jj}, s31, v27")
        a("s_waitcnt lgkmcnt(0)")
        self.srd_fin()
        a("ds_read_b32 v6, v5 offset:4\nv_lshlrev_b32 v11, 4, v8\ns_waitcnt lgkmcnt(0)")
        a("L_c_st:\nv_cmp_ne_u32 vcc, v6, v161\ns_cbranch_vccz L_c_stok")
        a("buffer_load_dwordx2 v[160:161], v11, s[12:15], 0 offen sc1\ns_waitcnt vmcnt(0)\ns_add_u32 s100, s100, 1\ns_bitcmp1_b32 s100, 21\ns_cbranch_scc0 L_c_st\nL_c_stok:")
        a("v_lshlrev_b32 v22, 16, v160\nv_and_b32 v23, 0xffff0000, v160\nv_rcp_f32 v23, v23")
        for i in range(3):
            for d in range(2):
                a(f"v_lshlrev_b32 v{40+4*i+2*d}, 16, v{154+2*i+d}\nv_and_b32 v{41+4*i+2*d}, 0xffff0000, v{154+2*i+d}")
            for d in range(2):
                e = 40 + 4 * i + 2 * d; o = 52 + 4 * i + 2 * d
                a(f"v_sub_f32 v{o}, v{e}, v22\nv_sub_f32 v{o+1}, v{e+1}, v22")
                a(f"v_cvt_pk_bf16_f32 v26, v{o}, v{o+1}\nv_lshlrev_b32 v{o}, 16, v26\nv_and_b32 v{o+1}, 0xffff0000, v26")
                a(f"v_mul_f32 v{o}, v{o}, v23\nv_mul_f32 v{o+1}, v{o+1}, v23")
                a(f"v_cvt_pk_bf16_f32 v26, v{o}, v{o+1}\nv_lshlrev_b32 v{o}, 16, v26\nv_and_b32 v{o+1}, 0xffff0000, v26")
        self.lds_spin("v5", "v6", "s35", "ge", 1, off=16)
        self.stamp(9)
        a("L_c_retry:\nv_mov_b32 v38, 0")
        for sl in range(10):
            a(f"s_add_u32 s31, s30, {sl*8*16384}\nbuffer_load_dwordx2 v[{64+4*sl}:{65+4*sl}], v20, s[12:15], s31 offen sc1")
            a(f"s_add_u32 s31, s31, 16384\nbuffer_load_dwordx2 v[{66+4*sl}:{67+4*sl}], v20, s[12:15], s31 offen sc1")
        self.lds_spin("v5", "v6", "s35", "ge", 2, off=32)
        self.lg_reset()
        def rdW(sl):
            b = 104 + 20 * (sl & 1)
            for nt in range(4):
                ar = (28 if sl < 4 else 32) + nt
                off = (sl if sl < 4 else sl - 4) * 4096
                a(f"ds_read_b64_tr_b16 v[{b+4*nt}:{b+4*nt+1}], v{ar} offset:{off}\nds_read_b64_tr_b16 v[{b+4*nt+2}:{b+4*nt+3}], v{ar} offset:{off+512}")
            a(f"ds_read_b64_tr_b16 v[{b+16}:{b+17}], v36 offset:{1024*sl}\nds_read_b64_tr_b16 v[{b+18}:{b+19}], v37 offset:{1024*sl}")
            self.lg_issue(("W", sl), 10)
        rdW(0)
        for sl in range(10):
            if sl + 1 < 10: rdW(sl + 1)
            self.lg_wait(("W", sl))
            a(f"s_waitcnt vmcnt({2 * (9 - sl)})")
            b = 104 + 20 * (sl & 1)
            for nt in range(5):
                c = "0" if sl == 0 else f"v[{144+4*nt}:{147+4*nt}]"
                a(f"v_mfma_f32_16x16x32_bf16 v[{144+4*nt}:{147+4*nt}], v[{b+4*nt}:{b+4*nt+3}], v[{64+4*sl}:{67+4*sl}], {c}")
            a(f"v_max3_u32 v38, v{64+4*sl}, v{65+4*sl}, v38\nv_max3_u32 v38, v{66+4*sl}, v{67+4*sl}, v38")
        a("v_cmp_eq_u32 vcc, -1, v38")
        self.guard_br("L_c_retry")
        a(f"s_mul_i32 s29, s16, 3072\ns_add_u32 s29, s29, {L_EX}\nv_lshlrev_b32 v26, 4, v1\nv_add_u32 v26, s29, v26")
        a("s_cmp_eq_u32 s22, 0\ns_cbranch_scc0 L_c_x1")
        a("ds_write_b128 v26, v[156:159]\nds_write_b128 v26, v[160:163] offset:1024")
        a("s_branch L_c_x2")
        a("L_c_x1:")
        a("ds_write_b128 v26, v[144:147]\nds_write_b128 v26, v[148:151] offset:1024\nds_write_b128 v26, v[152:155] offset:2048")
        for k in range(8): a(f"v_mov_b32 v{144+k}, v{156+k}")
        a("L_c_x2:")
        a(f"s_lshl_b32 s29, s16, 2\ns_add_u32 s29, s29, {L_FLG+64}\nv_mov_b32 v27, s29\nv_mov_b32 v6, 1\ns_waitcnt lgkmcnt(0)")
        a("s_mov_b64 exec, 1\nds_write_b32 v27, v6\ns_mov_b64 exec, -1")
        a(f"s_xor_b32 s31, s16, 4\ns_lshl_b32 s29, s31, 2\ns_add_u32 s29, s29, {L_FLG+64}\nv_mov_b32 v27, s29")
        self.lds_spin("v27", "v6", "s35", "ge", 1)
        a(f"s_mul_i32 s29, s31, 3072\ns_add_u32 s29, s29, {L_EX}\nv_lshlrev_b32 v26, 4, v1\nv_add_u32 v26, s29, v26")
        a("ds_read_b128 v[104:107], v26\nds_read_b128 v[108:111], v26 offset:1024\nds_read_b128 v[112:115], v26 offset:2048")
        a("s_waitcnt lgkmcnt(0)")
        for k in range(12): a(f"v_add_f32 v{144+k}, v{144+k}, v{104+k}")
        self.moe_hook()
        for i in range(3):
            if i == 2: a("s_cmp_eq_u32 s22, 1\ns_cbranch_scc1 L_c_done")
            for d in range(2):
                ac = 144 + 4 * i + 2 * d; e = 40 + 4 * i + 2 * d; o = 52 + 4 * i + 2 * d
                a(f"v_cvt_pk_bf16_f32 v26, v{ac}, v{ac+1}\nv_lshlrev_b32 v{ac}, 16, v26\nv_and_b32 v{ac+1}, 0xffff0000, v26")
                a(f"v_add_f32 v{ac}, v{ac}, v{e}\nv_add_f32 v{ac+1}, v{ac+1}, v{e+1}")
                a(f"v_cvt_pk_bf16_f32 v26, v{ac}, v{ac+1}\nv_lshlrev_b32 v{ac}, 16, v26\nv_and_b32 v{ac+1}, 0xffff0000, v26")
                a(f"v_add_f32 v{ac}, v{ac}, v{o}\nv_add_f32 v{ac+1}, v{ac+1}, v{o+1}")
                a(f"v_cvt_pk_bf16_f32 v{104+2*i+d}, v{ac}, v{ac+1}")
            a(f"buffer_store_dwordx2 v[{104+2*i}:{105+2*i}], v10, s[56:59], 0 offen offset:{32*i}")
        a("L_c_done:")

    def moe_hook(self):
        a = self.a
        if "nomoe" in self.opts: return
        self.lds_spin("v5", "v6", "s35", "ge", 1, off=20)
        a("ds_read_b64 v[26:27], v5 offset:24\nds_read_b32 v6, v5 offset:4\ns_waitcnt lgkmcnt(0)")
        a("v_cmp_eq_u32 s[30:31], v26, v8\nv_cmp_eq_u32 s[32:33], v27, v8\ns_or_b64 s[34:35], s[30:31], s[32:33]")
        a("s_cmp_eq_u64 s[34:35], 0\ns_cbranch_scc1 L_c_nomoe")
        a(f"s_lshl_b32 s29, s69, 2\ns_mul_i32 s36, s22, 384\ns_add_u32 s29, s29, s36\ns_add_u32 s29, s29, {WS_UPD}\nv_lshlrev_b32 v7, 5, v3")
        a("L_c_upd:")
        for i in range(3):
            a(f"buffer_load_dwordx4 v[{104+8*i}:{107+8*i}], v7, s[12:15], s29 offen offset:{128*i} sc1")
            a(f"buffer_load_dwordx4 v[{108+8*i}:{111+8*i}], v7, s[12:15], s29 offen offset:{128*i+16} sc1")
        a("s_waitcnt vmcnt(0)")
        a("v_cmp_ne_u32 vcc, v6, v105")
        regs = [105 + 2 * k for k in range(1, 8)]
        for r in regs: a(f"v_cmp_ne_u32 s[36:37], v6, v{r}\ns_or_b64 vcc, vcc, s[36:37]")
        L = a.label("u3")
        a(f"s_cmp_eq_u32 s22, 1\ns_cbranch_scc1 {L}")
        for r in [121, 123, 125, 127]: a(f"v_cmp_ne_u32 s[36:37], v6, v{r}\ns_or_b64 vcc, vcc, s[36:37]")
        a(f"{L}:")
        a("s_and_b64 vcc, vcc, s[34:35]\ns_cbranch_vccz L_c_upd_o\ns_add_u32 s100, s100, 1\ns_bitcmp1_b32 s100, 21\ns_cbranch_scc0 L_c_upd\nL_c_upd_o:")
        for i in range(3):
            for e in range(4):
                g = 104 + 8 * i + 2 * e; o = 52 + 4 * i + e
                a(f"v_lshlrev_b32 v26, 16, v{g}\nv_and_b32 v27, 0xffff0000, v{g}\nv_cndmask_b32 v26, v27, v26, s[30:31]")
                a(f"v_add_f32 v26, v{o}, v26\nv_cvt_pk_bf16_f32 v26, v26, v26\nv_lshlrev_b32 v26, 16, v26\nv_cndmask_b32 v{o}, v{o}, v26, s[34:35]")
        a("L_c_nomoe:")

    def guard_br(self, L):
        Lo = self.a.label("ok")
        self.a(f"s_cbranch_vccz {Lo}\ns_sleep {self.BACK}\ns_add_u32 s100, s100, 1\ns_bitcmp1_b32 s100, 21\ns_cbranch_scc0 {L}\n{Lo}:")

    def moe_tile_gemm(self, img, nmat, lds_a):
        a = self.a
        a(f"v_and_b32 v30, 1, v1\nv_lshlrev_b32 v30, 7, v30\nv_lshrrev_b32 v31, 4, v1\nv_lshl_add_u32 v30, v31, 4, v30\nv_add_u32 v30, {lds_a}, v30")
        a("v_bfe_u32 v32, v1, 2, 2\nv_lshrrev_b32 v33, 1, v32\nv_and_b32 v34, 1, v31\nv_lshl_or_b32 v33, v34, 1, v33")
        a("v_lshl_add_u32 v32, v31, 3, v32\nv_lshlrev_b32 v32, 7, v32\nv_lshl_add_u32 v32, v33, 5, v32\nv_and_b32 v33, 3, v1\nv_lshl_add_u32 v32, v33, 3, v32")
        a(f"v_add_u32 v32, {img}, v32")
        for nt in range(4): a(f"v_xor_b32 v{36+nt}, {nt << 5}, v32")
        a("ds_read_b128 v[40:43], v30\nds_read_b128 v[44:47], v30 offset:64")
        T = nmat * 4
        for t in range(T):
            mat, nt = t >> 2, t & 3
            b = 96 + 8 * t
            for s_ in range(2):
                for jj in range(2):
                    a(f"ds_read_b64_tr_b16 v[{b+4*s_+2*jj}:{b+4*s_+2*jj+1}], v{36+nt} offset:{mat*8192 + s_*4096 + jj*512}")
            if t == 2: a("s_waitcnt lgkmcnt(8)") if False else None
        a("s_waitcnt lgkmcnt(0)")
        for t in range(T):
            b = 96 + 8 * t; d = 64 + 4 * t
            a(f"v_mfma_f32_16x16x32_bf16 v[{d}:{d+3}], v[40:43], v[{b}:{b+3}], 0")
        for t in range(T):
            b = 96 + 8 * t; d = 64 + 4 * t
            a(f"v_mfma_f32_16x16x32_bf16 v[{d}:{d+3}], v[44:47], v[{b+4}:{b+7}], v[{d}:{d+3}]")
        for t in range(T):
            d = 64 + 4 * t
            a(f"v_mov_b32 v{d+2}, s61\nv_mov_b32 v{d+3}, s61")

    def moe_aux(self):
        a = self.a
        a(f"v_lshlrev_b32 v6, 4, v1\nv_add_u32 v6, {WS_FR}, v6")
        a("L_m_fr:")
        for i in range(4): a(f"buffer_load_dwordx4 v[{16+4*i}:{19+4*i}], v6, s[12:15], 0 offen offset:{1024*i} sc1")
        a("s_waitcnt vmcnt(0)")
        a("v_cmp_ne_u32 vcc, s61, v17")
        for r in (19, 21, 23, 25, 27, 29, 31): a(f"v_cmp_ne_u32 s[62:63], s61, v{r}\ns_or_b64 vcc, vcc, s[62:63]")
        self.guard_br("L_m_fr")
        a("v_mov_b32 v8, v16\nv_mov_b32 v10, v18")
        for i in range(1, 4): self.top2_merge("v8", "v10", f"v{16+4*i}", f"v{18+4*i}", "v14")
        self.top2_wave("v8", "v10", "v12", "v13", "v14")
        a("v_readfirstlane_b32 s64, v8\nv_readfirstlane_b32 s65, v10")
        a("s_and_b32 s66, s64, 0x7ff\ns_sub_u32 s66, 2047, s66\ns_and_b32 s67, s65, 0x7ff\ns_sub_u32 s67, 2047, s67")
        a(f"v_mov_b32 v6, {L_FLG}\nv_mov_b32 v12, s66\nv_mov_b32 v13, s67\nv_mov_b32 v14, 1\nds_write_b64 v6, v[12:13] offset:24\ns_waitcnt lgkmcnt(0)\nds_write_b32 v6, v14 offset:20")
        for k, d in (("s64", "s68"), ("s65", "s69")):
            a(f"s_lshr_b32 s29, {k}, 16\ns_and_b32 s30, s29, 0x7fff\ns_xor_b32 s31, s29, 0xffff\ns_bitcmp1_b32 s29, 15\ns_cselect_b32 {d}, s30, s31\ns_lshl_b32 {d}, {d}, 16")
        self.stamp(5)
        a("s_cmp_ge_u32 s2, 240\ns_cbranch_scc1 L_m_s4")
        a("s_mul_i32 s29, s2, 171\ns_lshr_b32 s29, s29, 12\ns_mul_i32 s30, s29, 24\ns_sub_u32 s30, s2, s30")
        a("v_bfe_u32 v6, v1, 4, 1\nv_cmp_eq_u32 vcc, 1, v6\nv_mov_b32 v7, s66\nv_mov_b32 v8, s67\nv_cndmask_b32 v7, v7, v8, vcc")
        a("v_and_b32 v9, 15, v1\nv_mul_u32_u24 v10, 1280, v7\nv_lshl_add_u32 v10, v9, 3, v10\ns_lshl_b32 s31, s29, 7\nv_add_u32 v10, s31, v10\nv_lshlrev_b32 v11, 4, v7")
        a("buffer_load_dwordx2 v[16:17], v10, s[4:7], 0 offen")
        a("L_m_st:\nbuffer_load_dwordx2 v[14:15], v11, s[12:15], 0 offen sc1\ns_waitcnt vmcnt(0)")
        a("v_cmp_ne_u32 vcc, s61, v15")
        self.guard_br("L_m_st")
        a("v_lshlrev_b32 v12, 16, v14\nv_and_b32 v13, s28, v14\nv_rcp_f32 v13, v13")
        for r in (16, 17):
            a(f"v_lshlrev_b32 v30, 16, v{r}\nv_and_b32 v31, s28, v{r}\nv_sub_f32 v30, v30, v12\nv_sub_f32 v31, v31, v12")
            a("v_cvt_pk_bf16_f32 v32, v30, v31\nv_lshlrev_b32 v30, 16, v32\nv_and_b32 v31, s28, v32")
            a(f"v_mul_f32 v30, v30, v13\nv_mul_f32 v31, v31, v13\nv_cvt_pk_bf16_f32 v{r}, v30, v31")
        a(f"v_lshlrev_b32 v6, 7, v6\nv_lshl_add_u32 v6, v9, 3, v6\nv_add_u32 v6, {L_XS}, v6\nds_write_b64 v6, v[16:17]")
        a(f"v_mov_b32 v6, {L_FLG}\ns_waitcnt lgkmcnt(0)")
        self.lds_spin("v6", "v7", "s35", "ge", 2, off=36)
        self.moe_tile_gemm(L_AUX, 2, L_XS)
        if "moegate" in self.opts:
            a(f"v_mov_b32 v6, {L_FLG}")
            self.lds_spin("v6", "v7", "s35", "ge", 2, off=8)
        a(f"s_lshl_b32 s29, s2, 11\ns_add_u32 s29, s29, {WS_P1}\nv_lshlrev_b32 v6, 4, v1\ns_mov_b64 exec, 0xffff")
        for t in range(8): a(f"buffer_store_dwordx4 v[{64+4*t}:{67+4*t}], v6, s[12:15], s29 offen offset:{256*t} sc1")
        a("s_mov_b64 exec, -1")
        self.stamp(6)
        a("s_mul_i32 s57, s2, 205\ns_lshr_b32 s57, s57, 11")
        a(f"s_lshl_b32 s29, s57, 11\ns_add_u32 s29, s29, {WS_P1}\nv_lshlrev_b32 v6, 4, v1")
        a(f"v_min_u32 v7, 9, v1\nv_mul_u32_u24 v7, {24*2048}, v7\nv_add_u32 v7, {127*16+8}, v7")
        a("L_m_p1t:\nbuffer_load_dword v8, v7, s[12:15], s29 offen sc1\ns_waitcnt vmcnt(0)\nv_cmp_ne_u32 vcc, s61, v8")
        self.guard_br("L_m_p1t")
        a("L_m_p1:")
        for kc in range(10):
            a(f"s_add_u32 s30, s29, {kc*24*2048}\nbuffer_load_dwordx4 v[{64+8*kc}:{67+8*kc}], v6, s[12:15], s30 offen sc1\nbuffer_load_dwordx4 v[{68+8*kc}:{71+8*kc}], v6, s[12:15], s30 offen offset:1024 sc1")
        a("s_waitcnt vmcnt(0)")
        a("v_cmp_ne_u32 vcc, s61, v66")
        for k in range(1, 20): a(f"v_cmp_ne_u32 s[62:63], s61, v{66+4*k}\ns_or_b64 vcc, vcc, s[62:63]")
        self.guard_br("L_m_p1")
        a(f"v_mov_b32 v6, {L_FLG}\nv_mov_b32 v7, 1\nds_write_b32 v6, v7 offset:56")
        for kc in range(1, 10):
            for o in (0, 1, 4, 5): a(f"v_add_f32 v{64+o}, v{64+o}, v{64+8*kc+o}")
        for c in range(2):
            g_, u_ = 64 + c, 68 + c
            a(f"v_cvt_pk_bf16_f32 v{g_}, v{g_}, v{g_}\nv_lshlrev_b32 v{g_}, 16, v{g_}\nv_cvt_pk_bf16_f32 v{u_}, v{u_}, v{u_}\nv_lshlrev_b32 v{u_}, 16, v{u_}")
            a(f"v_mul_f32 v46, {f32hex(-1.4426950408889634)}, v{g_}\nv_exp_f32 v46, v46\nv_add_f32 v46, 1.0, v46\nv_rcp_f32 v46, v46\nv_mul_f32 v46, v{g_}, v46")
            a(f"v_cvt_pk_bf16_f32 v46, v46, v46\nv_lshlrev_b32 v46, 16, v46\nv_mul_f32 v{g_}, v46, v{u_}")
        a("v_cvt_pk_bf16_f32 v16, v64, v65")
        a(f"v_lshlrev_b32 v6, 1, v1\nv_add_u32 v6, {L_HS}, v6\nds_write_b16 v6, v16\nds_write_b16_d16_hi v6, v16 offset:128")
        a(f"v_mov_b32 v6, {L_FLG}\ns_waitcnt lgkmcnt(0)")
        self.lds_spin("v6", "v7", "s35", "ge", 2, off=36)
        self.moe_tile_gemm(L_AUX + 16384, 1, L_HS)
        a(f"s_lshl_b32 s29, s2, 10\ns_add_u32 s29, s29, {WS_P3}\nv_lshlrev_b32 v6, 4, v1\ns_mov_b64 exec, 0xffff")
        for t in range(4): a(f"buffer_store_dwordx4 v[{64+4*t}:{67+4*t}], v6, s[12:15], s29 offen offset:{256*t} sc1")
        a("s_mov_b64 exec, -1")
        self.stamp(7)
        a("s_branch L_m_end")
        a("L_m_s4:")
        a(f"v_mov_b32 v6, {L_FLG}\nv_mov_b32 v7, 1\nds_write_b32 v6, v7 offset:56")
        a("s_cmp_ge_u32 s2, 250\ns_cbranch_scc1 L_m_end")
        a(f"s_sub_u32 s57, s2, 240\ns_lshl_b32 s29, s57, 10\ns_add_u32 s29, s29, {WS_P3}\nv_lshlrev_b32 v6, 4, v1")
        a(f"v_min_u32 v7, 23, v1\nv_mul_u32_u24 v7, {10*1024}, v7\nv_add_u32 v7, {63*16+8}, v7")
        a("L_m_p3t:\nbuffer_load_dword v8, v7, s[12:15], s29 offen sc1\ns_waitcnt vmcnt(0)\nv_cmp_ne_u32 vcc, s61, v8")
        self.guard_br("L_m_p3t")
        a("L_m_p3:")
        for kc in range(24):
            a(f"s_add_u32 s30, s29, {kc*10*1024}\nbuffer_load_dwordx4 v[{64+4*kc}:{67+4*kc}], v6, s[12:15], s30 offen sc1")
        a("s_waitcnt vmcnt(0)")
        a("v_cmp_ne_u32 vcc, s61, v66")
        for k in range(1, 24): a(f"v_cmp_ne_u32 s[62:63], s61, v{66+4*k}\ns_or_b64 vcc, vcc, s[62:63]")
        self.guard_br("L_m_p3")
        for kc in range(1, 24): a(f"v_add_f32 v64, v64, v{64+4*kc}\nv_add_f32 v65, v65, v{65+4*kc}")
        for c in range(2):
            a(f"v_cvt_pk_bf16_f32 v{64+c}, v{64+c}, v{64+c}\nv_lshlrev_b32 v{64+c}, 16, v{64+c}")
            sr = "s68" if c == 0 else "s69"
            a(f"v_mov_b32 v46, {sr}\nv_mul_f32 v46, {f32hex(-1.4426950408889634)}, v46\nv_exp_f32 v46, v46\nv_add_f32 v46, 1.0, v46\nv_rcp_f32 v46, v46")
            a(f"v_cvt_pk_bf16_f32 v46, v46, v46\nv_lshlrev_b32 v46, 16, v46\nv_mul_f32 v{64+c}, v{64+c}, v46")
        a("v_cvt_pk_bf16_f32 v48, v64, v65\nv_mov_b32 v49, s61")
        a(f"s_lshl_b32 s29, s57, 9\ns_add_u32 s29, s29, {WS_UPD}\nv_lshlrev_b32 v6, 3, v1\nbuffer_store_dwordx2 v[48:49], v6, s[12:15], s29 offen sc1")
        self.stamp(7)
        a("L_m_end:")

    def small_gemm(self, nk, astride, jjoff, bstride):
        a = self.a
        self.lg_reset()
        def rd(s_):
            b = 50 + 8 * (s_ % 3)
            a(f"ds_read_b128 v[{b}:{b+3}], v30 offset:{astride*s_}")
            a(f"ds_read_b64_tr_b16 v[{b+4}:{b+5}], v32 offset:{bstride*s_}\nds_read_b64_tr_b16 v[{b+6}:{b+7}], v32 offset:{bstride*s_+jjoff}")
            self.lg_issue(("G", s_), 3)
        rd(0); rd(1)
        for s_ in range(nk):
            if s_ + 2 < nk: rd(s_ + 2)
            self.lg_wait(("G", s_))
            b = 50 + 8 * (s_ % 3)
            a(f"v_mfma_f32_16x16x32_bf16 v[40:43], v[{b}:{b+3}], v[{b+4}:{b+7}], {'0' if s_ == 0 else 'v[40:43]'}")

    def aux(self):
        a = self.a
        a("L_aux:")
        self.post_srd = []
        self.srd(40, 72, 256)
        a("v_mov_b32 v2, 0")
        a(f"v_lshlrev_b32 v6, 2, v1\nv_add_u32 v6, {L_FLG}, v6\ns_mov_b32 exec_hi, 0\nds_write_b32 v6, v2\ns_mov_b64 exec, -1")
        a("s_memrealtime s[54:55]")
        a("s_lshl_b32 s23, s46, 3\ns_add_u32 s23, s23, s20")
        a("s_waitcnt lgkmcnt(0)")
        self.srd_fin()
        self.stamp(0)
        a("v_mov_b32 v9, 0")
        a("s_cmp_lg_u32 s2, 0\ns_cbranch_scc1 L_x_non")
        a("s_or_b32 s54, s54, 1\nv_mov_b32 v10, s54\ns_mov_b64 exec, 1\nbuffer_store_dword v10, v9, s[40:43], 0 offen sc1\ns_mov_b64 exec, -1")
        a("L_x_non:")
        a("s_getreg_b32 s52, hwreg(HW_REG_XCC_ID, 0, 4)")
        a("s_and_b32 s52, s52, 7\ns_or_b32 s52, s52, 16\ns_mov_b32 s28, 0xffff0000")
        a("s_barrier")
        a("buffer_load_dword v10, v9, s[40:43], 0 offen sc1")
        def get_nonce():
            a("s_waitcnt vmcnt(0)")
            a("L_x_wn:\nv_cmp_ne_u32 vcc, 0, v10\ns_cbranch_vccnz L_x_gotn")
            a("buffer_load_dword v10, v9, s[40:43], 0 offen sc1\ns_waitcnt vmcnt(0)\ns_add_u32 s100, s100, 1\ns_bitcmp1_b32 s100, 21\ns_cbranch_scc0 L_x_wn")
            a("L_x_gotn:")
            a("v_readfirstlane_b32 s61, v10")
            a(f"v_mov_b32 v6, {L_FLG}\nds_write_b32 v6, v10 offset:4")
            a(f"s_lshl_b32 s31, s17, 5\ns_add_u32 s31, s31, s18\ns_lshl_b32 s31, s31, 4\ns_add_u32 s31, s31, {WS_XF}")
            a("v_mov_b32 v14, s52\nv_mov_b32 v15, v10\ns_mov_b64 exec, 1\nbuffer_store_dwordx2 v[14:15], v9, s[12:15], s31 offen sc1\ns_mov_b64 exec, -1")
            self.stamp(1)
        def pub_st():
            a(f"v_and_b32 v12, 7, v1\nv_lshlrev_b32 v13, 3, v12\nv_add_u32 v13, {L_OWN}, v13\nds_read_b64 v[18:19], v13")
            a("s_lshl_b32 s29, s23, 3\ns_lshl_b32 s30, s19, 7\ns_add_u32 s29, s29, s30\ns_lshl_b32 s29, s29, 4")
            a("v_lshlrev_b32 v12, 4, v1\nv_mov_b32 v21, s61\nv_mov_b32 v23, s61")
            a("s_waitcnt lgkmcnt(0)\nv_mov_b32 v20, v18\nv_mov_b32 v22, v19")
            a("s_mov_b64 exec, 0xff\nbuffer_store_dwordx4 v[20:23], v12, s[12:15], s29 offen sc1\ns_mov_b64 exec, -1")
            a("v_cmp_gt_u32 vcc, 8, v1\nv_mov_b32 v30, 0\nv_cndmask_b32 v30, v30, v19, vcc\nv_mov_b32 v32, 0")
            for ctrl in ("quad_perm:[1,0,3,2]", "quad_perm:[2,3,0,1]", "row_half_mirror"):
                a(f"v_mov_b32_dpp v34, v30 {ctrl} row_mask:0xf bank_mask:0xf\nv_mov_b32_dpp v35, v32 {ctrl} row_mask:0xf bank_mask:0xf")
                self.top2_merge("v30", "v32", "v34", "v35", "v36")
            a(f"s_lshl_b32 s29, s2, 4\ns_add_u32 s29, s29, {WS_FR}\nv_mov_b32 v28, s29\nv_mov_b32 v31, s61\nv_mov_b32 v33, s61")
            a("s_mov_b64 exec, 1\nbuffer_store_dwordx4 v[30:33], v28, s[12:15], 0 offen sc1\ns_mov_b64 exec, -1")
        def gather_issue():
            a(f"s_lshl_b32 s29, s19, 11\ns_add_u32 s29, s29, {WS_ST}\nv_lshlrev_b32 v9, 5, v1")
            a("buffer_load_dwordx4 v[40:43], v9, s[12:15], s29 offen sc1")
            a("buffer_load_dwordx4 v[44:47], v9, s[12:15], s29 offen offset:16 sc1")
            a(f"s_lshl_b32 s31, s17, 9\ns_add_u32 s31, s31, {WS_XF}\nv_and_b32 v16, 31, v1\nv_lshlrev_b32 v16, 4, v16")
            a("buffer_load_dwordx2 v[18:19], v16, s[12:15], s31 offen sc1")
        def gather_check(Lok):
            a("s_waitcnt vmcnt(0)")
            a("v_cmp_ne_u32 vcc, s61, v41\nv_cmp_ne_u32 s[62:63], s61, v45\ns_or_b64 vcc, vcc, s[62:63]")
            if "nocheck" in self.opts: a(f"s_branch {Lok}")
            a(f"s_cbranch_vccz {Lok}")
        tst = self.b_stats
        for t in range(9):
            a("s_barrier")
            if t == 1: get_nonce()
            if t == tst: pub_st()
            if t == max(self.TG, tst + 2): gather_issue()
        gather_check("L_x_gdone")
        a("L_x_gretry:")
        gather_issue()
        gather_check("L_x_gdone")
        self.guard("L_x_gretry")
        a("L_x_gdone:")
        a("v_lshlrev_b32 v24, 16, v40\nv_and_b32 v25, 0xffff0000, v40\nv_lshlrev_b32 v26, 16, v44\nv_and_b32 v27, 0xffff0000, v44")
        a("v_rcp_f32 v25, v25\nv_rcp_f32 v27, v27")
        a(f"v_lshlrev_b32 v28, 4, v1\nv_add_u32 v28, {L_STAT}, v28")
        a("ds_write_b128 v28, v[24:27]")
        a("s_waitcnt vmcnt(0)")
        a("v_cmp_ne_u32 vcc, s52, v18\nv_cmp_ne_u32 s[62:63], s61, v19\ns_or_b64 vcc, vcc, s[62:63]")
        a("s_cmp_eq_u64 vcc, 0\ns_cselect_b32 s56, 1, 0")
        if "slow" in self.opts: a("s_mov_b32 s56, 0")
        a(f"v_mov_b32 v28, {L_FLG}\nv_mov_b32 v29, s56\nds_write_b32 v28, v29\ns_waitcnt lgkmcnt(0)")
        self.stamp(2)
        a("s_barrier")
        self.stamp(3); self.stamp(4)
        if self.stop_after is None:
            a("s_mov_b32 s28, 0xffff0000\ns_setprio 3")
            if self.stamps:
                for k in (5, 6, 7): a(f"s_mov_b64 s[{72+2*k}:{73+2*k}], 0")
            if "nomoe" not in self.opts: self.moe_aux()
        if "lstamp" not in self.opts and "lloop" not in self.opts: self.fin_stamps(8 if self.stop_after is None else 5, wave=10, slot=1)
        a("s_endpgm")

if __name__ == "__main__":
    import argparse
    ap = argparse.ArgumentParser()
    ap.add_argument("-o", default="k.s")
    ap.add_argument("--stamps", action="store_true")
    ap.add_argument("--opt", action="append", default=[])
    args = ap.parse_args()
    g = Gen(stamps=args.stamps, opts=args.opt)
    open(args.o, "w").write(g.build())
    print("wrote", args.o)
```

```python
import sys, struct
from asmlib import Asm

KNAME = "parallel_sum__sliding_block__moe_arch_mod__prompt_kernel"

WS_ST = 0
WS_CSP = 0x8000
WS_F1 = 0x48000
WS_F2 = 0xBC0000
WS_FR = 0x57000
WS_XF = 0x50400
WS_XH = 0x52000
WS_UPD = 0x55000
WS_P1 = 0x60000
WS_P3 = 0xB80000
WS_QKV = 0x100000
WS_O = 0x900000
WS_DBG = 0xC00000
WS_HB = 0xD00000
WS_F1H = 0x4C000
WS_SIZE = 0xF00000
L_MISC = 131072
L_STAT = L_MISC
L_CS = L_MISC + 1024
L_CSW = L_MISC + 2176
L_OWN = L_MISC + 2048
L_FLG = L_MISC + 6400
L_XS = L_MISC + 6656
L_HS = L_MISC + 6912
L_AUX = 138240
LB_K = 0
LB_V = 24768
PLS = 8256
LA1 = 49664
LBB = 107008
LA2 = 0
L_EX = 24832
LQ = 107008
NEGF = "0xf149f2ca"
LDS_BYTES = 163840
QSCALE = 0.22360679774997896 * 1.4426950408889634

def f32hex(x):
    return "0x%08x" % struct.unpack("<I", struct.pack("<f", x))[0]

class Gen:
    def __init__(self, stop_after=None, stamps=False, opts=()):
        self.a = Asm()
        self.opts = set(opts)
        self.stop_after = stop_after
        self.stamps = stamps
        self.in_main = False
        self.swave = 0; self.quota = 24; self.TG = 6; self.TP = 1; self.SIDE0 = 1; self.Q0 = 50; self.Q1 = 100; self.LM0 = 1; self.BACK = 8; self.PRE = 3
        for o in self.opts:
            if o.startswith("swave="): self.swave = int(o[6:])
            if o.startswith("quota="): self.quota = int(o[6:])
            if o.startswith("pre="): self.PRE = int(o[4:])
            if o.startswith("tg="): self.TG = int(o[3:])
            if o.startswith("side0="): self.SIDE0 = int(o[6:])
            if o.startswith("tp="): self.TP = int(o[3:])
            if o.startswith("q0="): self.Q0 = int(o[3:])
            if o.startswith("q1="): self.Q1 = int(o[3:])
            if o.startswith("lm0="): self.LM0 = int(o[4:])
            if o.startswith("back="): self.BACK = int(o[5:])
            if o.startswith("stop="): self.stop_after = o[5:]

    def srd(self, base, kofs, size):
        self.a(f"s_load_dwordx2 s[{base}:{base+1}], s[0:1], {kofs}")
        self.post_srd.append((base, size))
    def srd_fin(self):
        for base, size in self.post_srd:
            self.a(f"s_mov_b32 s{base+2}, {size}\ns_mov_b32 s{base+3}, 0x20000")
        self.post_srd = []
    def stamp(self, idx):
        if self.stamps and self.in_main and "bst" in self.opts and idx != 0: return
        if self.stamps:
            self.a(f"s_memrealtime s[{72+2*idx}:{73+2*idx}]")
            if idx == 0: self.a("s_memtime s[96:97]")
    def fin_stamps(self, n, wave=0, slot=0):
        if not self.stamps: return
        a = self.a
        L = a.label("nostamp")
        a("s_memtime s[98:99]")
        a("s_waitcnt lgkmcnt(0)")
        a(f"s_cmp_lg_u32 s16, {wave}\ns_cbranch_scc1 {L}")
        a(f"s_lshl_b32 s29, s2, 8\ns_add_u32 s29, s29, {WS_DBG + 128*slot}\nv_mov_b32 v4, s29\ns_mov_b64 exec, 1")
        for i in range(n):
            a(f"v_mov_b32 v6, s{72+2*i}\nv_mov_b32 v7, s{73+2*i}\nbuffer_store_dwordx2 v[6:7], v4, s[12:15], 0 offen offset:{8*i}")
        a("s_sub_u32 s98, s98, s96\nv_mov_b32 v6, s98\nv_mov_b32 v7, 0\nbuffer_store_dwordx2 v[6:7], v4, s[12:15], 0 offen offset:120")
        a(f"s_mov_b64 exec, -1\n{L}:")

    def top2_merge(self, a1, a2, b1, b2, mn):
        a = self.a
        a(f"v_min_u32 {mn}, {a1}, {b1}")
        a(f"v_max_u32 {a1}, {a1}, {b1}")
        a(f"v_max3_u32 {a2}, {a2}, {b2}, {mn}")
    def top2_wave(self, a1, a2, b1, b2, mn):
        a = self.a
        for ctrl in ("quad_perm:[1,0,3,2]", "quad_perm:[2,3,0,1]", "row_half_mirror", "row_mirror"):
            a(f"v_mov_b32_dpp {b1}, {a1} {ctrl} row_mask:0xf bank_mask:0xf")
            a(f"v_mov_b32_dpp {b2}, {a2} {ctrl} row_mask:0xf bank_mask:0xf")
            self.top2_merge(a1, a2, b1, b2, mn)
        for sw in ("v_permlane16_swap_b32", "v_permlane32_swap_b32"):
            a(f"v_mov_b32 {b1}, {a1}\nv_mov_b32 {b2}, {a2}")
            a(f"{sw} {a1}, {b1}\n{sw} {a2}, {b2}")
            self.top2_merge(a1, a2, b1, b2, mn)
    def sum_wave_lines(self, regs, tmps):
        out = []
        for ctrl in ("quad_perm:[1,0,3,2]", "quad_perm:[2,3,0,1]", "row_half_mirror", "row_mirror"):
            for r in regs: out.append(f"v_add_f32_dpp {r}, {r}, {r} {ctrl} row_mask:0xf bank_mask:0xf")
        for sw in ("v_permlane16_swap_b32", "v_permlane32_swap_b32"):
            for r, t in zip(regs, tmps): out.append(f"v_mov_b32 {t}, {r}")
            for r, t in zip(regs, tmps): out.append(f"{sw} {r}, {t}")
            for r, t in zip(regs, tmps): out.append(f"v_add_f32 {r}, {r}, {t}")
        return out
    @staticmethod
    def bf16r(dst, src):
        return [f"v_cvt_pk_bf16_f32 {dst}, {src}, {src}", f"v_lshlrev_b32 {dst}, 16, {dst}"]
    @staticmethod
    def key_lines(rf, row, dst, t1, t2):
        return [f"v_cvt_pk_bf16_f32 {dst}, {rf}, {rf}", f"v_and_b32 {dst}, 0xffff, {dst}",
                f"v_or_b32 {t1}, 0x8000, {dst}", f"v_xor_b32 {t2}, 0xffff, {dst}",
                f"v_cmp_lt_u32 vcc, 0x7fff, {dst}\nv_cndmask_b32 {dst}, {t1}, {t2}, vcc",
                f"v_mov_b32 {t1}, 0",
                f"v_cmp_u_f32 vcc, {rf}, {rf}\nv_cndmask_b32 {dst}, {dst}, {t1}, vcc",
                f"v_sub_u32 {t1}, 0xfff, {row}", f"v_lshl_or_b32 {dst}, {dst}, 16, {t1}"]
    def guard(self, L):
        self.a(f"s_add_u32 s100, s100, 1\ns_bitcmp1_b32 s100, 21\ns_cbranch_scc0 {L}")
    def lds_spin(self, vaddr, vtmp, stmp, cmp_, val, off=0):
        a = self.a
        L = a.label("spin")
        a(f"{L}:\nds_read_b32 {vtmp}, {vaddr} offset:{off}\ns_waitcnt lgkmcnt(0)")
        Lo = a.label("spino")
        a(f"v_readfirstlane_b32 {stmp}, {vtmp}\ns_cmp_{cmp_}_u32 {stmp}, {val}\ns_cbranch_scc1 {Lo}")
        self.guard(L)
        a(f"{Lo}:")

    def build(self):
        a = self.a
        a.raw(f"; @launch grid=(256,1,1) block=(704,1,1) lds={LDS_BYTES}")
        a.raw('.amdgcn_target "amdgcn-amd-amdhsa--gfx950"')
        a.raw(".text")
        a.raw(f".globl {KNAME}")
        a.raw(".p2align 8")
        a.raw(f".type {KNAME},@function")
        a.raw(f"{KNAME}:")
        self.post_srd = []
        a("s_cmp_ge_u32 s2, 256\ns_cbranch_scc1 L_end")
        self.srd(4, 0, 2621440)
        self.srd(8, 8, 2457600)
        self.srd(12, 80, WS_SIZE)
        self.srd(36, 32, 1280)
        a("v_and_b32 v1, 63, v0\nv_lshrrev_b32 v2, 6, v0\ns_mov_b32 s100, 0")
        a("s_and_b32 s17, s2, 7\ns_lshr_b32 s18, s2, 3")
        a("v_readfirstlane_b32 s16, v2")
        a("s_and_b32 s46, s17, 1\ns_lshr_b32 s47, s17, 1\ns_lshr_b32 s48, s18, 3\ns_and_b32 s20, s18, 7")
        a("s_lshl_b32 s19, s47, 2\ns_add_u32 s19, s19, s48")
        self.srd_fin()
        a("s_cmp_eq_u32 s16, 10\ns_cbranch_scc1 L_aux")
        a("s_cmp_ge_u32 s16, 8\ns_cbranch_scc1 L_loader")
        self.in_main = True
        self.phase_a()
        self.in_main = False
        a("L_end:\ns_endpgm")
        self.loader()
        self.aux()
        a.raw(".section .rodata,\"a\"\n.p2align 6")
        a.raw(f".amdhsa_kernel {KNAME}")
        a.raw("  .amdhsa_next_free_vgpr 168\n  .amdhsa_next_free_sgpr 102\n  .amdhsa_accum_offset 168")
        a.raw("  .amdhsa_group_segment_fixed_size 0\n  .amdhsa_kernarg_size 88\n  .amdhsa_user_sgpr_count 2")
        a.raw("  .amdhsa_user_sgpr_kernarg_segment_ptr 1\n  .amdhsa_system_sgpr_workgroup_id_x 1")
        a.raw("  .amdhsa_float_denorm_mode_32 3\n  .amdhsa_float_denorm_mode_16_64 3")
        a.raw(".end_amdhsa_kernel")
        return a.finalize()

    NST = 20
    def dma_x(self, m, half):
        self.a(f"s_add_u32 m0, s26, {(m & 3) * 16384 + 1024 * half}\ns_nop 0")
        self.a(f"buffer_load_dwordx4 v{10 if half == 0 else 9}, s[4:7], s58 offen lds")
        if half == 1: self.a("s_add_u32 s58, s58, 128\ns_cmp_eq_u32 s58, 1280\ns_cselect_b32 s58, 0, s58")
        self.vm_seq.append(("X", m))
    def dma_w(self, t):
        self.a(f"s_add_u32 m0, s27, {(t & 7) * 8192}\ns_mov_b64 exec, s[24:25]")
        self.a("buffer_load_dwordx4 v11, s[8:11], s59 offen lds\ns_mov_b64 exec, -1")
        self.a(f"s_add_u32 s59, s59, 122880\ns_cmp_eq_u32 s59, {20*122880}\ns_cselect_b32 s59, 0, s59")
        self.vm_seq.append(("W", t))
    def vm_need(self, needs):
        if not any(op in needs for op in self.vm_seq): return 0
        last = max(i for i, op in enumerate(self.vm_seq) if op in needs)
        return len(self.vm_seq) - 1 - last
    def a_read_list(self, n):
        if "noreads" in self.opts: return []
        t, s = n >> 1, n & 1
        m, s4 = n >> 2, n & 3
        xo = (m & 3) * 16384
        wo = (t & 7) * 8192 + 4096 * s
        fs = 24 + 16 * (n % 3)
        return [f"ds_read_b128 v[{fs}:{fs+3}], v{12+s4} offset:{xo}",
                f"ds_read_b64_tr_b16 v[{fs+8}:{fs+9}], v16 offset:{wo}",
                f"ds_read_b64_tr_b16 v[{fs+10}:{fs+11}], v16 offset:{wo+1024}",
                f"ds_read_b128 v[{fs+4}:{fs+7}], v{12+s4} offset:{xo+4096}",
                f"ds_read_b64_tr_b16 v[{fs+12}:{fs+13}], v17 offset:{wo}",
                f"ds_read_b64_tr_b16 v[{fs+14}:{fs+15}], v17 offset:{wo+1024}"]
    def a_reads(self, n):
        for l in self.a_read_list(n): self.a(l)
    def col_oct(self, gam, dst, t):
        a = self.a
        a(f"s_mul_i32 {t}, {gam}, 26\ns_lshr_b32 {t}, {t}, 8\ns_add_u32 {t}, {t}, s46\ns_mul_i32 {t}, {t}, 40")
        a(f"s_lshl_b32 {dst}, {gam}, 2\ns_add_u32 {dst}, {dst}, {t}")

    def o_fill(self):
        a = self.a
        if self.stop_after is None:
            a("s_and_b32 s62, s18, 15\ns_lshl_b32 s29, s46, 4\ns_add_u32 s62, s62, s29\ns_lshr_b32 s63, s18, 4\ns_lshl_b32 s29, s47, 1\ns_add_u32 s63, s63, s29")
            a("s_lshl_b32 s34, s63, 8\ns_lshl_b32 s35, s16, 5\ns_add_u32 s34, s34, s35")
            a("v_and_b32 v2, 31, v1\nv_lshrrev_b32 v3, 5, v1\nv_add_u32 v5, s34, v2\nv_lshlrev_b32 v5, 3, v5\nv_lshl_add_u32 v5, v3, 14, v5")
            a(f"s_mul_i32 s35, s62, {5*16384}\ns_add_u32 s35, s35, {WS_O}\nv_mov_b32 v6, -1\nv_mov_b32 v7, -1\ns_waitcnt lgkmcnt(0)")
            a("buffer_store_dwordx2 v[6:7], v5, s[12:15], s35 offen sc1")
            a("s_add_u32 s35, s35, 32768\nbuffer_store_dwordx2 v[6:7], v5, s[12:15], s35 offen sc1")
            a("s_add_u32 s35, s35, 32768\ns_mov_b32 exec_hi, 0\nbuffer_store_dwordx2 v[6:7], v5, s[12:15], s35 offen sc1\ns_mov_b64 exec, -1")

    def o_fill2(self):
        a = self.a
        if self.stop_after is not None: return
        a("s_and_b32 s62, s18, 15\ns_lshl_b32 s29, s46, 4\ns_add_u32 s62, s62, s29\ns_lshr_b32 s63, s18, 4\ns_lshl_b32 s29, s47, 1\ns_add_u32 s63, s63, s29")
        a("s_lshl_b32 s34, s63, 8\ns_lshl_b32 s35, s16, 5\ns_add_u32 s34, s34, s35")
        a("v_add_u32 v148, s34, v2\nv_lshlrev_b32 v148, 3, v148\nv_lshl_add_u32 v148, v3, 14, v148")
        a(f"s_mul_i32 s35, s62, {5*16384}\ns_add_u32 s35, s35, {WS_O}\nv_mov_b32 v150, -1\nv_mov_b32 v151, -1")
        a("buffer_store_dwordx2 v[150:151], v148, s[12:15], s35 offen sc1")
        a("s_add_u32 s35, s35, 32768\nbuffer_store_dwordx2 v[150:151], v148, s[12:15], s35 offen sc1")
        a("s_add_u32 s35, s35, 32768\ns_mov_b32 exec_hi, 0\nbuffer_store_dwordx2 v[150:151], v148, s[12:15], s35 offen sc1\ns_mov_b64 exec, -1")
    def ln_stats_tasks(self):
        pk = "lnpk" in self.opts
        g = []
        X, Wr = 104, 114
        g.append(("wait",))
        g.append("v_lshlrev_b32 v124, 16, v104\nv_readlane_b32 s51, v124, 0\nv_readlane_b32 s52, v124, 32")
        g.append("v_mov_b32 v138, s52\nv_mov_b32 v139, s51\nv_cmp_gt_u32 vcc, 32, v1\nv_cndmask_b32 v138, v138, v139, vcc")
        for i in range(10):
            g += [f"v_lshlrev_b32 v132, 16, v{X+i}", f"v_and_b32 v133, s28, v{X+i}",
                  f"v_lshlrev_b32 v134, 16, v{Wr+i}", f"v_and_b32 v135, s28, v{Wr+i}",
                  "v_sub_f32 v136, v132, v138", "v_sub_f32 v137, v133, v138"]
            if i == 0:
                g += ["v_mul_f32 v128, v132, v134", "v_add_f32 v124, v136, v137", "v_mul_f32 v126, v136, v136", "v_add_f32 v130, v134, v135",
                      "v_fmac_f32 v128, v133, v135", "v_fmac_f32 v126, v137, v137"]
            else:
                g += ["v_fmac_f32 v128, v132, v134", "v_add_f32 v124, v124, v136", "v_fmac_f32 v126, v136, v136", "v_add_f32 v130, v130, v134",
                      "v_fmac_f32 v128, v133, v135", "v_add_f32 v124, v124, v137", "v_fmac_f32 v126, v137, v137", "v_add_f32 v130, v130, v135"]
        regs = ["v124", "v126", "v128", "v130"]; tm = ["v125", "v127", "v129", "v131"]
        for ctrl in ("quad_perm:[1,0,3,2]", "quad_perm:[2,3,0,1]", "row_half_mirror", "row_mirror"):
            for r in regs: g.append(f"v_add_f32_dpp {r}, {r}, {r} {ctrl} row_mask:0xf bank_mask:0xf")
        for r, t in zip(regs, tm): g.append(f"v_mov_b32 {t}, {r}")
        for r, t in zip(regs, tm): g.append(f"v_permlane16_swap_b32 {r}, {t}")
        for r, t in zip(regs, tm): g.append(f"v_add_f32 {r}, {r}, {t}")
        g += ["v_mul_f32 v124, s44, v124", "v_mul_f32 v132, v124, v124", "v_fma_f32 v126, v126, s44, -v132", "v_max_f32 v126, 0, v126",
              "v_add_f32 v124, v138, v124"]
        g += self.bf16r("v124", "v124") + self.bf16r("v126", "v126") + ["v_add_f32 v126, s45, v126"] + self.bf16r("v126", "v126")
        g += ["v_sqrt_f32 v126, v126"] + self.bf16r("v126", "v126") + ["v_rcp_f32 v132, v126"]
        g += ["v_fma_f32 v128, -v124, v130, v128", "v_mul_f32 v128, v128, v132"]
        g += self.key_lines("v128", "v20", "v141", "v134", "v135")
        g += ["v_lshrrev_b32 v140, 16, v124", "v_or_b32 v140, v140, v126"]
        g.append("s_mov_b32 exec_lo, 1\ns_mov_b32 exec_hi, 1\nds_write_b64 v21, v[140:141]\ns_mov_b64 exec, -1\ns_waitcnt lgkmcnt(0)")
        g.append(("mark",))
        return g

    def ln_wave(self):
        a = self.a
        a("L_ln:")
        a("s_sub_u32 s21, s16, 4")
        a("v_and_b32 v2, 31, v1\nv_lshrrev_b32 v3, 5, v1")
        a("s_lshl_b32 s23, s46, 3\ns_add_u32 s23, s23, s20\ns_lshl_b32 s23, s23, 3\ns_lshl_b32 s29, s21, 1\ns_add_u32 s23, s23, s29")
        a("s_lshl_b32 s29, s19, 7\ns_add_u32 s23, s23, s29\nv_add_u32 v20, s23, v3")
        a("v_mul_u32_u24 v4, 1280, v20\nv_lshl_add_u32 v4, v2, 3, v4\nv_lshlrev_b32 v5, 3, v2")
        a(f"s_lshl_b32 s29, s21, 4\ns_add_u32 s29, s29, {L_OWN}\nv_lshl_add_u32 v21, v3, 3, s29")
        a("s_lshr_b32 s29, s21, 1\ns_lshl_b32 s29, s29, 13\ns_and_b32 s30, s21, 1\ns_lshl_b32 s30, s30, 12\ns_add_u32 s29, s29, s30\ns_add_u32 s29, s29, 65536")
        a("v_lshrrev_b32 v8, 4, v1\nv_lshlrev_b32 v9, 2, v8\nv_and_b32 v10, 15, v1\nv_xor_b32 v9, v9, v10\nv_lshlrev_b32 v9, 4, v9")
        a("v_lshl_add_u32 v9, v8, 8, v9\nv_add_u32 v16, s29, v9")
        a(f"s_mov_b32 s28, 0xffff0000\ns_mov_b32 s44, {f32hex(1.0/640.0)}\ns_mov_b32 s45, {f32hex(1e-5)}\ns_waitcnt lgkmcnt(0)")
        tasks = self.ln_stats_tasks()
        a("s_barrier")
        if "fill2" in self.opts: self.o_fill2()
        for i in range(5): a(f"buffer_load_dwordx2 v[{104+2*i}:{105+2*i}], v4, s[4:7], 0 offen offset:{256*i}")
        for i in range(5): a(f"buffer_load_dwordx2 v[{114+2*i}:{115+2*i}], v5, s[36:39], 0 offen offset:{256*i}")
        pk = "lnpk" in self.opts
        for m in range(10):
            if m >= 1: a("s_barrier")
            if "noside" in self.opts:
                self.b_stats = 1; continue
            wo = ((2 * m) & 7) * 8192
            for i in range(4): a(f"ds_read_b128 v[{48+4*i}:{51+4*i}], v16 offset:{wo + 1024*i}")
            for i in range(4):
                a(f"s_waitcnt lgkmcnt({3-i})")
                for d in range(4):
                    src = 48 + 4 * i + d; acc = 72 + 2 * d; t = 64 + 2 * (d & 1)
                    if m == 0 and i == 0:
                        a(f"v_lshlrev_b32 v{acc}, 16, v{src}\nv_and_b32 v{acc+1}, s28, v{src}")
                    elif pk:
                        a(f"v_lshlrev_b32 v{t}, 16, v{src}\nv_and_b32 v{t+1}, s28, v{src}\nv_pk_add_f32 v[{acc}:{acc+1}], v[{acc}:{acc+1}], v[{t}:{t+1}]")
                    else:
                        a(f"v_lshlrev_b32 v{t}, 16, v{src}\nv_and_b32 v{t+1}, s28, v{src}\nv_add_f32 v{acc}, v{acc}, v{t}\nv_add_f32 v{acc+1}, v{acc+1}, v{t+1}")
            q = self.Q1 if m >= self.LM0 else 0
            while tasks and q > 0:
                it = tasks.pop(0)
                if isinstance(it, tuple):
                    if it[0] == "mark": self.b_stats = m
                    else: a("s_waitcnt vmcnt(0)")
                else: a(it); q -= it.count("\n") + 1
        if "noside" not in self.opts:
            assert not tasks
            for p in range(4): a(f"v_permlane32_swap_b32 v{72+2*p}, v{73+2*p}")
            for p in range(4): a(f"v_add_f32 v{72+2*p}, v{72+2*p}, v{73+2*p}")
            a("v_permlane16_swap_b32 v72, v74\nv_permlane16_swap_b32 v76, v78")
            a("v_add_f32 v72, v72, v74\nv_add_f32 v76, v76, v78")
            self.cs_tail()
        a("s_waitcnt lgkmcnt(0)")
        a("s_branch L_a_bE1")

    def cs_tail(self):
        a = self.a
        a("v_and_b32 v7, 15, v1\nv_lshlrev_b32 v7, 3, v7\nv_bfe_u32 v8, v1, 4, 1\nv_lshl_add_u32 v7, v8, 1, v7\nv_add_u32 v7, v7, v3")
        a(f"s_lshl_b32 s29, s21, 9\ns_add_u32 s29, s29, {L_CSW}\nv_lshl_add_u32 v7, v7, 2, s29")
        a("ds_write_b32 v7, v72\nds_write_b32 v7, v76 offset:16")

    def phase_a(self):
        a = self.a
        a("; ---- phase A ----")
        if "fill2" not in self.opts: self.o_fill()
        a("s_cmp_ge_u32 s16, 4\ns_cbranch_scc1 L_ln")
        a("s_and_b32 s21, s16, 1\ns_lshr_b32 s22, s16, 1")
        self.stamp(0)
        a("v_and_b32 v2, 31, v1\nv_lshrrev_b32 v3, 5, v1")
        a("s_lshl_b32 s29, s22, 6\nv_add_u32 v4, s29, v2\nv_lshlrev_b32 v4, 7, v4")
        a("v_bfe_u32 v5, v1, 1, 3\nv_xor_b32 v8, v3, v5")
        for s4 in range(4):
            a(f"v_xor_b32 v7, {2*s4}, v8\nv_lshl_add_u32 v{12+s4}, v7, 4, v4")
        a("v_bfe_u32 v5, v1, 2, 2")
        a("v_lshl_add_u32 v8, v3, 3, v5\nv_lshlrev_b32 v8, 8, v8")
        a("v_bfe_u32 v9, v1, 4, 1\nv_lshlrev_b32 v9, 5, v9\nv_and_b32 v10, 3, v1\nv_lshlrev_b32 v10, 3, v10\nv_add3_u32 v8, v8, v9, v10")
        a("s_lshl_b32 s29, s21, 1")
        for ntl in range(2):
            a(f"s_add_u32 s30, s29, {ntl}\nv_xor_b32 v7, s30, v5\nv_lshl_add_u32 v7, v7, 6, v8\nv_add_u32 v{16+ntl}, 0x10000, v7")
        self.stamp(4)
        a("s_barrier")
        self.stamp(1)
        if "fill2" in self.opts: self.o_fill2()
        self.a_reads(0); self.a_reads(1)
        N = 40
        ACC = lambda ntl, stl: 72 + 32 * ntl + 16 * stl
        for n in range(N):
            m, i4 = n >> 2, n & 3
            fs = 24 + 16 * (n % 3)
            CL = self.stamps and "lloop" in self.opts and m in (4, 5) and i4 == 2
            if CL: self.stamp(5 + 2 * (m - 4))
            if i4 == 2 and m + 1 < 10: a("s_barrier")
            if CL: self.stamp(6 + 2 * (m - 4))
            if self.stamps and "bst" in self.opts and i4 == 2 and m < 9: a(f"s_memrealtime s[{72+2*(m+1)}:{73+2*(m+1)}]")
            a(f"s_waitcnt lgkmcnt({6 if n + 1 < N else 0})")
            rl = self.a_read_list(n + 2) if n + 2 < N else []
            nomf = "nomfma" in self.opts and n > 0
            k = 0
            for ntl in range(2):
                for stl in range(2):
                    A = ACC(ntl, stl)
                    c = "0" if n == 0 else f"v[{A}:{A+15}]"
                    if not nomf: a(f"v_mfma_f32_32x32x16_bf16 v[{A}:{A+15}], v[{fs+8+4*ntl}:{fs+11+4*ntl}], v[{fs+4*stl}:{fs+4*stl+3}], {c}")
                    for l in rl[2*k:2*k+2]: a(l)
                    k += 1
        self.stamp(2)
        a("L_a_bE1:")
        a("s_barrier")
        if "est" in self.opts: self.stamp(5)
        a("s_cmp_ge_u32 s16, 4\ns_cbranch_scc1 L_a_e2")
        a(f"s_lshl_b32 s29, s22, 9\ns_add_u32 s29, s29, {L_STAT}")
        a("v_lshl_add_u32 v4, v2, 3, s29")
        a("ds_read_b64 v[20:21], v4\nds_read_b64 v[22:23], v4 offset:256")
        a(f"s_lshl_b32 s29, s21, 8\ns_add_u32 s29, s29, {L_CSW}\nv_lshl_add_u32 v4, v2, 2, s29")
        for p in range(4):
            a(f"ds_read_b32 v{44+2*p}, v4 offset:{512*p}\nds_read_b32 v{45+2*p}, v4 offset:{512*p+128}")
        a(f"v_mov_b32 v5, {L_FLG}\nds_read_b32 v6, v5")
        a("s_lshl_b32 s33, s19, 7\ns_lshl_b32 s34, s22, 6\ns_add_u32 s33, s33, s34")
        a("v_add_u32 v4, s33, v2\nv_lshlrev_b32 v4, 4, v4\nv_lshl_add_u32 v4, v3, 15, v4")
        for r in (29, 30, 31, 33, 34, 35, 37, 38, 39, 41, 42, 43): a(f"v_mov_b32 v{r}, 0")
        a("v_cmp_gt_u32 vcc, 32, v1\nv_mov_b32 v7, 0")
        a("s_waitcnt lgkmcnt(0)")
        a("v_readfirstlane_b32 s41, v6")
        a("v_add_f32 v24, v44, v46\nv_add_f32 v25, v45, v47\nv_add_f32 v48, v48, v50\nv_add_f32 v49, v49, v51\nv_add_f32 v24, v24, v48\nv_add_f32 v25, v25, v49")
        for ntl in range(2):
            c = 24 + ntl; d = 28 + 4 * ntl
            a(f"v_cvt_pk_bf16_f32 v8, v{c}, v{c}\nv_lshlrev_b32 v8, 16, v8\nv_sub_f32 v8, v{c}, v8\nv_cvt_pk_bf16_f32 v8, v{c}, v8\nv_cndmask_b32 v{d}, v7, v8, vcc")
        for stl in range(2):
            mm = 20 + 2 * stl; d = 36 + 4 * stl
            a(f"v_sub_f32 v8, 0, v{mm}\nv_cvt_pk_bf16_f32 v8, v8, v8\nv_cndmask_b32 v{d}, v7, v8, vcc")
        for ntl in range(2):
            for stl in range(2):
                A = ACC(ntl, stl)
                a(f"v_mfma_f32_32x32x16_bf16 v[{A}:{A+15}], v[{28+4*ntl}:{31+4*ntl}], v[{36+4*stl}:{39+4*stl}], v[{A}:{A+15}]")
        for ntl in range(2):
            Ls = a.label("askip")
            a(f"s_lshl_b32 s29, s20, 2\ns_lshl_b32 s30, s21, 1\ns_add_u32 s29, s29, s30\ns_add_u32 s29, s29, {ntl}")
            a(f"s_cmp_ge_u32 s29, 30\ns_cbranch_scc1 {Ls}")
            self.col_oct("s29", "s31", "s32")
            a(f"s_lshl_b32 s31, s31, 15\ns_add_u32 s31, s31, {WS_QKV}")
            a(f"s_cmp_lt_u32 s29, 10\ns_cselect_b32 s40, {f32hex(QSCALE)}, 1.0")
            a("v_mul_f32 v56, s40, v21\nv_mul_f32 v58, s40, v23\nv_mov_b32 v57, v56\nv_mov_b32 v59, v58")
            for stl in range(2):
                A = ACC(ntl, stl); rr = 56 + 2 * stl
                for p in range(8): a(f"v_pk_mul_f32 v[{A+2*p}:{A+2*p+1}], v[{A+2*p}:{A+2*p+1}], v[{rr}:{rr+1}]")
                d = 136 + 16 * ntl + 8 * stl
                for p in range(8): a(f"v_cvt_pk_bf16_f32 v{d+p}, v{A+2*p}, v{A+2*p+1}")
                for pr in range(2):
                    b0 = d + 4 * pr
                    a(f"v_permlane32_swap_b32 v{b0}, v{b0+2}\nv_permlane32_swap_b32 v{b0+1}, v{b0+3}")
            Lf = a.label("afast"); Ld = a.label("adone")
            a(f"s_cmp_eq_u32 s41, 1\ns_cbranch_scc1 {Lf}")
            for fast in (0, 1):
                if fast: a(f"{Lf}:")
                for pr in range(2):
                    a(f"s_add_u32 s32, s31, {pr*65536}")
                    for stl in range(2):
                        b0 = 136 + 16 * ntl + 8 * stl + 4 * pr
                        a(f"buffer_store_dwordx4 v[{b0}:{b0+3}], v4, s[12:15], s32 offen offset:{512*stl}" + ("" if fast else " sc1"))
                if not fast: a(f"s_branch {Ld}")
            a(f"{Ld}:\n{Ls}:")
        if "est" in self.opts: self.stamp(6)
        a("s_waitcnt vmcnt(0)")
        if "est" in self.opts: self.stamp(7)
        a(f"v_mov_b32 v5, {L_FLG}\nv_mov_b32 v6, 1\ns_mov_b64 exec, 1\nds_add_rtn_u32 v7, v5, v6 offset:44\nds_read_b32 v8, v5 offset:4\ns_waitcnt lgkmcnt(0)")
        a("v_readfirstlane_b32 s35, v7\ns_cmp_lg_u32 s35, 3\ns_cbranch_scc1 L_a_nf")
        a(f"s_lshl_b32 s29, s46, 7\ns_lshl_b32 s30, s19, 3\ns_add_u32 s29, s29, s30\ns_add_u32 s29, s29, s20\ns_lshl_b32 s29, s29, 6\ns_add_u32 s29, s29, {WS_F1}\nv_mov_b32 v6, s29")
        a("s_cmp_eq_u32 s41, 1\ns_cbranch_scc1 L_a_f1f")
        a("buffer_store_dword v8, v6, s[12:15], 0 offen sc1\ns_branch L_a_nf")
        a("L_a_f1f:\nbuffer_store_dword v8, v6, s[12:15], 0 offen")
        a("L_a_nf:\ns_mov_b64 exec, -1")
        a("s_and_b32 s29, s19, 2\ns_cmp_lt_u32 s19, 12\ns_cselect_b32 s29, s29, 0\ns_cmp_lt_u32 s20, 2\ns_cselect_b32 s29, 0, s29\ns_cmp_eq_u32 s29, 0\ns_cbranch_scc1 L_a_e2")
        a("s_lshr_b32 s29, s19, 2\ns_lshl_b32 s29, s29, 8\ns_and_b32 s30, s19, 1\ns_lshl_b32 s30, s30, 7\ns_add_u32 s29, s29, s30\ns_lshl_b32 s30, s22, 6\ns_add_u32 s29, s29, s30")
        a("v_add_u32 v60, s29, v2\nv_lshlrev_b32 v60, 4, v60\nv_mul_u32_u24 v61, 12288, v3\nv_add_u32 v60, v60, v61")
        for ntl in range(2):
            Lh = a.label("hskip")
            a(f"s_lshl_b32 s29, s20, 2\ns_lshl_b32 s30, s21, 1\ns_add_u32 s29, s29, s30\ns_add_u32 s29, s29, {ntl}")
            a(f"s_cmp_ge_u32 s29, 30\ns_cbranch_scc1 {Lh}\ns_cmp_lt_u32 s29, 10\ns_cbranch_scc1 {Lh}")
            self.col_oct("s29", "s31", "s32")
            a(f"s_sub_u32 s31, s31, 80\ns_mul_i32 s31, s31, 12288\ns_add_u32 s31, s31, {WS_HB}")
            for pr in range(2):
                a(f"s_add_u32 s32, s31, {pr*24576}")
                for stl in range(2):
                    b0 = 136 + 16 * ntl + 8 * stl + 4 * pr
                    a(f"buffer_store_dwordx4 v[{b0}:{b0+3}], v60, s[12:15], s32 offen offset:{512*stl} sc1")
            a(f"{Lh}:")
        a("s_waitcnt vmcnt(0)")
        a("v_mov_b32 v6, 1\ns_mov_b64 exec, 1\nds_add_rtn_u32 v7, v5, v6 offset:52\ns_waitcnt lgkmcnt(0)")
        a("v_readfirstlane_b32 s35, v7\ns_cmp_lg_u32 s35, 3\ns_cbranch_scc1 L_a_nh")
        a(f"s_lshl_b32 s29, s46, 7\ns_lshl_b32 s30, s19, 3\ns_add_u32 s29, s29, s30\ns_add_u32 s29, s29, s20\ns_lshl_b32 s29, s29, 6\ns_add_u32 s29, s29, {WS_F1H}\nv_mov_b32 v6, s29")
        a("buffer_store_dword v8, v6, s[12:15], 0 offen sc1")
        a("L_a_nh:\ns_mov_b64 exec, -1")
        a("L_a_e2:")
        self.stamp(3)
        if self.stop_after == "a":
            self.fin_stamps(10 if "bst" in self.opts else (9 if "lloop" in self.opts else (8 if "est" in self.opts else 5)), wave=self.swave)
            a("s_branch L_end")
            self.ln_wave()
            return
        self.phase_b()
        if self.stop_after == "b":
            self.fin_stamps(8, wave=self.swave)
            a("s_branch L_end")
            self.ln_wave()
            return
        self.phase_c()
        self.fin_stamps(10, wave=self.swave)
        a("s_branch L_end")
        self.ln_wave()

    def lg_reset(self): self.lg_seq = []
    def lg_issue(self, tag, n): self.lg_seq += [tag] * n
    def lg_wait(self, tag):
        last = max(i for i, t in enumerate(self.lg_seq) if t == tag)
        self.a(f"s_waitcnt lgkmcnt({min(15, len(self.lg_seq) - 1 - last)})")

    def loader(self):
        a = self.a
        a("L_loader:")
        LS = self.stamps and "lstamp" in self.opts
        if LS: self.stamp(0)
        a("s_setprio 2")
        a("s_sub_u32 s21, s16, 8")
        a("v_lshrrev_b32 v3, 4, v1")
        self.post_srd = []
        self.srd(52, 16, 819200)
        a("s_lshl_b32 s29, s21, 4\ns_add_u32 s29, s29, 40\ns_load_dwordx2 s[56:57], s[0:1], s29\ns_load_dwordx2 s[92:93], s[0:1], 48")
        a("s_mov_b32 s58, 1966080\ns_mov_b32 s59, 0x20000\ns_mov_b32 s94, 1966080\ns_mov_b32 s95, 0x20000")
        a("s_cmp_eq_u32 s21, 1\ns_cbranch_scc1 L_l_w")
        a("v_lshrrev_b32 v2, 3, v1\nv_and_b32 v8, 7, v1\nv_xor_b32 v8, v8, v3")
        a("s_lshl_b32 s23, s19, 7\nv_add_u32 v9, s23, v2\nv_mul_u32_u24 v9, 1280, v9\nv_lshl_add_u32 v10, v8, 4, v9")
        a("v_xor_b32 v8, 4, v8\nv_lshl_add_u32 v11, v8, 4, v9")
        a("s_mov_b64 s[24:25], -1\ns_mov_b32 s26, 0\ns_movk_i32 s27, 10240\ns_movk_i32 s31, 128\ns_mov_b32 s32, 0")
        a("s_branch L_l_go")
        a("L_l_w:")
        a("v_and_b32 v8, 15, v1\nv_lshlrev_b32 v17, 2, v3\nv_xor_b32 v17, v8, v17")
        a("s_lshl_b32 s29, s20, 2\ns_mul_i32 s31, s46, 40")
        a("v_lshrrev_b32 v19, 2, v17\nv_add_u32 v19, s29, v19\nv_cmp_gt_u32 s[24:25], 30, v19")
        a("v_mul_u32_u24 v18, 26, v19\nv_lshrrev_b32 v18, 8, v18\nv_mul_u32_u24 v18, 40, v18")
        a("v_lshl_add_u32 v18, v19, 2, v18\nv_and_b32 v19, 3, v17\nv_add3_u32 v18, v18, v19, s31\nv_lshlrev_b32 v18, 4, v18")
        a("v_mul_u32_u24 v19, 3840, v3\nv_add_u32 v10, v18, v19\nv_mov_b32 v11, v10")
        a("s_mov_b32 s26, 65536\ns_movk_i32 s27, 15360\ns_mov_b32 s31, 245760\ns_mov_b32 s32, 0")
        a("L_l_go:")
        a("s_waitcnt lgkmcnt(0)")
        self.srd_fin()
        def granule(role, m):
            srd = "s[4:7]" if role == 0 else "s[8:11]"
            base = ((m & 3) * 16384) if role == 0 else (65536 + ((2 * m) & 7) * 8192)
            gs = 128 if role == 0 else 245760
            step = 10240 if role == 0 else 15360
            for i in range(16):
                a(f"s_mov_b32 m0, {base + 1024*i}\ns_add_u32 s30, s40, {step*i}")
                a(f"buffer_load_dwordx4 v{10 + (i & 1)}, {srd}, s30 offen lds")
            a(f"s_add_u32 s40, s40, {gs}\ns_cmp_eq_u32 s40, {10*gs}\ns_cselect_b32 s40, 0, s40")
        rh_, rr_ = 0, 0
        for o in self.opts:
            if o.startswith("roth="): rh_ = int(o[5:])
            if o.startswith("rotr="): rr_ = int(o[5:])
        rc, rb = 1, 3
        for o in self.opts:
            if o.startswith("rotc="): rc = int(o[5:])
            if o.startswith("rotb="): rb = int(o[5:])
        rbm = 3
        for o in self.opts:
            if o.startswith("rotbm="): rbm = int(o[6:])
        rcm = 7
        for o in self.opts:
            if o.startswith("rotcm="): rcm = int(o[6:])
        if "norot" not in self.opts:
            a(f"s_and_b32 s41, s20, {rcm}\ns_mul_i32 s40, s41, {rc}\ns_and_b32 s41, s48, {rbm}\ns_mul_i32 s41, s41, {rb}\ns_add_u32 s40, s40, s41")
            a(f"s_mul_i32 s41, s46, {rh_}\ns_add_u32 s40, s40, s41\ns_mul_i32 s41, s47, {rr_}\ns_add_u32 s40, s40, s41")
            a("s_mul_i32 s41, s40, 205\ns_lshr_b32 s41, s41, 11\ns_mul_i32 s41, s41, 10\ns_sub_u32 s40, s40, s41")
        else:
            a("s_mov_b32 s40, 0")
        a("s_movk_i32 s42, 128\ns_cmp_eq_u32 s21, 0\ns_cselect_b32 s41, s42, 245760\ns_mul_i32 s40, s40, s41")
        for role in range(2):
            a(f"L_l_r{role}:") if role == 1 else a("s_cmp_eq_u32 s21, 1\ns_cbranch_scc1 L_l_r1")
            a("s_mov_b64 exec, s[24:25]")
            if "k0late" in self.opts:
                for m in range(3): granule(role, m)
                a("s_waitcnt vmcnt(32)\ns_barrier")
            else:
                if LS: self.stamp(1)
                granule(role, 0)
                if LS: self.stamp(2)
                granule(role, 1)
                if LS: self.stamp(3)
                ms = self.stop_after is None and "nomoe" not in self.opts and "moestart" in self.opts
                if ms:
                    a("s_mov_b64 exec, -1")
                    self.moe_dma(role, pad=True)
                    a("s_mov_b64 exec, s[24:25]")
                a(f"s_waitcnt vmcnt({16 + (16 if role == 0 else 8) * ms})")
                if LS: self.stamp(4)
                a("s_barrier")
                granule(role, 2)
                if LS: self.stamp(5)
            npf = 0
            for m in range(9):
                extra = npf if m >= 7 else 0
                if m == 0 and self.stop_after is None and "nomoe" not in self.opts and "moestart" in self.opts:
                    pass
                LL = self.stamps and "lloop" in self.opts
                if LL and m in (4, 5): self.stamp(0 + 4 * (m - 4) + 0)
                a(f"s_waitcnt vmcnt({(16 if m < 8 else 0) + extra})")
                if LL and m in (4, 5): self.stamp(0 + 4 * (m - 4) + 1)
                a("s_barrier")
                if LL and m in (4, 5): self.stamp(0 + 4 * (m - 4) + 2)
                if m + 3 < 10: granule(role, m + 3)
                if LL and m in (4, 5): self.stamp(0 + 4 * (m - 4) + 3)
                if m == 6 and npf:
                    a("s_mov_b64 exec, -1")
                    self.l2pf(role)
            a("s_mov_b64 exec, -1")
            if self.stop_after is None and "nomoe" not in self.opts and "moelate" not in self.opts and "moestart" not in self.opts: self.moe_dma(role)
            if self.stop_after is None and "wopf" in self.opts:
                a(f"s_mul_i32 s29, s18, 25600\nv_lshlrev_b32 v26, 7, v1\nv_add_u32 v26, s29, v26\ns_mov_b32 s30, {16384*role}\nbuffer_load_dword v27, v26, s[52:55], s30 offen")
                a(f"s_mov_b32 s30, {16384*role + 8192}\n" + ("s_mov_b64 exec, 0xff\n" if role == 1 else "") + "buffer_load_dword v27, v26, s[52:55], s30 offen\ns_mov_b64 exec, -1")
            if role == 0: a("s_branch L_l_j")
        a("L_l_j:")
        if LS:
            self.stamp(6); self.stamp(7)
            self.fin_stamps(8, wave=8, slot=1)
        if self.stamps and "lloop" in self.opts:
            self.fin_stamps(8, wave=8 + ("lw1" in self.opts), slot=1)
        a("s_barrier")
        if self.stop_after == "a":
            a("s_endpgm"); return
        a("s_and_b32 s62, s18, 15\ns_lshl_b32 s29, s46, 4\ns_add_u32 s62, s62, s29")
        a("s_lshr_b32 s63, s18, 4\ns_lshl_b32 s29, s47, 1\ns_add_u32 s63, s63, s29")
        a("s_and_b32 s64, s62, 1\ns_mul_i32 s65, s62, 5\ns_lshr_b32 s65, s65, 1")
        a(f"s_sub_u32 s36, 1, s21\ns_mul_i32 s32, s36, 80\ns_add_u32 s32, s32, 80\ns_add_u32 s32, s32, s65\ns_lshl_b32 s32, s32, 15\ns_add_u32 s32, s32, {WS_QKV}")
        a(f"s_mul_i32 s33, s36, {LB_V}")
        a("s_lshl_b32 s31, s63, 8\ns_sub_u32 s31, s31, 256\ns_lshl_b32 s31, s31, 4\ns_add_u32 s32, s32, s31")
        a("v_lshlrev_b32 v4, 4, v1\nv_add_u32 v7, s33, v4")
        a("s_and_b32 s37, s63, 1\ns_xor_b32 s37, s37, 1\ns_cmp_eq_u32 s63, 0\ns_cselect_b32 s37, 0, s37")
        a(f"s_mul_i32 s44, s36, 80\ns_add_u32 s44, s44, s65\ns_mul_i32 s44, s44, 12288\ns_lshr_b32 s45, s63, 1\ns_sub_u32 s45, s45, 1\ns_lshl_b32 s45, s45, 12\ns_add_u32 s44, s44, s45\ns_add_u32 s44, s44, {WS_HB}")
        a(f"s_sub_u32 s35, 1, s64\ns_mul_i32 s35, s35, {2*PLS+8}\nv_add_u32 v8, s35, v7")
        a("v_mov_b32 v20, 0x3f803f80\ns_cmp_eq_u32 s36, 0\ns_cselect_b32 s35, 0, 0x3f803f80\nv_mov_b32 v21, s35")
        a("v_mov_b32 v22, 0x3f803f80\ns_mov_b32 s34, 0x3f803f80\ns_cselect_b32 s35, 0xf149, s34\nv_mov_b32 v23, s35")
        a("v_mov_b32 v24, 0\nv_mov_b32 v25, 0\nv_mov_b32 v26, 0\nv_mov_b32 v27, 0")
        a(f"v_mov_b32 v5, {L_FLG}")
        a("s_cmp_eq_u32 s21, 0\ns_cbranch_scc1 L_l_b0")
        a(f"s_lshl_b32 s29, s46, 7\ns_lshl_b32 s30, s63, 4\ns_add_u32 s29, s29, s30\ns_sub_u32 s29, s29, 16\ns_lshl_b32 s29, s29, 6\ns_add_u32 s29, s29, {WS_F1}")
        a("v_and_b32 v6, 31, v1\ns_cmp_eq_u32 s63, 0\ns_cselect_b32 s30, 16, 0\nv_max_u32 v6, s30, v6")
        a("s_and_b32 s37, s63, 1\ns_xor_b32 s37, s37, 1\ns_cmp_eq_u32 s63, 0\ns_cselect_b32 s37, 0, s37")
        a(f"v_and_b32 v10, 7, v6\nv_max_u32 v10, 2, v10\nv_and_b32 v11, 24, v6\nv_or_b32 v10, v10, v11\nv_lshlrev_b32 v10, 6, v10\nv_add_u32 v10, {WS_F1H - WS_F1 + (1 << 32) if WS_F1H < WS_F1 else WS_F1H - WS_F1}, v10")
        a("v_lshlrev_b32 v11, 6, v6\nv_cmp_gt_u32 vcc, 16, v6\ns_cmp_eq_u32 s37, 1\ns_cselect_b64 s[38:39], vcc, 0\nv_cndmask_b32 v6, v11, v10, s[38:39]")
        a("ds_read_b32 v9, v5 offset:4\ns_waitcnt lgkmcnt(0)")
        a("L_x_p1:\nbuffer_load_dword v10, v6, s[12:15], s29 offen sc1\ns_waitcnt vmcnt(0)")
        a("v_cmp_ne_u32 vcc, v9, v10\ns_cbranch_vccz L_x_p1_o\ns_add_u32 s100, s100, 1\ns_bitcmp1_b32 s100, 21\ns_cbranch_scc0 L_x_p1\nL_x_p1_o:")
        a("v_mov_b32 v6, 1\ns_mov_b64 exec, 1\nds_write_b32 v5, v6 offset:48")
        if "nomoe" not in self.opts and "moelate" not in self.opts and self.stop_after is None: a("ds_add_u32 v5, v6 offset:36")
        a("s_mov_b64 exec, -1")
        a("s_branch L_l_kv")
        a("L_l_b0:")
        if "nomoe" not in self.opts and "moelate" not in self.opts and self.stop_after is None:
            a("s_waitcnt vmcnt(0)\nv_mov_b32 v6, 1\ns_mov_b64 exec, 1\nds_add_u32 v5, v6 offset:36\ns_mov_b64 exec, -1")
        self.lds_spin("v5", "v6", "s35", "ge", 1, off=48)
        a("L_l_kv:")
        a("s_cmp_eq_u32 s63, 0\ns_cbranch_scc1 L_l_c0")
        a("s_cmp_eq_u32 s37, 1\ns_cbranch_scc1 L_l_ch")
        for blk in range(4):
            for p in range(3):
                a(f"s_add_u32 m0, s33, {p*PLS + blk*1024}\ns_add_u32 s30, s32, {p*32768 + blk*1024}\nbuffer_load_dwordx4 v4, s[12:15], s30 offen sc1 lds")
        a("s_branch L_l_c1")
        a("L_l_ch:")
        for blk in range(4):
            for p in range(3):
                a(f"s_add_u32 m0, s33, {p*PLS + blk*1024}\ns_add_u32 s30, s44, {p*12288 + blk*1024}\nbuffer_load_dwordx4 v4, s[12:15], s30 offen sc1 lds")
        a("s_branch L_l_c1")
        a("L_l_c0:")
        for blk in range(4):
            for p in range(3): a(f"ds_write_b128 v7, v[24:27] offset:{p*PLS + blk*1024}")
        a("L_l_c1:")
        for blk in range(4, 8):
            for p in range(3):
                a(f"s_add_u32 m0, s33, {p*PLS + blk*1024}\ns_add_u32 s30, s32, {p*32768 + blk*1024}\nbuffer_load_dwordx4 v4, s[12:15], s30 offen sc1 lds")
        a("s_cmp_eq_u32 s21, 0\ns_cbranch_scc1 L_l_noq")
        a(f"s_lshl_b32 s35, s65, 15\ns_lshl_b32 s34, s63, 12\ns_add_u32 s35, s35, s34\ns_add_u32 s35, s35, {WS_QKV}")
        for p in range(3):
            for blk in range(4):
                a(f"s_mov_b32 m0, {LQ + p*4096 + blk*1024}\ns_add_u32 s30, s35, {p*32768 + blk*1024}\nbuffer_load_dwordx4 v4, s[12:15], s30 offen sc1 lds")
        a("s_branch L_l_w0")
        a("L_l_noq:")
        a("L_l_w0:")
        a("s_waitcnt vmcnt(0) lgkmcnt(0)")
        a("s_cmp_eq_u32 s63, 0\ns_cbranch_scc1 L_l_p0")
        for blk in range(4): a(f"ds_write_b64 v8, v[20:21] offset:{blk*1024}")
        a("s_branch L_l_p1")
        a("L_l_p0:")
        for blk in range(4): a(f"ds_write_b64 v8, v[22:23] offset:{blk*1024}")
        a("L_l_p1:")
        for blk in range(4, 8): a(f"ds_write_b64 v8, v[20:21] offset:{blk*1024}")
        a("v_mov_b32 v6, 1\ns_waitcnt lgkmcnt(0)\ns_mov_b64 exec, 1\nds_add_u32 v5, v6 offset:8\ns_mov_b64 exec, -1")
        if self.stop_after == "b":
            a("s_endpgm"); return
        if "nomoe" not in self.opts and "moelate" in self.opts:
            a("s_cmp_eq_u32 s21, 0\ns_cbranch_scc0 L_l_mr1")
            self.moe_dma(0)
            a("s_branch L_l_mrd\nL_l_mr1:")
            self.moe_dma(1)
            a("L_l_mrd:")
            a("s_waitcnt vmcnt(0)\nv_mov_b32 v6, 1\ns_mov_b64 exec, 1\nds_add_u32 v5, v6 offset:36\ns_mov_b64 exec, -1")
        self.wo_setup()
        if "nomoe" not in self.opts and "wogate" in self.opts:
            self.lds_spin("v5", "v6", "s35", "ge", 1, off=56)
        a("s_lshl_b32 s34, s21, 10\ns_mul_i32 s35, s21, 10240")
        for q in range(28):
            a(f"s_add_u32 m0, s34, {LA1 + q*2048}\ns_add_u32 s30, s35, {q*20480}\nbuffer_load_dwordx4 v152, s[52:55], s30 offen lds")
        self.lds_spin("v5", "v6", "s35", "ge", 8, off=40)
        a("s_mul_i32 s35, s21, 40960")
        for q in range(10):
            a(f"s_add_u32 m0, s34, {LBB + q*2048}\ns_add_u32 s30, s35, {q*81920}\nbuffer_load_dwordx4 v153, s[52:55], s30 offen lds")
        a("s_cmp_eq_u32 s21, 1\ns_cbranch_scc1 L_l_poll")
        self.lds_spin("v5", "v6", "s35", "ge", 8, off=12)
        for q in range(12):
            for par in range(2):
                i = 56 + 2 * q + par
                a(f"s_mov_b32 m0, {LA2 + (i-56)*1024}\ns_mov_b32 s30, {i*10240}\nbuffer_load_dwordx4 v{152 if par == 0 else 154}, s[52:55], s30 offen lds")
        a("s_waitcnt vmcnt(0)\nv_mov_b32 v6, 1\ns_mov_b64 exec, 1\nds_add_u32 v5, v6 offset:32\ns_mov_b64 exec, -1\ns_endpgm")
        a("L_l_poll:")
        a("s_waitcnt vmcnt(0)\nv_mov_b32 v6, 1\ns_mov_b64 exec, 1\nds_add_u32 v5, v6 offset:32\ns_mov_b64 exec, -1")
        self.lds_spin("v5", "v6", "s35", "ge", 8, off=12)
        a(f"s_lshl_b32 s29, s17, 14\ns_lshr_b32 s30, s18, 3\ns_lshl_b32 s30, s30, 7\ns_add_u32 s29, s29, s30\ns_add_u32 s29, s29, {WS_F2}")
        a("v_lshrrev_b32 v26, 1, v1\nv_lshlrev_b32 v26, 9, v26\nv_and_b32 v27, 1, v1\nv_lshl_add_u32 v26, v27, 6, v26\nds_read_b32 v6, v5 offset:4\ns_waitcnt lgkmcnt(0)")
        a("L_c_poll:\nbuffer_load_dword v27, v26, s[12:15], s29 offen sc1\ns_waitcnt vmcnt(0)")
        a("v_cmp_ne_u32 vcc, v6, v27\ns_cbranch_vccz L_c_poll_o\ns_add_u32 s100, s100, 1\ns_bitcmp1_b32 s100, 21\ns_cbranch_scc0 L_c_poll\nL_c_poll_o:")
        a("v_mov_b32 v6, 1\ns_mov_b64 exec, 1\nds_write_b32 v5, v6 offset:16\ns_mov_b64 exec, -1")
        a("s_endpgm")

    def moe_dma(self, role, pad=False):
        a = self.a
        Lx = a.label("mx")
        if not pad: a(f"s_cmp_ge_u32 s2, 240\ns_cbranch_scc1 {Lx}")
        a("s_min_u32 s43, s2, 239")
        a("v_bfe_u32 v12, v1, 4, 1\nv_lshlrev_b32 v12, 1, v12\nv_and_b32 v13, 7, v1\nv_xor_b32 v12, v12, v13\nv_lshlrev_b32 v12, 4, v12\nv_xor_b32 v13, 64, v12\nv_lshrrev_b32 v14, 3, v1")
        if role == 0:
            a("s_mul_i32 s29, s43, 171\ns_lshr_b32 s29, s29, 12\ns_mul_i32 s30, s29, 24\ns_sub_u32 s30, s43, s30")
            a(f"s_mul_i32 s29, s29, {64*3072}\ns_lshl_b32 s30, s30, 7\ns_add_u32 s29, s29, s30")
            a("v_mul_u32_u24 v14, 3072, v14\nv_add_u32 v12, v12, v14\nv_add_u32 v13, v13, v14")
            for mat, srd in ((0, "s[56:59]"), (1, "s[92:95]")):
                for i in range(8):
                    a(f"s_mov_b32 m0, {L_AUX + mat*8192 + 1024*i}\ns_add_u32 s30, s29, {i*8*3072}\nbuffer_load_dwordx4 v{12 + (i & 1)}, {srd}, s30 offen lds")
        else:
            a("s_mul_i32 s29, s43, 205\ns_lshr_b32 s29, s29, 11\ns_mul_i32 s30, s29, 10\ns_sub_u32 s30, s43, s30")
            a(f"s_mul_i32 s29, s29, {64*1280}\ns_lshl_b32 s30, s30, 7\ns_add_u32 s29, s29, s30")
            a("v_mul_u32_u24 v14, 1280, v14\nv_add_u32 v12, v12, v14\nv_add_u32 v13, v13, v14")
            for i in range(8):
                a(f"s_mov_b32 m0, {L_AUX + 16384 + 1024*i}\ns_add_u32 s30, s29, {i*8*1280}\nbuffer_load_dwordx4 v{12 + (i & 1)}, s[56:59], s30 offen lds")
        a(f"{Lx}:")

    def wo_setup(self):
        a = self.a
        a("s_and_b32 s67, s18, 7\ns_mul_i32 s69, s67, 160")
        for dst, par in (("v152", "s21"), ("v154", "1")):
            a(f"v_bfe_u32 v19, v1, 4, 1\ns_lshl_b32 s29, {par}, 1\nv_or_b32 v19, s29, v19\nv_lshlrev_b32 v19, 1, v19")
            a(f"v_and_b32 {dst}, 7, v1\nv_xor_b32 {dst}, {dst}, v19\nv_lshlrev_b32 {dst}, 4, {dst}")
            a(f"v_lshrrev_b32 v19, 3, v1\nv_mul_u32_u24 v19, 1280, v19\nv_add3_u32 {dst}, {dst}, v19, s69")
        a("v_lshrrev_b32 v19, 1, v1\nv_bfe_u32 v153, v19, 3, 1\nv_lshlrev_b32 v153, 2, v153\nv_xor_b32 v19, v19, v153\nv_mul_u32_u24 v19, 1280, v19")
        a("v_and_b32 v153, 1, v1\nv_lshlrev_b32 v153, 4, v153\nv_add3_u32 v153, v153, v19, s69\nv_add_u32 v153, 128, v153")

    def phase_b(self):
        a = self.a
        a("; ---- phase B ----")
        a("s_waitcnt vmcnt(0)")
        a("s_and_b32 s62, s18, 15\ns_lshl_b32 s29, s46, 4\ns_add_u32 s62, s62, s29")
        a("s_lshr_b32 s63, s18, 4\ns_lshl_b32 s29, s47, 1\ns_add_u32 s63, s63, s29")
        a("s_and_b32 s64, s62, 1\ns_mul_i32 s65, s62, 5\ns_lshr_b32 s65, s65, 1")
        a("v_and_b32 v2, 31, v1\nv_lshrrev_b32 v3, 5, v1")
        a(f"v_lshlrev_b32 v5, 2, v3\nv_sub_u32 v5, v2, v5\nv_mov_b32 v6, {NEGF}\nv_mov_b32 v7, 0")
        for r in range(16):
            cr = 8 * (r >> 2) + (r & 3)
            a(f"v_cmp_le_i32 vcc, {cr}, v5")
            a(f"v_cndmask_b32 v{108+r}, v6, v7, vcc\nv_cndmask_b32 v{124+r}, v7, v6, vcc")
        a("s_lshl_b32 s29, s16, 9")
        a(f"v_add_u32 v5, s64, v3\nv_mul_u32_u24 v5, {PLS}, v5\nv_lshl_add_u32 v16, v2, 4, v5\nv_add_u32 v16, s29, v16")
        a(f"s_sub_u32 s30, 1, s64\ns_mul_i32 s30, s30, {2*PLS}\ns_add_u32 s30, s30, s29\nv_lshl_add_u32 v17, v2, 4, s30")
        a("v_bfe_u32 v5, v1, 4, 1\nv_and_b32 v6, 3, v1\nv_lshl_add_u32 v5, v5, 2, v6")
        a("v_add_u32 v6, s64, v5")
        a("s_mul_i32 s30, s64, 6\nv_subrev_u32 v7, s30, v6\nv_cmp_eq_u32 vcc, 5, v5\nv_cndmask_b32 v6, v6, v7, vcc")
        a(f"v_lshrrev_b32 v7, 1, v6\nv_mul_u32_u24 v7, {PLS}, v7\nv_and_b32 v6, 1, v6\nv_lshl_add_u32 v7, v6, 3, v7")
        a("v_and_b32 v6, 1, v5\nv_lshlrev_b32 v6, 3, v6\nv_add_u32 v6, 192, v6")
        a("v_cmp_lt_u32 vcc, 5, v5\nv_cndmask_b32 v7, v7, v6, vcc")
        a("v_bfe_u32 v6, v1, 2, 2\nv_lshl_add_u32 v6, v3, 2, v6\nv_lshl_add_u32 v7, v6, 4, v7")
        a(f"s_add_u32 s30, s29, {LB_V}\nv_add_u32 v18, s30, v7")
        a("s_and_b32 s67, s18, 7\ns_lshr_b32 s68, s18, 3\ns_mul_i32 s69, s67, 160")
        a("s_and_b32 s29, s16, 3\ns_lshl_b32 s29, s29, 4\ns_lshl_b32 s30, s17, 8\ns_add_u32 s29, s29, s30\ns_lshl_b32 s30, s68, 6\ns_add_u32 s29, s29, s30")
        a("v_and_b32 v19, 15, v1\nv_add_u32 v163, s29, v19\nv_mul_u32_u24 v162, 1280, v163\nv_lshrrev_b32 v19, 4, v1\nv_lshl_add_u32 v162, v19, 3, v162")
        a("s_lshr_b32 s29, s16, 2\ns_mul_i32 s29, s29, 96\ns_add_u32 s29, s29, s69\nv_add_u32 v162, s29, v162")
        for i in range(3):
            a(f"buffer_load_dwordx2 v[{154+2*i}:{155+2*i}], v162, s[4:7], 0 offen offset:{32*i}")
        a("v_lshlrev_b32 v19, 4, v163\nbuffer_load_dwordx2 v[160:161], v19, s[12:15], 0 offen sc1")
        a("s_lshl_b32 s34, s63, 8\ns_lshl_b32 s35, s16, 5\ns_add_u32 s34, s34, s35")
        a(f"s_lshl_b32 s29, s16, 9\ns_add_u32 s29, s29, {LQ}\nv_add_u32 v5, s64, v3\nv_lshlrev_b32 v5, 12, v5\nv_lshl_add_u32 v5, v2, 4, v5\nv_add_u32 v6, s29, v5")
        a("s_sub_u32 s30, 1, s64\ns_lshl_b32 s30, s30, 13\ns_add_u32 s30, s30, s29\nv_lshl_add_u32 v7, v2, 4, s30")
        a(f"v_mov_b32 v5, {L_FLG}")
        self.stamp(5)
        self.lds_spin("v5", "v19", "s35", "ge", 2, off=8)
        self.stamp(6)
        a("ds_read_b128 v[8:11], v6\nds_read_b128 v[12:15], v7\ns_waitcnt lgkmcnt(0)")
        a("v_mov_b32 v6, 1\ns_mov_b64 exec, 1\nds_add_u32 v5, v6 offset:40\ns_mov_b64 exec, -1")
        a("v_cmp_gt_u32 vcc, 32, v1\nv_mov_b32 v5, 0\nv_mov_b32 v6, 0x3f80")
        a("s_cmp_eq_u32 s64, 1\ns_cbranch_scc1 L_b_qodd")
        a("v_cndmask_b32 v12, v5, v12, vcc\nv_cndmask_b32 v13, v5, v13, vcc\nv_mov_b32 v14, 0\nv_cndmask_b32 v15, v5, v6, vcc")
        a("s_branch L_b_qd")
        a("L_b_qodd:")
        a("v_mov_b32 v12, 0\nv_cndmask_b32 v13, v5, v6, vcc\nv_cndmask_b32 v14, v5, v14, vcc\nv_cndmask_b32 v15, v5, v15, vcc")
        a("L_b_qd:")
        KS = lambda kt: 20 + 8 * (kt & 1)
        VS = lambda kt: 36 + 8 * (kt & 1)
        SB = lambda kt: 52 + 16 * (kt & 1)
        def rdK(ps, kt):
            a(f"ds_read_b128 v[{KS(kt)}:{KS(kt)+3}], v16 offset:{512*kt}\nds_read_b128 v[{KS(kt)+4}:{KS(kt)+7}], v17 offset:{512*kt}")
            self.lg_issue(("K", ps, kt), 2)
        def rdV(kt):
            b = VS(kt)
            for j2 in range(2):
                for jj in range(2):
                    a(f"ds_read_b64_tr_b16 v[{b+4*j2+2*jj}:{b+4*j2+2*jj+1}], v18 offset:{512*kt+256*j2+128*jj}")
            self.lg_issue(("V", kt), 4)
        def cop(kt): return "v[124:139]" if kt == 0 else ("v[108:123]" if kt == 8 else "0")
        def qk1(kt): a(f"v_mfma_f32_32x32x16_bf16 v[{SB(kt)}:{SB(kt)+15}], v[{KS(kt)}:{KS(kt)+3}], v[8:11], {cop(kt)}")
        def qk2(kt): a(f"v_mfma_f32_32x32x16_bf16 v[{SB(kt)}:{SB(kt)+15}], v[{KS(kt)+4}:{KS(kt)+7}], v[12:15], v[{SB(kt)}:{SB(kt)+15}]")
        def maxes(kt):
            b = SB(kt)
            for i in range(8):
                acc = 140 + (i & 1)
                if kt == 0 and i < 2: a(f"v_max_f32 v{acc}, v{b+2*i}, v{b+2*i+1}")
                else: a(f"v_max3_f32 v{acc}, v{b+2*i}, v{b+2*i+1}, v{acc}")
        def ex(kt, r0, r1):
            for r in range(r0, r1): a(f"v_exp_f32 v{SB(kt)+r}, v{SB(kt)+r}")
        def cv(kt, i0, i1):
            for i in range(i0, i1): a(f"v_cvt_pk_bf16_f32 v{84+i}, v{SB(kt)+2*i}, v{SB(kt)+2*i+1}")
        self.lg_reset()
        rdK(1, 0); rdK(1, 1)
        for kt in range(9):
            self.lg_wait(("K", 1, kt))
            qk1(kt); qk2(kt)
            if kt + 2 <= 8: rdK(1, kt + 2)
            if kt == 7: rdK(2, 1)
            if kt == 8: rdK(2, 0); rdV(0); rdV(1)
            if kt >= 1: maxes(kt - 1)
        maxes(8)
        a("v_max_f32 v140, v140, v141\nv_mov_b32 v141, v140\nv_permlane32_swap_b32 v140, v141\nv_max_f32 v140, v140, v141")
        a("v_sub_f32 v140, 0, v140")
        a("v_cvt_pk_bf16_f32 v141, v140, v140\nv_lshlrev_b32 v141, 16, v141\nv_sub_f32 v141, v140, v141")
        a("v_cvt_pk_bf16_f32 v141, v140, v141")
        a("v_cmp_gt_u32 vcc, 32, v1\nv_mov_b32 v142, 0\nv_cndmask_b32 v141, v142, v141, vcc")
        a("s_cmp_eq_u32 s64, 1\ns_cbranch_scc1 L_b_mo\nv_mov_b32 v14, v141\ns_branch L_b_md\nL_b_mo:\nv_mov_b32 v12, v141\nL_b_md:")
        a("s_nop 1")
        self.lg_wait(("K", 2, 0))
        qk1(0); qk2(0)
        rdK(2, 2)
        for kt in range(9):
            if kt < 8:
                self.lg_wait(("K", 2, kt + 1)); qk1(kt + 1)
            ex(kt, 0, 4)
            if kt < 8:
                qk2(kt + 1)
                if kt + 3 <= 8: rdK(2, kt + 3)
            ex(kt, 4, 8); cv(kt, 0, 4); ex(kt, 8, 10)
            self.lg_wait(("V", kt))
            a(f"v_mfma_f32_32x32x16_bf16 v[92:107], v[{VS(kt)}:{VS(kt)+3}], v[84:87], {'0' if kt == 0 else 'v[92:107]'}")
            ex(kt, 10, 16); cv(kt, 4, 8)
            a(f"v_mfma_f32_32x32x16_bf16 v[92:107], v[{VS(kt)+4}:{VS(kt)+7}], v[88:91], v[92:107]")
            if kt + 2 <= 8: rdV(kt + 2)
        self.stamp(7)
        a("v_mov_b32 v140, v100\nv_mov_b32 v141, v100\nv_permlane32_swap_b32 v140, v141")
        a("v_rcp_f32 v141, v141")
        for r in range(12): a(f"v_mul_f32 v{92+r}, v{92+r}, v141")
        for i in range(6): a(f"v_cvt_pk_bf16_f32 v{84+i}, v{92+2*i}, v{92+2*i+1}")
        a("v_add_u32 v5, s34, v2\nv_lshlrev_b32 v5, 3, v5\nv_lshl_add_u32 v5, v3, 14, v5")
        a(f"s_mul_i32 s35, s62, {5*16384}\ns_add_u32 s35, s35, {WS_O}")
        a("buffer_store_dwordx2 v[84:85], v5, s[12:15], s35 offen sc1")
        a("s_add_u32 s35, s35, 32768\nbuffer_store_dwordx2 v[86:87], v5, s[12:15], s35 offen sc1")
        a("s_add_u32 s35, s35, 32768\ns_mov_b32 exec_hi, 0\nbuffer_store_dwordx2 v[88:89], v5, s[12:15], s35 offen sc1\ns_mov_b64 exec, -1")
        a(f"v_mov_b32 v5, {L_FLG}\nds_read_b32 v7, v5 offset:4")
        a(f"s_lshl_b32 s35, s63, 5\ns_add_u32 s35, s35, s62\ns_lshl_b32 s35, s35, 3\ns_add_u32 s35, s35, s16\ns_lshl_b32 s35, s35, 6\ns_add_u32 s35, s35, {WS_F2}\nv_mov_b32 v6, s35")
        a("s_waitcnt lgkmcnt(0)\ns_mov_b64 exec, 1\nbuffer_store_dword v7, v6, s[12:15], 0 offen sc1")
        a("v_mov_b32 v6, 1\nds_add_u32 v5, v6 offset:12\ns_mov_b64 exec, -1")
        a("L_b_nf:")
        self.stamp(8)

    def phase_c(self):
        a = self.a
        a("; ---- phase C ----")
        self.post_srd = []
        self.srd(56, 64, 2621440)
        a("s_and_b32 s21, s16, 3\ns_lshr_b32 s22, s16, 2")
        a("v_and_b32 v2, 15, v1\nv_lshrrev_b32 v3, 4, v1\nv_mov_b32 v8, v163\nv_mov_b32 v10, v162")
        a(f"v_mov_b32 v5, {L_FLG}")
        a(f"s_mul_i32 s30, s22, {80*16384}\ns_add_u32 s30, s30, {WS_O}\nv_lshlrev_b32 v20, 3, v8\nv_lshl_add_u32 v20, v3, 15, v20")
        a("v_bfe_u32 v21, v1, 2, 2")
        a("v_lshrrev_b32 v22, 1, v21\nv_and_b32 v23, 1, v3\nv_lshl_or_b32 v22, v23, 1, v22")
        a("v_lshl_add_u32 v23, v3, 3, v21")
        a("v_and_b32 v24, 3, v1\nv_lshlrev_b32 v24, 3, v24")
        a("v_lshlrev_b32 v25, 7, v23\nv_lshl_add_u32 v25, v22, 5, v25\nv_add_u32 v25, v25, v24")
        a(f"s_mul_i32 s31, s22, {320*128}\ns_add_u32 s31, s31, {LA1}")
        a(f"s_cmp_eq_u32 s22, 0\ns_cselect_b32 s32, {LA1 + 128*128}, {LA2}")
        for nt in range(4):
            a(f"v_xor_b32 v26, {nt << 5}, v25\nv_add_u32 v{28+nt}, s31, v26\nv_add_u32 v{32+nt}, s32, v26")
        a("v_and_b32 v26, 1, v3\nv_lshlrev_b32 v26, 2, v26")
        a(f"s_mul_i32 s31, s22, {320*32}\ns_add_u32 s31, s31, {LBB}")
        for jj in range(2):
            a(f"v_xor_b32 v27, {4*jj}, v26\nv_add_u32 v27, v27, v23\nv_lshl_add_u32 v27, v27, 5, v24\nv_add_u32 v{36+jj}, s31, v27")
        a("s_waitcnt lgkmcnt(0)")
        self.srd_fin()
        a("ds_read_b32 v6, v5 offset:4\nv_lshlrev_b32 v11, 4, v8\ns_waitcnt lgkmcnt(0)")
        a("L_c_st:\nv_cmp_ne_u32 vcc, v6, v161\ns_cbranch_vccz L_c_stok")
        a("buffer_load_dwordx2 v[160:161], v11, s[12:15], 0 offen sc1\ns_waitcnt vmcnt(0)\ns_add_u32 s100, s100, 1\ns_bitcmp1_b32 s100, 21\ns_cbranch_scc0 L_c_st\nL_c_stok:")
        a("v_lshlrev_b32 v22, 16, v160\nv_and_b32 v23, 0xffff0000, v160\nv_rcp_f32 v23, v23")
        for i in range(3):
            for d in range(2):
                a(f"v_lshlrev_b32 v{40+4*i+2*d}, 16, v{154+2*i+d}\nv_and_b32 v{41+4*i+2*d}, 0xffff0000, v{154+2*i+d}")
            for d in range(2):
                e = 40 + 4 * i + 2 * d; o = 52 + 4 * i + 2 * d
                a(f"v_sub_f32 v{o}, v{e}, v22\nv_sub_f32 v{o+1}, v{e+1}, v22")
                a(f"v_cvt_pk_bf16_f32 v26, v{o}, v{o+1}\nv_lshlrev_b32 v{o}, 16, v26\nv_and_b32 v{o+1}, 0xffff0000, v26")
                a(f"v_mul_f32 v{o}, v{o}, v23\nv_mul_f32 v{o+1}, v{o+1}, v23")
                a(f"v_cvt_pk_bf16_f32 v26, v{o}, v{o+1}\nv_lshlrev_b32 v{o}, 16, v26\nv_and_b32 v{o+1}, 0xffff0000, v26")
        self.lg_reset()
        def rdW(sl):
            b = 104 + 20 * (sl & 1)
            for nt in range(4):
                ar = (28 if sl < 4 else 32) + nt
                off = (sl if sl < 4 else sl - 4) * 4096
                a(f"ds_read_b64_tr_b16 v[{b+4*nt}:{b+4*nt+1}], v{ar} offset:{off}\nds_read_b64_tr_b16 v[{b+4*nt+2}:{b+4*nt+3}], v{ar} offset:{off+512}")
            a(f"ds_read_b64_tr_b16 v[{b+16}:{b+17}], v36 offset:{1024*sl}\nds_read_b64_tr_b16 v[{b+18}:{b+19}], v37 offset:{1024*sl}")
            self.lg_issue(("W", sl), 10)
        a("L_c_retry:")
        self.lds_spin("v5", "v6", "s35", "ge", 2, off=32)
        rdW(0); rdW(1)
        self.lds_spin("v5", "v6", "s35", "ge", 1, off=16)
        self.stamp(9)
        a("v_mov_b32 v38, 0")
        for sl in range(10):
            a(f"s_add_u32 s31, s30, {sl*8*16384}\nbuffer_load_dwordx2 v[{64+4*sl}:{65+4*sl}], v20, s[12:15], s31 offen sc1")
            a(f"s_add_u32 s31, s31, 16384\nbuffer_load_dwordx2 v[{66+4*sl}:{67+4*sl}], v20, s[12:15], s31 offen sc1")
        for sl in range(10):
            if sl >= 2: self.lg_wait(("W", sl))
            a(f"s_waitcnt vmcnt({2 * (9 - sl)})")
            b = 104 + 20 * (sl & 1)
            for nt in range(5):
                c = "0" if sl == 0 else f"v[{144+4*nt}:{147+4*nt}]"
                a(f"v_mfma_f32_16x16x32_bf16 v[{144+4*nt}:{147+4*nt}], v[{b+4*nt}:{b+4*nt+3}], v[{64+4*sl}:{67+4*sl}], {c}")
            if sl + 2 < 10: rdW(sl + 2)
            a(f"v_max3_u32 v38, v{64+4*sl}, v{65+4*sl}, v38\nv_max3_u32 v38, v{66+4*sl}, v{67+4*sl}, v38")
        a("v_cmp_eq_u32 vcc, -1, v38")
        self.guard_br("L_c_retry")
        a(f"s_mul_i32 s29, s16, 3072\ns_add_u32 s29, s29, {L_EX}\nv_lshlrev_b32 v26, 4, v1\nv_add_u32 v26, s29, v26")
        a("s_cmp_eq_u32 s22, 0\ns_cbranch_scc0 L_c_x1")
        a("ds_write_b128 v26, v[156:159]\nds_write_b128 v26, v[160:163] offset:1024")
        a("s_branch L_c_x2")
        a("L_c_x1:")
        a("ds_write_b128 v26, v[144:147]\nds_write_b128 v26, v[148:151] offset:1024\nds_write_b128 v26, v[152:155] offset:2048")
        for k in range(8): a(f"v_mov_b32 v{144+k}, v{156+k}")
        a("L_c_x2:")
        a(f"s_lshl_b32 s29, s16, 2\ns_add_u32 s29, s29, {L_FLG+64}\nv_mov_b32 v27, s29\nv_mov_b32 v6, 1\ns_waitcnt lgkmcnt(0)")
        a("s_mov_b64 exec, 1\nds_write_b32 v27, v6\ns_mov_b64 exec, -1")
        a(f"s_xor_b32 s31, s16, 4\ns_lshl_b32 s29, s31, 2\ns_add_u32 s29, s29, {L_FLG+64}\nv_mov_b32 v27, s29")
        self.lds_spin("v27", "v6", "s35", "ge", 1)
        a(f"s_mul_i32 s29, s31, 3072\ns_add_u32 s29, s29, {L_EX}\nv_lshlrev_b32 v26, 4, v1\nv_add_u32 v26, s29, v26")
        a("ds_read_b128 v[104:107], v26\nds_read_b128 v[108:111], v26 offset:1024\nds_read_b128 v[112:115], v26 offset:2048")
        a("s_waitcnt lgkmcnt(0)")
        for k in range(12): a(f"v_add_f32 v{144+k}, v{144+k}, v{104+k}")
        self.moe_hook()
        for i in range(3):
            if i == 2: a("s_cmp_eq_u32 s22, 1\ns_cbranch_scc1 L_c_done")
            for d in range(2):
                ac = 144 + 4 * i + 2 * d; e = 40 + 4 * i + 2 * d; o = 52 + 4 * i + 2 * d
                a(f"v_cvt_pk_bf16_f32 v26, v{ac}, v{ac+1}\nv_lshlrev_b32 v{ac}, 16, v26\nv_and_b32 v{ac+1}, 0xffff0000, v26")
                a(f"v_add_f32 v{ac}, v{ac}, v{e}\nv_add_f32 v{ac+1}, v{ac+1}, v{e+1}")
                a(f"v_cvt_pk_bf16_f32 v26, v{ac}, v{ac+1}\nv_lshlrev_b32 v{ac}, 16, v26\nv_and_b32 v{ac+1}, 0xffff0000, v26")
                a(f"v_add_f32 v{ac}, v{ac}, v{o}\nv_add_f32 v{ac+1}, v{ac+1}, v{o+1}")
                a(f"v_cvt_pk_bf16_f32 v{104+2*i+d}, v{ac}, v{ac+1}")
            a(f"buffer_store_dwordx2 v[{104+2*i}:{105+2*i}], v10, s[56:59], 0 offen offset:{32*i}")
        a("L_c_done:")

    def moe_hook(self):
        a = self.a
        if "nomoe" in self.opts: return
        self.lds_spin("v5", "v6", "s35", "ge", 1, off=20)
        a("ds_read_b64 v[26:27], v5 offset:24\nds_read_b32 v6, v5 offset:4\ns_waitcnt lgkmcnt(0)")
        a("v_cmp_eq_u32 s[30:31], v26, v8\nv_cmp_eq_u32 s[32:33], v27, v8\ns_or_b64 s[34:35], s[30:31], s[32:33]")
        a("s_cmp_eq_u64 s[34:35], 0\ns_cbranch_scc1 L_c_nomoe")
        a(f"s_lshl_b32 s29, s69, 2\ns_mul_i32 s36, s22, 384\ns_add_u32 s29, s29, s36\ns_add_u32 s29, s29, {WS_UPD}\nv_lshlrev_b32 v7, 5, v3")
        a("L_c_upd:")
        for i in range(3):
            a(f"buffer_load_dwordx4 v[{104+8*i}:{107+8*i}], v7, s[12:15], s29 offen offset:{128*i} sc1")
            a(f"buffer_load_dwordx4 v[{108+8*i}:{111+8*i}], v7, s[12:15], s29 offen offset:{128*i+16} sc1")
        a("s_waitcnt vmcnt(0)")
        a("v_cmp_ne_u32 vcc, v6, v105")
        regs = [105 + 2 * k for k in range(1, 8)]
        for r in regs: a(f"v_cmp_ne_u32 s[36:37], v6, v{r}\ns_or_b64 vcc, vcc, s[36:37]")
        L = a.label("u3")
        a(f"s_cmp_eq_u32 s22, 1\ns_cbranch_scc1 {L}")
        for r in [121, 123, 125, 127]: a(f"v_cmp_ne_u32 s[36:37], v6, v{r}\ns_or_b64 vcc, vcc, s[36:37]")
        a(f"{L}:")
        a("s_and_b64 vcc, vcc, s[34:35]\ns_cbranch_vccz L_c_upd_o\ns_add_u32 s100, s100, 1\ns_bitcmp1_b32 s100, 21\ns_cbranch_scc0 L_c_upd\nL_c_upd_o:")
        for i in range(3):
            for e in range(4):
                g = 104 + 8 * i + 2 * e; o = 52 + 4 * i + e
                a(f"v_lshlrev_b32 v26, 16, v{g}\nv_and_b32 v27, 0xffff0000, v{g}\nv_cndmask_b32 v26, v27, v26, s[30:31]")
                a(f"v_add_f32 v26, v{o}, v26\nv_cvt_pk_bf16_f32 v26, v26, v26\nv_lshlrev_b32 v26, 16, v26\nv_cndmask_b32 v{o}, v{o}, v26, s[34:35]")
        a("L_c_nomoe:")

    def guard_br(self, L):
        Lo = self.a.label("ok")
        self.a(f"s_cbranch_vccz {Lo}\ns_sleep {self.BACK}\ns_add_u32 s100, s100, 1\ns_bitcmp1_b32 s100, 21\ns_cbranch_scc0 {L}\n{Lo}:")

    def moe_tile_gemm(self, img, nmat, lds_a):
        a = self.a
        a(f"v_and_b32 v30, 1, v1\nv_lshlrev_b32 v30, 7, v30\nv_lshrrev_b32 v31, 4, v1\nv_lshl_add_u32 v30, v31, 4, v30\nv_add_u32 v30, {lds_a}, v30")
        a("v_bfe_u32 v32, v1, 2, 2\nv_lshrrev_b32 v33, 1, v32\nv_and_b32 v34, 1, v31\nv_lshl_or_b32 v33, v34, 1, v33")
        a("v_lshl_add_u32 v32, v31, 3, v32\nv_lshlrev_b32 v32, 7, v32\nv_lshl_add_u32 v32, v33, 5, v32\nv_and_b32 v33, 3, v1\nv_lshl_add_u32 v32, v33, 3, v32")
        a(f"v_add_u32 v32, {img}, v32")
        for nt in range(4): a(f"v_xor_b32 v{36+nt}, {nt << 5}, v32")
        a("ds_read_b128 v[40:43], v30\nds_read_b128 v[44:47], v30 offset:64")
        T = nmat * 4
        for t in range(T):
            mat, nt = t >> 2, t & 3
            b = 96 + 8 * t
            for s_ in range(2):
                for jj in range(2):
                    a(f"ds_read_b64_tr_b16 v[{b+4*s_+2*jj}:{b+4*s_+2*jj+1}], v{36+nt} offset:{mat*8192 + s_*4096 + jj*512}")
            if t == 2: a("s_waitcnt lgkmcnt(8)") if False else None
        a("s_waitcnt lgkmcnt(0)")
        for t in range(T):
            b = 96 + 8 * t; d = 64 + 4 * t
            a(f"v_mfma_f32_16x16x32_bf16 v[{d}:{d+3}], v[40:43], v[{b}:{b+3}], 0")
        for t in range(T):
            b = 96 + 8 * t; d = 64 + 4 * t
            a(f"v_mfma_f32_16x16x32_bf16 v[{d}:{d+3}], v[44:47], v[{b+4}:{b+7}], v[{d}:{d+3}]")
        for t in range(T):
            d = 64 + 4 * t
            a(f"v_mov_b32 v{d+2}, s61\nv_mov_b32 v{d+3}, s61")

    def moe_aux(self):
        a = self.a
        a(f"v_lshlrev_b32 v6, 4, v1\nv_add_u32 v6, {WS_FR}, v6")
        a("L_m_fr:")
        for i in range(4): a(f"buffer_load_dwordx4 v[{16+4*i}:{19+4*i}], v6, s[12:15], 0 offen offset:{1024*i} sc1")
        a("s_waitcnt vmcnt(0)")
        a("v_cmp_ne_u32 vcc, s61, v17")
        for r in (19, 21, 23, 25, 27, 29, 31): a(f"v_cmp_ne_u32 s[62:63], s61, v{r}\ns_or_b64 vcc, vcc, s[62:63]")
        self.guard_br("L_m_fr")
        a("v_mov_b32 v8, v16\nv_mov_b32 v10, v18")
        for i in range(1, 4): self.top2_merge("v8", "v10", f"v{16+4*i}", f"v{18+4*i}", "v14")
        self.top2_wave("v8", "v10", "v12", "v13", "v14")
        a("v_readfirstlane_b32 s64, v8\nv_readfirstlane_b32 s65, v10")
        a("s_and_b32 s66, s64, 0x7ff\ns_sub_u32 s66, 2047, s66\ns_and_b32 s67, s65, 0x7ff\ns_sub_u32 s67, 2047, s67")
        a(f"v_mov_b32 v6, {L_FLG}\nv_mov_b32 v12, s66\nv_mov_b32 v13, s67\nv_mov_b32 v14, 1\nds_write_b64 v6, v[12:13] offset:24\ns_waitcnt lgkmcnt(0)\nds_write_b32 v6, v14 offset:20")
        for k, d in (("s64", "s68"), ("s65", "s69")):
            a(f"s_lshr_b32 s29, {k}, 16\ns_and_b32 s30, s29, 0x7fff\ns_xor_b32 s31, s29, 0xffff\ns_bitcmp1_b32 s29, 15\ns_cselect_b32 {d}, s30, s31\ns_lshl_b32 {d}, {d}, 16")
        self.stamp(5)
        a("s_cmp_ge_u32 s2, 240\ns_cbranch_scc1 L_m_s4")
        a("s_mul_i32 s29, s2, 171\ns_lshr_b32 s29, s29, 12\ns_mul_i32 s30, s29, 24\ns_sub_u32 s30, s2, s30")
        a("v_bfe_u32 v6, v1, 4, 1\nv_cmp_eq_u32 vcc, 1, v6\nv_mov_b32 v7, s66\nv_mov_b32 v8, s67\nv_cndmask_b32 v7, v7, v8, vcc")
        a("v_and_b32 v9, 15, v1\nv_mul_u32_u24 v10, 1280, v7\nv_lshl_add_u32 v10, v9, 3, v10\ns_lshl_b32 s31, s29, 7\nv_add_u32 v10, s31, v10\nv_lshlrev_b32 v11, 4, v7")
        a("buffer_load_dwordx2 v[16:17], v10, s[4:7], 0 offen")
        a("L_m_st:\nbuffer_load_dwordx2 v[14:15], v11, s[12:15], 0 offen sc1\ns_waitcnt vmcnt(0)")
        a("v_cmp_ne_u32 vcc, s61, v15")
        self.guard_br("L_m_st")
        a("v_lshlrev_b32 v12, 16, v14\nv_and_b32 v13, s28, v14\nv_rcp_f32 v13, v13")
        for r in (16, 17):
            a(f"v_lshlrev_b32 v30, 16, v{r}\nv_and_b32 v31, s28, v{r}\nv_sub_f32 v30, v30, v12\nv_sub_f32 v31, v31, v12")
            a("v_cvt_pk_bf16_f32 v32, v30, v31\nv_lshlrev_b32 v30, 16, v32\nv_and_b32 v31, s28, v32")
            a(f"v_mul_f32 v30, v30, v13\nv_mul_f32 v31, v31, v13\nv_cvt_pk_bf16_f32 v{r}, v30, v31")
        a(f"v_lshlrev_b32 v6, 7, v6\nv_lshl_add_u32 v6, v9, 3, v6\nv_add_u32 v6, {L_XS}, v6\nds_write_b64 v6, v[16:17]")
        a(f"v_mov_b32 v6, {L_FLG}\ns_waitcnt lgkmcnt(0)")
        self.lds_spin("v6", "v7", "s35", "ge", 2, off=36)
        self.moe_tile_gemm(L_AUX, 2, L_XS)
        if "moegate" in self.opts:
            a(f"v_mov_b32 v6, {L_FLG}")
            self.lds_spin("v6", "v7", "s35", "ge", 2, off=8)
        a(f"s_lshl_b32 s29, s2, 11\ns_add_u32 s29, s29, {WS_P1}\nv_lshlrev_b32 v6, 4, v1\ns_mov_b64 exec, 0xffff")
        for t in range(8): a(f"buffer_store_dwordx4 v[{64+4*t}:{67+4*t}], v6, s[12:15], s29 offen offset:{256*t} sc1")
        a("s_mov_b64 exec, -1")
        self.stamp(6)
        a("s_mul_i32 s57, s2, 205\ns_lshr_b32 s57, s57, 11")
        a(f"s_lshl_b32 s29, s57, 11\ns_add_u32 s29, s29, {WS_P1}\nv_lshlrev_b32 v6, 4, v1")
        a(f"v_min_u32 v7, 9, v1\nv_mul_u32_u24 v7, {24*2048}, v7\nv_add_u32 v7, {127*16+8}, v7")
        a("L_m_p1t:\nbuffer_load_dword v8, v7, s[12:15], s29 offen sc1\ns_waitcnt vmcnt(0)\nv_cmp_ne_u32 vcc, s61, v8")
        self.guard_br("L_m_p1t")
        a("L_m_p1:")
        for kc in range(10):
            a(f"s_add_u32 s30, s29, {kc*24*2048}\nbuffer_load_dwordx4 v[{64+8*kc}:{67+8*kc}], v6, s[12:15], s30 offen sc1\nbuffer_load_dwordx4 v[{68+8*kc}:{71+8*kc}], v6, s[12:15], s30 offen offset:1024 sc1")
        a("s_waitcnt vmcnt(0)")
        a("v_cmp_ne_u32 vcc, s61, v66")
        for k in range(1, 20): a(f"v_cmp_ne_u32 s[62:63], s61, v{66+4*k}\ns_or_b64 vcc, vcc, s[62:63]")
        self.guard_br("L_m_p1")
        a(f"v_mov_b32 v6, {L_FLG}\nv_mov_b32 v7, 1\nds_write_b32 v6, v7 offset:56")
        for kc in range(1, 10):
            for o in (0, 1, 4, 5): a(f"v_add_f32 v{64+o}, v{64+o}, v{64+8*kc+o}")
        for c in range(2):
            g_, u_ = 64 + c, 68 + c
            a(f"v_cvt_pk_bf16_f32 v{g_}, v{g_}, v{g_}\nv_lshlrev_b32 v{g_}, 16, v{g_}\nv_cvt_pk_bf16_f32 v{u_}, v{u_}, v{u_}\nv_lshlrev_b32 v{u_}, 16, v{u_}")
            a(f"v_mul_f32 v46, {f32hex(-1.4426950408889634)}, v{g_}\nv_exp_f32 v46, v46\nv_add_f32 v46, 1.0, v46\nv_rcp_f32 v46, v46\nv_mul_f32 v46, v{g_}, v46")
            a(f"v_cvt_pk_bf16_f32 v46, v46, v46\nv_lshlrev_b32 v46, 16, v46\nv_mul_f32 v{g_}, v46, v{u_}")
        a("v_cvt_pk_bf16_f32 v16, v64, v65")
        a(f"v_lshlrev_b32 v6, 1, v1\nv_add_u32 v6, {L_HS}, v6\nds_write_b16 v6, v16\nds_write_b16_d16_hi v6, v16 offset:128")
        a(f"v_mov_b32 v6, {L_FLG}\ns_waitcnt lgkmcnt(0)")
        self.lds_spin("v6", "v7", "s35", "ge", 2, off=36)
        self.moe_tile_gemm(L_AUX + 16384, 1, L_HS)
        a(f"s_lshl_b32 s29, s2, 10\ns_add_u32 s29, s29, {WS_P3}\nv_lshlrev_b32 v6, 4, v1\ns_mov_b64 exec, 0xffff")
        for t in range(4): a(f"buffer_store_dwordx4 v[{64+4*t}:{67+4*t}], v6, s[12:15], s29 offen offset:{256*t} sc1")
        a("s_mov_b64 exec, -1")
        self.stamp(7)
        a("s_branch L_m_end")
        a("L_m_s4:")
        a(f"v_mov_b32 v6, {L_FLG}\nv_mov_b32 v7, 1\nds_write_b32 v6, v7 offset:56")
        a("s_cmp_ge_u32 s2, 250\ns_cbranch_scc1 L_m_end")
        a(f"s_sub_u32 s57, s2, 240\ns_lshl_b32 s29, s57, 10\ns_add_u32 s29, s29, {WS_P3}\nv_lshlrev_b32 v6, 4, v1")
        a(f"v_min_u32 v7, 23, v1\nv_mul_u32_u24 v7, {10*1024}, v7\nv_add_u32 v7, {63*16+8}, v7")
        a("L_m_p3t:\nbuffer_load_dword v8, v7, s[12:15], s29 offen sc1\ns_waitcnt vmcnt(0)\nv_cmp_ne_u32 vcc, s61, v8")
        self.guard_br("L_m_p3t")
        a("L_m_p3:")
        for kc in range(24):
            a(f"s_add_u32 s30, s29, {kc*10*1024}\nbuffer_load_dwordx4 v[{64+4*kc}:{67+4*kc}], v6, s[12:15], s30 offen sc1")
        a("s_waitcnt vmcnt(0)")
        a("v_cmp_ne_u32 vcc, s61, v66")
        for k in range(1, 24): a(f"v_cmp_ne_u32 s[62:63], s61, v{66+4*k}\ns_or_b64 vcc, vcc, s[62:63]")
        self.guard_br("L_m_p3")
        for kc in range(1, 24): a(f"v_add_f32 v64, v64, v{64+4*kc}\nv_add_f32 v65, v65, v{65+4*kc}")
        for c in range(2):
            a(f"v_cvt_pk_bf16_f32 v{64+c}, v{64+c}, v{64+c}\nv_lshlrev_b32 v{64+c}, 16, v{64+c}")
            sr = "s68" if c == 0 else "s69"
            a(f"v_mov_b32 v46, {sr}\nv_mul_f32 v46, {f32hex(-1.4426950408889634)}, v46\nv_exp_f32 v46, v46\nv_add_f32 v46, 1.0, v46\nv_rcp_f32 v46, v46")
            a(f"v_cvt_pk_bf16_f32 v46, v46, v46\nv_lshlrev_b32 v46, 16, v46\nv_mul_f32 v{64+c}, v{64+c}, v46")
        a("v_cvt_pk_bf16_f32 v48, v64, v65\nv_mov_b32 v49, s61")
        a(f"s_lshl_b32 s29, s57, 9\ns_add_u32 s29, s29, {WS_UPD}\nv_lshlrev_b32 v6, 3, v1\nbuffer_store_dwordx2 v[48:49], v6, s[12:15], s29 offen sc1")
        self.stamp(7)
        a("L_m_end:")

    def small_gemm(self, nk, astride, jjoff, bstride):
        a = self.a
        self.lg_reset()
        def rd(s_):
            b = 50 + 8 * (s_ % 3)
            a(f"ds_read_b128 v[{b}:{b+3}], v30 offset:{astride*s_}")
            a(f"ds_read_b64_tr_b16 v[{b+4}:{b+5}], v32 offset:{bstride*s_}\nds_read_b64_tr_b16 v[{b+6}:{b+7}], v32 offset:{bstride*s_+jjoff}")
            self.lg_issue(("G", s_), 3)
        rd(0); rd(1)
        for s_ in range(nk):
            if s_ + 2 < nk: rd(s_ + 2)
            self.lg_wait(("G", s_))
            b = 50 + 8 * (s_ % 3)
            a(f"v_mfma_f32_16x16x32_bf16 v[40:43], v[{b}:{b+3}], v[{b+4}:{b+7}], {'0' if s_ == 0 else 'v[40:43]'}")

    def aux(self):
        a = self.a
        a("L_aux:")
        self.post_srd = []
        self.srd(40, 72, 256)
        a("v_mov_b32 v2, 0")
        a(f"v_lshlrev_b32 v6, 2, v1\nv_add_u32 v6, {L_FLG}, v6\ns_mov_b32 exec_hi, 0\nds_write_b32 v6, v2\ns_mov_b64 exec, -1")
        a("s_memrealtime s[54:55]")
        a("s_lshl_b32 s23, s46, 3\ns_add_u32 s23, s23, s20")
        a("s_waitcnt lgkmcnt(0)")
        self.srd_fin()
        self.stamp(0)
        a("v_mov_b32 v9, 0")
        a("s_cmp_lg_u32 s2, 0\ns_cbranch_scc1 L_x_non")
        a("s_or_b32 s54, s54, 1\nv_mov_b32 v10, s54\ns_mov_b64 exec, 1\nbuffer_store_dword v10, v9, s[40:43], 0 offen sc1\ns_mov_b64 exec, -1")
        a("L_x_non:")
        a("s_getreg_b32 s52, hwreg(HW_REG_XCC_ID, 0, 4)")
        a("s_and_b32 s52, s52, 7\ns_or_b32 s52, s52, 16\ns_mov_b32 s28, 0xffff0000")
        a("s_barrier")
        a("buffer_load_dword v10, v9, s[40:43], 0 offen sc1")
        def get_nonce():
            a("s_waitcnt vmcnt(0)")
            a("L_x_wn:\nv_cmp_ne_u32 vcc, 0, v10\ns_cbranch_vccnz L_x_gotn")
            a("buffer_load_dword v10, v9, s[40:43], 0 offen sc1\ns_waitcnt vmcnt(0)\ns_add_u32 s100, s100, 1\ns_bitcmp1_b32 s100, 21\ns_cbranch_scc0 L_x_wn")
            a("L_x_gotn:")
            a("v_readfirstlane_b32 s61, v10")
            a(f"v_mov_b32 v6, {L_FLG}\nds_write_b32 v6, v10 offset:4")
            self.xf_code = None
            self.stamp(1)
        def pub_st():
            a(f"s_lshl_b32 s31, s17, 5\ns_add_u32 s31, s31, s18\ns_lshl_b32 s31, s31, 4\ns_add_u32 s31, s31, {WS_XF}")
            a("v_mov_b32 v14, s52\nv_mov_b32 v15, s61\nv_mov_b32 v16, 0\ns_mov_b64 exec, 1\nbuffer_store_dwordx2 v[14:15], v16, s[12:15], s31 offen sc1\ns_mov_b64 exec, -1")
            a(f"v_and_b32 v12, 7, v1\nv_lshlrev_b32 v13, 3, v12\nv_add_u32 v13, {L_OWN}, v13\nds_read_b64 v[18:19], v13")
            a("s_lshl_b32 s29, s23, 3\ns_lshl_b32 s30, s19, 7\ns_add_u32 s29, s29, s30\ns_lshl_b32 s29, s29, 4")
            a("v_lshlrev_b32 v12, 4, v1\nv_mov_b32 v21, s61\nv_mov_b32 v23, s61")
            a("s_waitcnt lgkmcnt(0)\nv_mov_b32 v20, v18\nv_mov_b32 v22, v19")
            a("s_mov_b64 exec, 0xff\nbuffer_store_dwordx4 v[20:23], v12, s[12:15], s29 offen sc1\ns_mov_b64 exec, -1")
            a("v_cmp_gt_u32 vcc, 8, v1\nv_mov_b32 v30, 0\nv_cndmask_b32 v30, v30, v19, vcc\nv_mov_b32 v32, 0")
            for ctrl in ("quad_perm:[1,0,3,2]", "quad_perm:[2,3,0,1]", "row_half_mirror"):
                a(f"v_mov_b32_dpp v34, v30 {ctrl} row_mask:0xf bank_mask:0xf\nv_mov_b32_dpp v35, v32 {ctrl} row_mask:0xf bank_mask:0xf")
                self.top2_merge("v30", "v32", "v34", "v35", "v36")
            a(f"s_lshl_b32 s29, s2, 4\ns_add_u32 s29, s29, {WS_FR}\nv_mov_b32 v28, s29\nv_mov_b32 v31, s61\nv_mov_b32 v33, s61")
            a("s_mov_b64 exec, 1\nbuffer_store_dwordx4 v[30:33], v28, s[12:15], 0 offen sc1\ns_mov_b64 exec, -1")
        def gather_issue():
            a(f"s_lshl_b32 s29, s19, 11\ns_add_u32 s29, s29, {WS_ST}\nv_lshlrev_b32 v9, 5, v1")
            a("buffer_load_dwordx4 v[40:43], v9, s[12:15], s29 offen sc1")
            a("buffer_load_dwordx4 v[44:47], v9, s[12:15], s29 offen offset:16 sc1")
            a(f"s_lshl_b32 s31, s17, 9\ns_add_u32 s31, s31, {WS_XF}\nv_and_b32 v16, 31, v1\nv_lshlrev_b32 v16, 4, v16")
            a("buffer_load_dwordx2 v[18:19], v16, s[12:15], s31 offen sc1")
        def gather_check(Lok):
            a("s_waitcnt vmcnt(0)")
            a("v_cmp_ne_u32 vcc, s61, v41\nv_cmp_ne_u32 s[62:63], s61, v45\ns_or_b64 vcc, vcc, s[62:63]")
            if "nocheck" in self.opts: a(f"s_branch {Lok}")
            a(f"s_cbranch_vccz {Lok}")
        tst = self.b_stats
        for t in range(9):
            a("s_barrier")
            if t == 1: get_nonce()
            if t == tst: pub_st()
            if t == max(self.TG, tst + 2): gather_issue()
        gather_check("L_x_gdone")
        a("L_x_gretry:")
        gather_issue()
        gather_check("L_x_gdone")
        self.guard("L_x_gretry")
        a("L_x_gdone:")
        a("v_lshlrev_b32 v24, 16, v40\nv_and_b32 v25, 0xffff0000, v40\nv_lshlrev_b32 v26, 16, v44\nv_and_b32 v27, 0xffff0000, v44")
        a("v_rcp_f32 v25, v25\nv_rcp_f32 v27, v27")
        a(f"v_lshlrev_b32 v28, 4, v1\nv_add_u32 v28, {L_STAT}, v28")
        a("ds_write_b128 v28, v[24:27]")
        a("s_waitcnt vmcnt(0)")
        a("v_cmp_ne_u32 vcc, s52, v18\nv_cmp_ne_u32 s[62:63], s61, v19\ns_or_b64 vcc, vcc, s[62:63]")
        a("s_cmp_eq_u64 vcc, 0\ns_cselect_b32 s56, 1, 0")
        if "slow" in self.opts: a("s_mov_b32 s56, 0")
        a(f"v_mov_b32 v28, {L_FLG}\nv_mov_b32 v29, s56\nds_write_b32 v28, v29\ns_waitcnt lgkmcnt(0)")
        self.stamp(2)
        a("s_barrier")
        self.stamp(3); self.stamp(4)
        if self.stop_after is None:
            a("s_mov_b32 s28, 0xffff0000\ns_setprio 3")
            if self.stamps:
                for k in (5, 6, 7): a(f"s_mov_b64 s[{72+2*k}:{73+2*k}], 0")
            if "nomoe" not in self.opts: self.moe_aux()
        if "lstamp" not in self.opts and "lloop" not in self.opts: self.fin_stamps(8 if self.stop_after is None else 5, wave=10, slot=1)
        a("s_endpgm")

if __name__ == "__main__":
    import argparse
    ap = argparse.ArgumentParser()
    ap.add_argument("-o", default="k.s")
    ap.add_argument("--stamps", action="store_true")
    ap.add_argument("--opt", action="append", default=[])
    args = ap.parse_args()
    g = Gen(stamps=args.stamps, opts=args.opt)
    open(args.o, "w").write(g.build())
    print("wrote", args.o)
```
